```python
import torch

def _softmax(x, axis=-1):
    return torch.softmax(x, dim=axis)
def _gelu(x):
    return torch.nn.functional.gelu(x, approximate="tanh")
def _silu(x):
    return torch.nn.functional.silu(x)
def _sigmoid(x):
    return torch.sigmoid(x)
def _layernorm(x, axis=-1, eps=1e-5):
    m = x.mean(dim=axis, keepdim=True)
    v = x.var(dim=axis, keepdim=True, unbiased=False)
    return (x - m) / torch.sqrt(v + eps)
def _scatter_add(tgt, idx, src, axis=0):
    return tgt.clone().index_add_(axis, idx, src)
def _segment_sum(src, seg, n):
    out = torch.zeros((n,) + src.shape[1:], dtype=src.dtype)
    return out.index_add_(0, seg, src)
def _pad(x, pw):
    flat = tuple(v for pair in reversed(pw) for v in pair)
    return torch.nn.functional.pad(x, flat)

kernel_name = 'parallel_sum__sliding_block__dense_activation_gelu__prompt'

def setup_inputs():

    _w = (lambda a: (lambda t: t.to(torch.bfloat16) if t.is_floating_point() else t)(torch.as_tensor(a)))
    def _A_setup():
        B, S, D = 1, 2048, 448
        return {
            "x": _w((lambda *s: torch.randn(*s, dtype=torch.bfloat16) * 0.05)(B, S, D)),
            "wqkv": _w((lambda *s: torch.randn(*s, dtype=torch.bfloat16) * 0.05)(D, 3 * D)),
            "wo": _w((lambda *s: torch.randn(*s, dtype=torch.bfloat16) * 0.05)(D, D)),
        }
    _A_in = _A_setup()

    def _B_setup():
        B, S, D, F = 1, 2048, 448, 1792
        return {
            "x": _w((lambda *s: torch.randn(*s, dtype=torch.bfloat16) * 0.05)(B, S, D)),
            "w1": _w((lambda *s: torch.randn(*s, dtype=torch.bfloat16) * 0.8)(D, F) * (D ** -0.5)),
            "b1": _w((lambda *s: torch.randn(*s, dtype=torch.bfloat16) * 0.8)(F) * 0.01),
            "w2": _w((lambda *s: torch.randn(*s, dtype=torch.bfloat16) * 0.8)(F, D) * (F ** -0.5)),
            "b2": _w((lambda *s: torch.randn(*s, dtype=torch.bfloat16) * 0.8)(D) * 0.01),
        }
    _B_in = _B_setup()

    return {
        "A_x": _A_in["x"],
        "A_wqkv": _A_in["wqkv"],
        "A_wo": _A_in["wo"],
        "B_x": _B_in["x"],
        "B_w1": _B_in["w1"],
        "B_b1": _B_in["b1"],
        "B_w2": _B_in["w2"],
        "B_b2": _B_in["b2"],
    }

def reference(A_x, A_wqkv, A_wo, B_x, B_w1, B_b1, B_w2, B_b2):
    def _A_ref(x, wqkv, wo):
        B, S, D = x.shape
        H = 16; Dh = D // H; W = 256
        qkv = (lambda x, *d: x.permute(*d))((x @ wqkv).reshape(B, S, 3, H, Dh), 2, 0, 3, 1, 4)
        q, k, v = qkv[0], qkv[1], qkv[2]
        scores = torch.einsum("bhqd,bhkd->bhqk", q, k) * (Dh ** -0.5)
        idx = torch.arange(S)
        mask = (idx[:, None] - idx[None, :] >= 0) & (idx[:, None] - idx[None, :] < W)
        scores = torch.where(mask[None, None], scores, -1e9)
        p = _softmax(scores, axis=-1)
        o = torch.einsum("bhqk,bhkd->bhqd", p, v)
        return (lambda x, *d: x.permute(*d))(o, 0, 2, 1, 3).reshape(B, S, D) @ wo

    def _B_ref(x, w1, b1, w2, b2):
        h = torch.einsum("bsd,df->bsf", x, w1) + b1
        h = _gelu(h)
        return torch.einsum("bsf,fd->bsd", h, w2) + b2

    x = A_x
    xn = _layernorm(x, axis=-1)
    return x + _A_ref(xn, A_wqkv, A_wo) + _B_ref(xn, B_w1, B_b1, B_w2, B_b2)
```

```python
import re

REG_RE = re.compile(r'\b([vas])(\d+)\b|\b([vas])\[(\d+):(\d+)\]|\b(vcc|exec|m0|scc)\b|\b(vcc_lo|vcc_hi|exec_lo|exec_hi)\b')

def regs_of(op):
    out = set()
    for m in REG_RE.finditer(op):
        if m.group(1):
            out.add((m.group(1), int(m.group(2))))
        elif m.group(3):
            for i in range(int(m.group(4)), int(m.group(5)) + 1):
                out.add((m.group(3), i))
        elif m.group(6):
            out.add((m.group(6), 0))
        elif m.group(7):
            out.add((m.group(7)[:-3], 0))
    return out

TRANS = ('v_exp_f32', 'v_log_f32', 'v_rcp_f32', 'v_rsq_f32', 'v_sqrt_f32', 'v_sin_f32', 'v_cos_f32')

class Ins:
    __slots__ = ('text', 'op', 'rd', 'wr', 'cls', 'ops', 'passes', 'srcc', 'ab', 'states', 'wide', 'data')
    def __init__(self, text):
        self.text = text
        t = text.split(';')[0].strip()
        parts = t.split(None, 1)
        self.op = op = parts[0]
        rest = parts[1] if len(parts) > 1 else ''
        ops = [o.strip() for o in re.split(r',(?![^\[]*\])', rest)] if rest else []
        self.ops = ops
        self.rd, self.wr = set(), set()
        self.passes = 0; self.srcc = set(); self.ab = set(); self.states = 1; self.wide = False; self.data = set()
        base = op.replace('_e32', '').replace('_e64', '')
        def R(i): return regs_of(ops[i]) if i < len(ops) else set()
        allr = [regs_of(o) for o in ops]
        if op.startswith('v_mfma'):
            self.cls = 'mfma'
            self.wr = R(0); self.ab = R(1) | R(2); self.srcc = R(3); self.rd = self.ab | self.srcc
            self.passes = 8 if '32x32' in op else 4
        elif op.startswith('v_cmp'):
            self.cls = 'valu'
            self.wr = R(0); self.rd = set().union(*allr[1:])
            if op.startswith('v_cmpx'): self.wr = self.wr | {('exec', 0)}
        elif op.startswith('v_'):
            self.cls = 'valu'
            self.wr = R(0); self.rd = set().union(*allr[1:]) if len(allr) > 1 else set()
            if base in ('v_add_co_u32', 'v_sub_co_u32', 'v_addc_co_u32', 'v_subb_co_u32', 'v_mad_u64_u32'):
                self.wr = R(0) | R(1); self.rd = set().union(*allr[2:])
            if base.startswith('v_permlane') and 'swap' in base:
                self.wr = R(0) | R(1); self.rd = R(0) | R(1)
            if base in ('v_fmac_f32', 'v_dot2c_f32_bf16', 'v_writelane_b32', 'v_pk_fmac_f16') or 'dpp' in op or 'sdwa' in op:
                self.rd = self.rd | R(0)
            if base == 'v_cndmask_b32' and len(ops) == 3: self.rd.add(('vcc', 0))
        elif op.startswith('ds_'):
            self.cls = 'ds'
            if op.startswith('ds_write') or op.startswith('ds_add') and 'rtn' not in op:
                self.rd = set().union(*allr)
            else:
                self.wr = R(0); self.rd = set().union(*allr[1:])
        elif op.startswith('buffer_') or op.startswith('global_'):
            self.cls = 'vmem'
            if op in ('buffer_wbl2', 'buffer_inv'):
                pass
            elif ' lds' in t + ' ' and re.search(r'\blds\b', t):
                self.cls = 'dma'; self.rd = set().union(*allr) | {('m0', 0)}
            elif 'store' in op:
                self.rd = set().union(*allr)
                self.data = R(0) if op.startswith('buffer_') else R(1)
                self.wide = op.endswith('x3') or op.endswith('x4')
            elif 'atomic' in op:
                self.rd = set().union(*allr)
                if re.search(r'\bsc0\b', t): self.wr = R(0)
            else:
                self.wr = R(0); self.rd = set().union(*allr[1:])
        elif op == 's_nop':
            self.cls = 'nop'; self.states = int(ops[0], 0) + 1
        elif op.startswith('s_load') or op.startswith('s_buffer_load') or op in ('s_memtime', 's_memrealtime'):
            self.cls = 'smem'; self.wr = R(0); self.rd = set().union(*allr[1:]) if len(allr) > 1 else set()
        elif op.startswith('s_cbranch') or op == 's_branch':
            self.cls = 'branch'
        elif op in ('s_waitcnt', 's_barrier', 's_endpgm', 's_sleep', 's_setprio'):
            self.cls = 'misc'
        elif op.startswith('s_cmp') or op.startswith('s_bitcmp'):
            self.cls = 'salu'; self.rd = set().union(*allr); self.wr = {('scc', 0)}
        elif op.startswith('s_'):
            self.cls = 'salu'; self.wr = R(0); self.rd = set().union(*allr[1:]) if len(allr) > 1 else set()
            if 'saveexec' in op: self.wr = self.wr | {('exec', 0)}
        else:
            raise ValueError("unknown instr " + text)
        self.op = base

def isv(r): return r[0] in ('v', 'a')
def iss(r): return r[0] in ('s', 'vcc')

def need(p, c):
    n = 0
    pv = {r for r in p.wr if isv(r)}
    if p.cls == 'valu':
        dl = p.op.startswith('v_dot')
        if c.cls == 'mfma' and pv & c.rd: n = max(n, 3 if dl else 2)
        ps = {r for r in p.wr if iss(r)}
        if ps:
            if c.cls in ('vmem', 'dma') and ps & c.rd: n = max(n, 5)
            if c.cls == 'valu' and ps & c.rd:
                n = max(n, 4 if c.op in ('v_readlane_b32', 'v_writelane_b32') else 2)
            if c.cls in ('salu', 'branch', 'smem') and ps & c.rd: n = max(n, 1)
        if c.cls == 'valu' and pv & c.rd:
            if c.op in ('v_readfirstlane_b32', 'v_readlane_b32'): n = max(n, 1)
            if c.op.startswith('v_permlane') or 'dpp' in c.op: n = max(n, 2)
            if p.op in TRANS and c.op not in TRANS: n = max(n, 1)
            if 'sdwa' in p.op or 'op_sel' in p.text: n = max(n, 1)
        if dl and (pv & (c.rd | c.wr)) and c.cls in ('valu', 'vmem', 'ds', 'dma'):
            same_acc = c.op == p.op and ((c.op == 'v_dot2c_f32_bf16' and not (pv & (regs_of(c.ops[1]) | regs_of(c.ops[2])))) or
                                         (c.op == 'v_dot2_f32_bf16' and not (pv & (regs_of(c.ops[1]) | regs_of(c.ops[2])))))
            if not same_acc: n = max(n, 3)
        if ('exec', 0) in p.wr:
            if c.cls == 'mfma': n = max(n, 4)
            if c.cls == 'valu' and (c.op.startswith('v_permlane') or c.op.startswith('v_read') or c.op.startswith('v_write')): n = max(n, 4)
            if c.cls == 'valu' and 'dpp' in c.op: n = max(n, 5)
    if p.cls == 'mfma':
        big = {8: 12, 4: 8}[p.passes]
        if c.cls == 'mfma':
            if pv & c.ab: n = max(n, big)
            if pv & c.srcc:
                if not (c.srcc == p.wr and c.passes == p.passes): n = max(n, big - 2)
            elif pv & c.wr: n = max(n, big - 2)
        elif c.cls in ('valu', 'vmem', 'ds', 'dma'):
            if pv & (c.rd | c.wr): n = max(n, big)
            if c.cls == 'valu' and p.srcc & c.wr: n = max(n, p.passes - 1)
            if c.cls in ('vmem', 'ds') and p.srcc & c.wr: n = max(n, p.passes - 1)
    if p.cls == 'salu' and ('m0', 0) in p.wr and (c.cls == 'dma' or c.op in ('v_writelane_b32', 'v_readlane_b32')) and ('m0', 0) in c.rd: n = max(n, 1)
    if p.cls == 'vmem' and p.wide and p.data & c.wr:
        n = max(n, 2)
    return n

class Asm:
    def __init__(self):
        self.items = []
        self.nlabel = 0
    def __call__(self, s):
        for l in s.strip("\n").split("\n"):
            l = l.strip()
            if not l: continue
            if l.startswith(';'):
                self.items.append(('raw', "    " + l)); continue
            self.items.append(Ins(l))
    def label(self, name): self.items.append(('label', name))
    def newlabel(self, p="L"):
        self.nlabel += 1
        return f"{p}_{self.nlabel}"
    def raw(self, s): self.items.append(('raw', s))
    def extend(self, lst):
        for x in lst: self(x)

    def _pad(self):
        out = []
        win = []
        def req(win, c):
            dist = 0; r = 0
            for p in reversed(win):
                n = need(p, c)
                if n > dist: r = max(r, n - dist)
                dist += p.states
                if dist >= 20: break
            return r
        self.padded = 0
        for it in self.items:
            if isinstance(it, Ins):
                r = req(win, it)
                while r > 0:
                    k = min(r, 16)
                    nop = Ins(f"s_nop {k-1}")
                    out.append(nop); win.append(nop); r -= k; self.padded += k
                out.append(it); win.append(it)
                if it.op in ('s_endpgm', 's_branch'): win = []
                win = win[-24:]
            else:
                out.append(it)
        labels = {it[1]: i for i, it in enumerate(out) if not isinstance(it, Ins) and it[0] == 'label'}
        for i, it in enumerate(out):
            if isinstance(it, Ins) and it.cls == 'branch':
                tgt = labels.get(it.ops[0])
                if tgt is None: continue
                w = [x for x in out[max(0, i - 40):i + 1] if isinstance(x, Ins)]
                for k in range(len(w) - 2, -1, -1):
                    if w[k].op in ('s_endpgm', 's_branch'):
                        w = w[k + 1:]; break
                cnt = 0
                for x in out[tgt:]:
                    if not isinstance(x, Ins): continue
                    r = req(w, x)
                    if r > 0:
                        raise RuntimeError(f"hazard across branch {it.text} -> {x.text}: short {r}")
                    w.append(x); cnt += x.states
                    if cnt > 20 or x.op in ('s_endpgm', 's_branch'): break
        return out
    def text(self):
        ls = []
        for it in self._pad():
            if isinstance(it, Ins): ls.append("    " + it.text)
            elif it[0] == 'label': ls.append(it[1] + ":")
            else: ls.append(it[1])
        return "\n".join(ls) + "\n"

def kernel_header(a, name):
    a.raw(".text")
    a.raw(f".globl {name}")
    a.raw(".p2align 8")
    a.raw(f".type {name},@function")
    a.label(name)

def kernel_desc(a, name, vgpr, sgpr=102, accum=None):
    if accum is None:
        accum = min(256, (vgpr + 3) // 4 * 4)
    a.raw('.section .rodata,"a"')
    a.raw(".p2align 6")
    a.raw(f".amdhsa_kernel {name}")
    a.raw(f"  .amdhsa_next_free_vgpr {vgpr}")
    a.raw(f"  .amdhsa_next_free_sgpr {sgpr}")
    a.raw(f"  .amdhsa_accum_offset {accum}")
    a.raw("  .amdhsa_group_segment_fixed_size 0")
    a.raw("  .amdhsa_kernarg_size 88")
    a.raw("  .amdhsa_user_sgpr_count 2")
    a.raw("  .amdhsa_user_sgpr_kernarg_segment_ptr 1")
    a.raw("  .amdhsa_system_sgpr_workgroup_id_x 1")
    a.raw("  .amdhsa_float_denorm_mode_32 3")
    a.raw("  .amdhsa_float_denorm_mode_16_64 3")
    a.raw(".end_amdhsa_kernel")

def srd(a, d, base, nbytes):
    a(f"s_mov_b32 s{d}, s{base}")
    a(f"s_and_b32 s{d+1}, s{base+1}, 0xffff")
    a(f"s_mov_b32 s{d+2}, {nbytes}")
    a(f"s_mov_b32 s{d+3}, 0x00020000")

def interleave(main, fill, start=0, per=None):
    slots = [i for i, m in enumerate(main) if m.startswith('v_mfma')]
    slots = slots[start:]
    out = []
    n = len(fill)
    if not slots:
        return list(main) + list(fill)
    k = 0
    pos = {s: j for j, s in enumerate(slots)}
    for i, m in enumerate(main):
        out.append(m)
        if i in pos:
            j = pos[i]
            tgt = (n * (j + 1) + len(slots) - 1) // len(slots) if per is None else min(n, per * (j + 1))
            while k < tgt:
                out.append(fill[k]); k += 1
    out.extend(fill[k:])
    return out
```

```python
import math, struct, sys
from asmlib import *

S, D, F, H, DH = 2048, 448, 1792, 16, 28
WS_QK = 0x0
WS_V  = 0x400000
WS_H  = 0x600000
WS_O  = 0xE00000
WS_SIZE = 0x1000000
QK_T, V_T, H_T, O_T = 57344, 28672, 114688, 28672

def f32(x): return "0x%08x" % struct.unpack("<I", struct.pack("<f", x))[0]
LOG2E = 1.4426950408889634
QSCALE = DH ** -0.5 * LOG2E
GC1 = -2.0 * math.sqrt(2.0 / math.pi) * LOG2E
GC2 = GC1 * 0.044715

def vr(b, n): return f"v[{b}:{b+n-1}]"
def ar(b, n): return f"a[{b}:{b+n-1}]"

STAMPS = False
OPT = {}
WS_DBG = 0xF800000
class Stamper:
    def __init__(self, a, kidx):
        self.a, self.n, self.kidx = a, 0, kidx
    def __call__(self):
        if not STAMPS: return
        assert self.n < 15
        self.a(f"s_memtime s[{70+2*self.n}:{71+2*self.n}]")
        self.n += 1
    def dump(self, wsptr, wave):
        if not STAMPS: return
        a = self.a
        a("s_memrealtime s[100:101]")
        a("s_waitcnt vmcnt(0) lgkmcnt(0)")
        a(f"s_mov_b32 s64, s{wsptr}")
        a(f"s_and_b32 s65, s{wsptr+1}, 0xffff")
        a("s_mov_b32 s66, 0x10000000")
        a("s_mov_b32 s67, 0x00020000")
        a(f"s_lshl_b32 s68, s2, 3")
        a(f"s_add_u32 s68, s68, s{wave}")
        a(f"s_lshl_b32 s68, s68, 6")
        a(f"s_add_u32 s68, s68, {WS_DBG + self.kidx * 0x40000}")
        a("v_mov_b32 v1, 0")
        for i in list(range(self.n)) + [15]:
            a(f"v_mov_b32 v2, s{70+2*i}")
            a(f"buffer_store_dword v2, v1, s[64:67], s68 offen offset:{4*i}")

def load_ptrs(a, pairs):
    for d, off in pairs:
        a(f"s_load_dwordx2 s[{d}:{d+1}], s[0:1], {off}")

def gen_k1(a):
    name = "k1_kernel"
    kernel_header(a, name)
    XF = 128
    ACC = 64
    BIAS = 96
    RR = 240
    XREG, AREG = 0, 114688
    LDS_R = AREG + 28672
    st = Stamper(a, 0)
    a("s_cmp_ge_u32 s2, 224")
    a("s_cbranch_scc1 K1_end")
    st()
    load_ptrs(a, [(4, 0), (6, 8), (28, 32), (30, 40), (32, 80)])
    a("""s_and_b32 s34, s2, 7
    s_lshr_b32 s35, s2, 3
    s_mul_i32 s36, s35, 37
    s_lshr_b32 s36, s36, 8
    s_mul_i32 s37, s36, 7
    s_sub_u32 s37, s35, s37
    s_lshr_b32 s38, s34, 1
    s_lshl_b32 s38, s38, 2
    s_add_u32 s38, s38, s36
    s_and_b32 s39, s34, 1
    s_mul_i32 s39, s39, 7
    s_add_u32 s39, s39, s37""")
    a("""v_and_b32 v1, 63, v0
    v_lshrrev_b32 v2, 6, v0
    s_nop 0
    v_readfirstlane_b32 s40, v2""")
    a("s_lshl_b32 s41, s38, 2")
    a("s_add_u32 s41, s41, s40")
    a("""v_lshrrev_b32 v2, 3, v1
    v_and_b32 v3, 7, v1
    v_lshrrev_b32 v4, 1, v2
    v_xor_b32 v5, v3, v4
    s_movk_i32 s42, 896
    v_mul_lo_u32 v6, v2, s42
    v_lshl_add_u32 v8, v5, 4, v6
    v_xor_b32 v5, 4, v5
    v_lshl_add_u32 v9, v5, 4, v6""")
    a("""v_and_b32 v4, 1, v4
    v_lshlrev_b32 v4, 2, v4
    v_xor_b32 v5, v3, v4
    s_movk_i32 s42, 2688
    v_mul_lo_u32 v6, v2, s42
    v_lshl_add_u32 v10, v5, 4, v6
    s_movk_i32 s42, 3584
    v_mul_lo_u32 v6, v2, s42
    v_lshl_add_u32 v11, v5, 4, v6""")
    a("""v_lshrrev_b32 v2, 2, v1
    v_and_b32 v3, 3, v1
    s_movk_i32 s42, 2688
    v_mul_lo_u32 v6, v2, s42
    v_lshl_add_u32 v12, v3, 4, v6""")
    a("""v_lshrrev_b32 v13, 5, v1
    v_lshlrev_b32 v14, 3, v13""")
    a("s_waitcnt lgkmcnt(0)")
    srd(a, 8, 4, S * D * 2)
    srd(a, 12, 6, D * 3 * D * 2)
    srd(a, 16, 28, D * F * 2)
    srd(a, 20, 30, F * 2)
    srd(a, 24, 32, WS_SIZE)
    a("s_lshl_b32 s42, s39, 8")
    for tl in range(4):
        for q in range(4):
            a(f"buffer_load_dwordx2 {vr(BIAS + tl*8 + q*2, 2)}, v14, s[20:23], s42 offen offset:{tl*64 + q*16}")
    a("s_mul_i32 s43, s41, 28672")
    a("s_mul_i32 s44, s40, 28672")
    for rg in range(4):
        a(f"s_add_u32 s{46+rg}, s43, {rg*8*896}")
    for kb in range(7):
        for rg in range(4):
            a(f"s_add_u32 m0, s44, {kb*4096 + rg*1024 - kb*128}")
            a(f"buffer_load_dwordx4 v{8 + (rg & 1)}, s[8:11], s{46+rg} offen offset:{kb*128} lds")
    a("""s_mul_i32 s50, s39, 192
    s_and_b32 s51, s39, 1
    s_lshl_b32 s52, s51, 6
    s_add_u32 s53, s50, s52
    s_xor_b32 s51, s51, 1
    s_lshl_b32 s52, s51, 7
    s_add_u32 s54, s50, s52""")
    a(f"s_mul_i32 s55, s40, {7*16*2688}")
    a("s_add_u32 s55, s55, s54")
    a(f"s_mul_i32 s56, s40, 7168")
    for p in range(7):
        a(f"s_add_u32 m0, s56, {AREG + p*1024}")
        a(f"buffer_load_dwordx4 v12, s[12:15], s55 offen lds")
        if p < 6: a(f"s_add_u32 s55, s55, {16*2688}")
    a("""v_and_b32 v2, 31, v1
    v_lshrrev_b32 v3, 1, v2
    v_and_b32 v3, 7, v3
    v_lshlrev_b32 v4, 7, v2
    v_add_u32 v4, s44, v4""")
    for q in range(4):
        a(f"v_add_u32 v5, {2*q}, v13")
        a("v_xor_b32 v5, v5, v3")
        a(f"v_lshl_add_u32 v{16+q}, v5, 4, v4")
    a("""v_and_b32 v2, 15, v1
    v_lshrrev_b32 v3, 4, v1
    v_and_b32 v3, 1, v3
    v_lshrrev_b32 v4, 2, v2
    v_bfe_u32 v5, v2, 1, 1
    v_lshl_add_u32 v5, v3, 1, v5
    v_bfe_u32 v6, v2, 3, 1
    v_lshlrev_b32 v6, 2, v6
    v_xor_b32 v5, v5, v6
    v_lshlrev_b32 v7, 10, v13
    v_lshl_add_u32 v7, v4, 7, v7
    v_and_b32 v6, 1, v2
    v_lshl_add_u32 v7, v6, 3, v7
    v_lshl_add_u32 v20, v5, 4, v7
    v_xor_b32 v5, 4, v5
    v_lshl_add_u32 v21, v5, 4, v7
    v_lshl_add_u32 v7, v13, 3, v4
    v_lshlrev_b32 v7, 6, v7
    v_lshl_add_u32 v7, v3, 5, v7
    v_and_b32 v6, 3, v2
    v_lshl_add_u32 v22, v6, 3, v7""")
    a(f"v_add_u32 v22, {AREG}, v22")
    a(f"v_add_u32 v23, 57344, v20")
    a(f"v_add_u32 v24, 57344, v21")
    a("v_lshlrev_b32 v25, 3, v1")
    a("v_lshlrev_b32 v26, 4, v1")
    a("""v_and_b32 v2, 31, v1
    s_movk_i32 s42, 7168
    v_mul_lo_u32 v27, v13, s42
    v_lshl_add_u32 v27, v2, 4, v27""")
    st()
    a("s_waitcnt vmcnt(7)")
    st()
    for s in range(28):
        a(f"ds_read_b128 {vr(XF + 4*s, 4)}, v{16 + (s & 3)} offset:{(s >> 2) * 4096}")
        if s % 8 == 7: a("s_waitcnt lgkmcnt(4)")
    a("s_waitcnt vmcnt(0) lgkmcnt(0)")
    a("s_barrier")
    st()
    def pair_dma(srdn, voff, rs, colreg, coladd, ldsbase):
        a(f"s_mul_i32 s55, s40, {14*8*rs}")
        a(f"s_add_u32 s55, s55, {colreg}")
        if coladd: a(f"s_add_u32 s55, s55, {coladd}")
        a(f"s_mul_i32 s56, s40, {14*1024}")
        for p in range(14):
            a(f"s_add_u32 m0, s56, {ldsbase + p*1024}")
            a(f"buffer_load_dwordx4 v{voff}, s[{srdn}:{srdn+3}], s55 offen lds")
            if p < 13: a(f"s_add_u32 s55, s55, {8*rs}")
    a("s_lshl_b32 s57, s39, 8")
    pair_dma(12, 10, 2688, "s53", 0, 0)
    pair_dma(16, 11, 3584, "s57", 0, 57344)
    st()
    a("s_mov_b32 s58, 0x3f803f80")
    a("s_mov_b32 s59, 0x00003f80")
    a("s_mov_b32 s60, 0x3f800000")
    for q in range(4): a(f"v_mov_b32 v{32+q}, 0")
    for d in range(112):
        a(f"v_dot2_f32_bf16 v{32 + (d & 3)}, v{XF+d}, s58, v{32 + (d & 3)}")
    a("""v_add_f32 v32, v32, v33
    v_add_f32 v34, v34, v35
    v_add_f32 v32, v32, v34
    v_mov_b32 v33, v32
    v_permlane32_swap_b32 v32, v33
    v_add_f32 v32, v32, v33""")
    a(f"v_mul_f32 v32, {f32(1.0/448)}, v32")
    a("v_cvt_pk_bf16_f32 v33, v32, v32")
    a("v_and_b32 v33, 0xffff0000, v33")
    a("v_sub_f32 v34, v32, v33")
    a("v_sub_f32 v33, 0, v33")
    for q in range(4): a(f"v_mov_b32 v{36+q}, 0")
    for d0 in range(0, 112, 4):
        for d in range(d0, d0 + 4):
            a(f"v_dot2_f32_bf16 v{40 + 2*(d & 3)}, v{XF+d}, s59, v33")
            a(f"v_dot2_f32_bf16 v{41 + 2*(d & 3)}, v{XF+d}, s60, v33")
        for d in range(d0, d0 + 4):
            a(f"v_cvt_pk_bf16_f32 v{XF+d}, v{40 + 2*(d & 3)}, v{41 + 2*(d & 3)}")
        for d in range(d0, d0 + 4):
            a(f"v_dot2_f32_bf16 v{36 + (d & 3)}, v{XF+d}, v{XF+d}, v{36 + (d & 3)}")
    a("""v_add_f32 v36, v36, v37
    v_add_f32 v38, v38, v39
    v_add_f32 v36, v36, v38
    v_mov_b32 v37, v36
    v_permlane32_swap_b32 v36, v37
    v_add_f32 v36, v36, v37""")
    a(f"v_mul_f32 v36, {f32(1.0/448)}, v36")
    a("v_fma_f32 v36, -v34, v34, v36")
    a("v_max_f32 v36, 0, v36")
    a("v_cvt_pk_bf16_f32 v36, v36, v36")
    a("v_and_b32 v36, 0xffff0000, v36")
    a(f"v_add_f32 v36, {f32(1e-5)}, v36")
    a("v_cvt_pk_bf16_f32 v36, v36, v36")
    a("v_and_b32 v36, 0xffff0000, v36")
    a("v_sqrt_f32 v36, v36")
    a("v_cvt_pk_bf16_f32 v36, v36, v36")
    a("v_and_b32 v36, 0xffff0000, v36")
    a("v_rcp_f32 v28, v36")
    a(f"v_mul_f32 v29, {f32(QSCALE)}, v28")
    a("v_and_b32 v2, 31, v1")
    a("s_lshl_b32 s42, s40, 7")
    a(f"s_add_u32 s42, s42, {LDS_R}")
    a("v_lshl_add_u32 v2, v2, 2, s42")
    a("ds_write_b32 v2, v28")
    a("v_lshl_add_u32 v3, v13, 4, s42")
    a("s_waitcnt lgkmcnt(0)")
    for q in range(4):
        a(f"ds_read_b128 {vr(RR + 4*q, 4)}, v3 offset:{32*q}")
    a("s_waitcnt lgkmcnt(0)")

    def kloop(ntile, addrs, step, second, normal):
        NR = 3
        def reads(s):
            for T in range(ntile):
                b = ((s % NR) * 2 + T) * 4
                a(f"ds_read_b64_tr_b16 {ar(b, 2)}, v{addrs[T]} offset:{s*step}")
                a(f"ds_read_b64_tr_b16 {ar(b+2, 2)}, v{addrs[T]} offset:{s*step + second}")
        reads(0); reads(1)
        for s in range(28):
            if s + 2 < 28: reads(s + 2)
            rem = min(27, s + 2) - s
            a(f"s_waitcnt lgkmcnt({rem * 2 * ntile})")
            for T in range(ntile):
                b = ((s % NR) * 2 + T) * 4
                w, x = ar(b, 4), vr(XF + 4*s, 4)
                A, B = (x, w) if normal else (w, x)
                c = "0" if s == 0 else vr(ACC + 16*T, 16)
                a(f"v_mfma_f32_32x32x16_bf16 {vr(ACC + 16*T, 16)}, {A}, {B}, {c}")

    def epi_qk(T, sc, soff):
        b = ACC + 16*T
        for r in range(16): a(f"v_mul_f32 v{b+r}, v{b+r}, v{sc}")
        for r in range(8): a(f"v_cvt_pk_bf16_f32 v{48+r}, v{b+2*r}, v{b+2*r+1}")
        for q in range(4):
            a(f"buffer_store_dwordx2 {vr(48+2*q, 2)}, v25, s[24:27], {soff} offen offset:{T*2048 + q*512}")
    def epi_v(T, soff):
        b = ACC + 16*T
        for r in range(16): a(f"v_mul_f32 v{b+r}, v{b+r}, v{RR+r}")
        for r in range(8): a(f"v_cvt_pk_bf16_f32 v{48+r}, v{b+2*r}, v{b+2*r+1}")
        a(f"buffer_store_dwordx4 {vr(48, 4)}, v27, s[24:27], {soff} offen offset:{T*512}")
        a(f"s_add_u32 s63, {soff}, 14336")
        a(f"buffer_store_dwordx4 {vr(52, 4)}, v27, s[24:27], s63 offen offset:{T*512}")
    def epi_h(T, tl, soff):
        b = ACC + 16*T
        for r in range(16):
            bb = BIAS + tl*8 + r // 2
            if r & 1: a(f"v_and_b32 v{32+r}, 0xffff0000, v{bb}")
            else: a(f"v_lshlrev_b32 v{32+r}, 16, v{bb}")
        for r in range(16): a(f"v_fma_f32 v{b+r}, v{b+r}, v28, v{32+r}")
        for r in range(16): a(f"v_mul_f32 v{32+r}, v{b+r}, v{b+r}")
        for r in range(16): a(f"v_fma_f32 v{32+r}, v{32+r}, s61, v30")
        for r in range(16): a(f"v_mul_f32 v{32+r}, v{32+r}, v{b+r}")
        for r in range(16): a(f"v_exp_f32 v{32+r}, v{32+r}")
        for r in range(16): a(f"v_add_f32 v{32+r}, 1.0, v{32+r}")
        for r in range(16): a(f"v_rcp_f32 v{32+r}, v{32+r}")
        for r in range(16): a(f"v_mul_f32 v{b+r}, v{b+r}, v{32+r}")
        for r in range(8): a(f"v_cvt_pk_bf16_f32 v{48+r}, v{b+2*r}, v{b+2*r+1}")
        for f in range(2):
            a(f"buffer_store_dwordx4 {vr(48+4*f, 4)}, v26, s[24:27], {soff} offen offset:{(2*T+f)*1024}")

    def qkv_unit(ntile, colreg, addrs, step, second, tag):
        a(f"s_cmp_ge_u32 {colreg}, {2*896}")
        a(f"s_cbranch_scc1 K1_{tag}_v")
        kloop(ntile, addrs, step, second, False)
        a(f"s_cmp_lt_u32 {colreg}, 896")
        a("s_cselect_b64 vcc, -1, 0")
        a("v_cndmask_b32 v31, v28, v29, vcc")
        a(f"s_mul_i32 s62, s41, {QK_T}")
        a(f"s_lshl_b32 s63, {colreg}, 5")
        a("s_add_u32 s62, s62, s63")
        if WS_QK: a(f"s_add_u32 s62, s62, {WS_QK}")
        for T in range(ntile): epi_qk(T, 31, "s62")
        a(f"s_branch K1_{tag}_done")
        a.label(f"K1_{tag}_v")
        kloop(ntile, addrs, step, second, True)
        a(f"s_mul_i32 s62, s41, {V_T}")
        a(f"s_lshl_b32 s63, {colreg}, 3")
        a("s_add_u32 s62, s62, s63")
        a(f"s_add_u32 s62, s62, {WS_V - 2*896*8}")
        for T in range(ntile): epi_v(T, "s62")
        a.label(f"K1_{tag}_done")

    st(); a("s_waitcnt lgkmcnt(0)")
    qkv_unit(1, "s54", [22], 1024, 256, "s")
    st()
    a("s_waitcnt vmcnt(16)")
    a("s_barrier")
    st(); a("s_waitcnt lgkmcnt(0)")
    qkv_unit(2, "s53", [20, 21], 2048, 512, "p")
    st()
    a("s_waitcnt vmcnt(4)")
    a("s_barrier")
    st()
    pair_dma(16, 11, 3584, "s57", 128, 0)
    a(f"s_mov_b32 s61, {f32(GC2)}")
    a(f"v_mov_b32 v30, {f32(GC1)}")
    a(f"s_mul_i32 s62, s41, {H_T}")
    a("s_lshl_b32 s63, s39, 13")
    a("s_add_u32 s62, s62, s63")
    a(f"s_add_u32 s62, s62, {WS_H}")
    st(); a("s_waitcnt lgkmcnt(0)")
    kloop(2, [23, 24], 2048, 512, False)
    st()
    epi_h(0, 0, "s62"); epi_h(1, 1, "s62")
    st()
    a("s_waitcnt vmcnt(4)")
    a("s_barrier")
    a("s_add_u32 s62, s62, 4096")
    a("s_waitcnt lgkmcnt(0)")
    kloop(2, [20, 21], 2048, 512, False)
    epi_h(0, 2, "s62"); epi_h(1, 3, "s62")
    st()
    if STAMPS: a("s_waitcnt vmcnt(0)")
    st()
    st.dump(32, 40)
    a.label("K1_end")
    a("s_endpgm")
    return name, dict(vgpr=256 + 24, accum=256)

NEG = -1e30
def gen_k2(a):
    name = "k2_kernel"
    kernel_header(a, name)
    st = Stamper(a, 1)
    SR = 96
    MD, ME = 64, 80
    QF = 40
    OA = 48
    PB = 24
    LK, LV = 0, 24576
    a("s_cmp_ge_u32 s2, 256")
    a("s_cbranch_scc1 K2_end")
    st()
    load_ptrs(a, [(32, 80)])
    a("""s_and_b32 s34, s2, 7
    s_lshr_b32 s35, s2, 3
    s_and_b32 s36, s35, 1
    s_lshl_b32 s39, s34, 1
    s_add_u32 s39, s39, s36
    s_lshr_b32 s38, s35, 1""")
    a("""v_and_b32 v1, 63, v0
    v_lshrrev_b32 v2, 6, v0
    s_nop 0
    v_readfirstlane_b32 s40, v2""")
    a("""v_lshrrev_b32 v13, 5, v1
    v_and_b32 v12, 31, v1
    v_lshlrev_b32 v8, 4, v1
    v_lshlrev_b32 v9, 3, v1
    s_movk_i32 s42, 7168
    v_mul_lo_u32 v10, v13, s42
    v_lshl_add_u32 v10, v12, 4, v10""")
    a("s_lshl_b32 s41, s38, 2")
    a("s_mul_i32 s43, s40, 3")
    a("s_add_u32 s43, s43, s41")
    a("s_mul_i32 s44, s39, 1792")
    a(f"s_add_u32 s44, s44, {WS_QK + 112*256}")
    a("s_mul_i32 s45, s39, 448")
    a(f"s_add_u32 s45, s45, {WS_V}")
    a("s_mul_i32 s46, s40, 6144")
    a("s_mov_b32 s50, -1")
    a("s_mov_b32 s51, 0xffff")
    a("s_mov_b32 s52, 0x0fffffff")
    a("s_mov_b32 s53, 0x0fffffff")
    a("s_waitcnt lgkmcnt(0)")
    srd(a, 24, 32, WS_SIZE)
    a("s_add_u32 s47, s41, s40")
    a(f"s_mul_i32 s48, s47, {QK_T}")
    a("s_mul_i32 s49, s39, 1792")
    a("s_add_u32 s48, s48, s49")
    if WS_QK: a(f"s_add_u32 s48, s48, {WS_QK}")
    for q in range(4):
        a(f"buffer_load_dwordx2 {vr(QF + 2*q, 2)}, v9, s[24:27], s48 offen offset:{q*512}")
    for k in range(3):
        a(f"s_add_u32 s54, s43, {k}")
        a("s_sub_u32 s55, s54, 8")
        a(f"s_mul_i32 s56, s55, {QK_T}")
        a("s_add_u32 s56, s56, s44")
        a(f"s_mul_i32 s57, s55, {V_T}")
        a("s_add_u32 s57, s57, s45")
        a("s_cmp_lt_u32 s54, 8")
        a("s_cselect_b32 s56, 0x7fff0000, s56")
        a("s_cselect_b32 s57, 0x7fff0000, s57")
        a("s_add_u32 s58, s57, 14336")
        a(f"s_add_u32 m0, s46, {LK + k*2048}")
        a("buffer_load_dwordx4 v8, s[24:27], s56 offen lds")
        a("s_mov_b64 exec, s[50:51]")
        a("buffer_load_dwordx4 v8, s[24:27], s56 offen offset:1024 lds")
        a("s_mov_b64 exec, s[52:53]")
        a(f"s_add_u32 m0, s46, {LV + k*2048}")
        a("buffer_load_dwordx4 v10, s[24:27], s57 offen lds")
        a(f"s_add_u32 m0, s46, {LV + k*2048 + 1024}")
        a("buffer_load_dwordx4 v10, s[24:27], s58 offen lds")
        a("s_mov_b64 exec, -1")
    for k in range(3):
        a(f"s_add_u32 s54, s43, {k}")
        a("s_cmp_lt_u32 s54, 8")
        a("s_cselect_b32 s55, 0xf149, 0")
        a("v_mov_b32 v2, s55")
        a("v_mov_b32 v3, 0")
        a("v_lshl_add_u32 v4, v12, 3, s46")
        a(f"ds_write_b64 v4, v[2:3] offset:{LK + k*2048 + 1792}")
    a("""v_and_b32 v2, 3, v1
    v_cmp_eq_u32 vcc, 0, v2
    v_mov_b32 v3, 0x3f803f80
    v_cndmask_b32 v4, 0, v3, vcc
    v_mov_b32 v5, v4
    v_mov_b32 v6, v4
    v_mov_b32 v7, v4
    v_lshrrev_b32 v3, 2, v1
    v_lshlrev_b32 v3, 9, v3
    v_lshl_add_u32 v3, v2, 4, v3
    v_add_u32 v3, s46, v3
    s_mov_b64 exec, s[50:51]""")
    a(f"ds_write_b128 v3, v[4:7] offset:{LV + 448}")
    a("s_mov_b64 exec, -1")
    a(f"v_mov_b32 v2, {f32(NEG)}")
    a("v_lshlrev_b32 v3, 2, v13")
    a("v_sub_u32 v3, v12, v3")
    for r in range(16):
        key = 8 * (r >> 2) + (r & 3)
        a(f"v_cmp_le_i32 vcc, {key}, v3")
        a(f"v_cndmask_b32 v{MD+r}, v2, 0, vcc")
        a(f"v_cndmask_b32 v{ME+r}, 0, v2, vcc")
    a("s_lshl_b32 s54, s40, 11")
    a("v_add_u32 v14, s54, v9")
    a("v_add_u32 v15, s54, v8")
    a(f"v_add_u32 v15, {LV}, v15")
    a("v_mov_b32 v16, 0x3f803f80")
    for r in range(17, 20): a(f"v_mov_b32 v{r}, 0")
    for r in range(21, 24): a(f"v_mov_b32 v{r}, 0")
    st()
    a("s_waitcnt vmcnt(0) lgkmcnt(0)")
    a("v_cmp_eq_u32 vcc, 0, v13")
    a("v_mov_b32 v2, 0x3f80")
    a(f"v_cndmask_b32 v{QF+6}, v2, v{QF+6}, vcc")
    a(f"v_cndmask_b32 v{QF+7}, 0, v{QF+7}, vcc")
    a("s_barrier")
    st(); a("s_waitcnt lgkmcnt(0)")
    for s in range(9):
        for f in range(2):
            a(f"ds_read2st64_b64 {ar(8*s + 4*f, 4)}, v14 offset0:{4*s + 2*f} offset1:{4*s + 2*f + 1}")
        if s == 5: a("s_waitcnt lgkmcnt(4)")
    main = []
    for s in range(9):
        if s >= 4: main.append(f"s_waitcnt lgkmcnt({2*(8-s)})")
        c = vr(ME, 16) if s == 0 else vr(MD, 16) if s == 8 else "0"
        main.append(f"v_mfma_f32_32x32x16_bf16 {vr(SR+16*s, 16)}, {ar(8*s, 4)}, {vr(QF, 4)}, {c}")
        main.append(f"v_mfma_f32_32x32x16_bf16 {vr(SR+16*s, 16)}, {ar(8*s+4, 4)}, {vr(QF+4, 4)}, {vr(SR+16*s, 16)}")
        if s >= 2:
            b = SR + 16*(s-2)
            for r in range(0, 16, 2):
                acc = 2 + ((r >> 1) & 3)
                if s == 2 and r < 8: main.append(f"v_max_f32 v{acc}, v{b+r}, v{b+r+1}")
                else: main.append(f"v_max3_f32 v{acc}, v{b+r}, v{b+r+1}, v{acc}")
    a.extend(main)
    for s in range(9):
        for f in range(2):
            a(f"ds_read_b128 {ar(72 + 8*s + 4*f, 4)}, v15 offset:{2048*s + 1024*f}")
        if s == 5: a("s_waitcnt lgkmcnt(4)")
    for s in (7, 8):
        b = SR + 16*s
        for r in range(0, 16, 2):
            acc = 2 + ((r >> 1) & 3)
            a(f"v_max3_f32 v{acc}, v{b+r}, v{b+r+1}, v{acc}")
    a("""v_max3_f32 v2, v2, v3, v4
    v_max_f32 v2, v2, v5
    v_mov_b32 v3, v2
    v_permlane32_swap_b32 v2, v3
    v_max_f32 v2, v2, v3
    v_sub_f32 v2, 0, v2
    v_cvt_pk_bf16_f32 v3, v2, v2
    v_and_b32 v3, 0xffff0000, v3
    v_sub_f32 v3, v2, v3
    v_cvt_pk_bf16_f32 v20, v2, v3
    v_cmp_eq_u32 vcc, 0, v13
    v_cndmask_b32 v20, 0, v20, vcc""")
    st()
    for s in range(9):
        a(f"v_mfma_f32_32x32x16_bf16 {vr(SR+16*s, 16)}, v[16:19], v[20:23], {vr(SR+16*s, 16)}")
    a("s_waitcnt lgkmcnt(0)")
    for s in range(9):
        b = SR + 16*s
        pb = PB + 8*(s & 1)
        for r in range(16): a(f"v_exp_f32 v{b+r}, v{b+r}")
        for r in range(8): a(f"v_cvt_pk_bf16_f32 v{pb+r}, v{b+2*r}, v{b+2*r+1}")
        for f in range(2):
            c = "0" if (s == 0 and f == 0) else vr(OA, 16)
            a(f"v_mfma_f32_32x32x16_bf16 {vr(OA, 16)}, {ar(72 + 8*s + 4*f, 4)}, {vr(pb + 4*f, 4)}, {c}")
    st()
    a(f"v_mov_b32 v2, v{OA+12}")
    a(f"v_mov_b32 v3, v{OA+12}")
    a("v_permlane32_swap_b32 v2, v3")
    a("v_rcp_f32 v3, v3")
    for r in range(16): a(f"v_mul_f32 v{OA+r}, v{OA+r}, v3")
    for r in range(8): a(f"v_cvt_pk_bf16_f32 v{PB+r}, v{OA+2*r}, v{OA+2*r+1}")
    a(f"s_mul_i32 s48, s47, {O_T}")
    a("s_add_u32 s48, s48, s49")
    a(f"s_add_u32 s48, s48, {WS_O}")
    for q in range(4):
        if q == 3: a("s_mov_b32 exec_hi, 0")
        a(f"buffer_store_dwordx2 {vr(PB+2*q, 2)}, v9, s[24:27], s48 offen offset:{q*512}")
    a("s_mov_b64 exec, -1")
    st()
    if STAMPS: a("s_waitcnt vmcnt(0)")
    st()
    st.dump(32, 40)
    a.label("K2_end")
    a("s_endpgm")
    return name, dict(vgpr=256 + 144, accum=256)

def gen_k3(a):
    name = "k3_kernel"
    kernel_header(a, name)
    st = Stamper(a, 2)
    ACC = 64
    BF = 128
    PD = OPT.get('k3pd', 6)
    NB = PD + 1
    NS = 35
    RING = 10
    a("s_cmp_ge_u32 s2, 224")
    a("s_cbranch_scc1 K3_end")
    st()
    load_ptrs(a, [(4, 0), (6, 16), (28, 48), (30, 56), (32, 80), (34, 64)])
    a("""s_and_b32 s36, s2, 7
    s_lshr_b32 s37, s2, 3
    s_mul_i32 s38, s37, 37
    s_lshr_b32 s38, s38, 8
    s_mul_i32 s39, s38, 7
    s_sub_u32 s39, s37, s39
    s_lshl_b32 s36, s36, 2
    s_add_u32 s38, s38, s36""")
    a("""v_and_b32 v1, 63, v0
    v_lshrrev_b32 v2, 6, v0
    s_nop 0
    v_readfirstlane_b32 s40, v2""")
    a("""v_lshrrev_b32 v13, 5, v1
    v_lshlrev_b32 v8, 4, v1
    v_lshlrev_b32 v9, 3, v1
    v_lshrrev_b32 v2, 3, v1
    v_and_b32 v3, 7, v1
    v_bfe_u32 v4, v2, 1, 1
    v_lshlrev_b32 v4, 2, v4
    v_xor_b32 v5, v3, v4
    s_movk_i32 s42, 896
    v_mul_lo_u32 v6, v2, s42
    v_lshl_add_u32 v10, v5, 4, v6""")
    a(f"s_mul_i32 s44, s40, {RING*2048}")
    a("""v_and_b32 v2, 15, v1
    v_bfe_u32 v3, v1, 4, 1
    v_lshrrev_b32 v4, 2, v2
    v_bfe_u32 v5, v2, 1, 1
    v_lshl_add_u32 v5, v3, 1, v5
    v_bfe_u32 v6, v2, 3, 1
    v_lshlrev_b32 v6, 2, v6
    v_xor_b32 v5, v5, v6
    v_lshl_add_u32 v7, v13, 2, v4
    v_lshlrev_b32 v7, 7, v7
    v_and_b32 v6, 1, v2
    v_lshl_add_u32 v7, v6, 3, v7
    v_add_u32 v7, s44, v7
    v_lshl_add_u32 v20, v5, 4, v7
    v_xor_b32 v5, 4, v5
    v_lshl_add_u32 v21, v5, 4, v7""")
    a("s_lshl_b32 s45, s39, 7")
    a(f"s_mul_i32 s46, s40, {28*16*896}")
    a("s_add_u32 s46, s46, s45")
    a(f"s_mul_i32 s47, s40, {7*16*896}")
    a("s_add_u32 s47, s47, s45")
    a(f"s_mul_i32 s48, s38, {2*H_T}")
    a(f"s_mul_i32 s49, s40, {28*1024}")
    a("s_add_u32 s48, s48, s49")
    a(f"s_add_u32 s48, s48, {WS_H}")
    a(f"s_add_u32 s49, s48, {H_T}")
    a(f"s_mul_i32 s50, s38, {2*O_T}")
    a(f"s_mul_i32 s51, s40, {7*1024}")
    a("s_add_u32 s50, s50, s51")
    a(f"s_add_u32 s50, s50, {WS_O}")
    a(f"s_add_u32 s51, s50, {O_T}")
    a("s_waitcnt lgkmcnt(0)")
    srd(a, 8, 4, S * D * 2)
    srd(a, 12, 6, D * D * 2)
    srd(a, 16, 28, F * D * 2)
    srd(a, 20, 30, D * 2)
    srd(a, 24, 32, WS_SIZE)
    srd(a, 56, 34, S * D * 2)
    a("""v_lshrrev_b32 v2, 3, v0
    v_and_b32 v3, 7, v0
    s_movk_i32 s42, 896
    v_mul_lo_u32 v22, v2, s42
    v_lshl_add_u32 v22, v3, 4, v22
    v_lshlrev_b32 v23, 4, v3""")
    a(f"s_mul_i32 s52, s38, {64*896}")
    a("s_add_u32 s52, s52, s45")
    a(f"s_add_u32 s53, s52, {32*896}")
    a("buffer_load_dwordx4 v[24:27], v22, s[8:11], s52 offen")
    a("buffer_load_dwordx4 v[28:31], v22, s[8:11], s53 offen")
    a("buffer_load_dwordx4 v[32:35], v23, s[20:23], s45 offen")
    ROT = OPT.get('k3rot', 0)
    if ROT:
        a("s_and_b32 s60, s38, 3")
        a("s_lshl_b32 s60, s60, 1")
        a("s_add_u32 s60, s60, s39")
        if ROT > 1:
            a("s_lshr_b32 s61, s38, 2")
            a("s_add_u32 s60, s60, s61")
        a("s_mul_i32 s61, s60, 37")
        a("s_lshr_b32 s61, s61, 8")
        a("s_mul_i32 s61, s61, 7")
        a("s_sub_u32 s60, s60, s61")
        a(f"s_mul_i32 s61, s60, {64*896}")
        a("s_add_u32 s46, s46, s61")
        a("s_lshl_b32 s61, s60, 12")
        a("s_add_u32 s48, s48, s61")
        a("s_add_u32 s49, s49, s61")
    def nloads(s): return 4 if s < 28 else 6
    def loads(s):
        slot = s % RING
        if s < 28: sr, so = 16, "s46"
        else: sr, so = 12, "s47"
        for p in range(2):
            a(f"s_add_u32 m0, s44, {slot*2048 + p*1024}")
            a(f"buffer_load_dwordx4 v10, s[{sr}:{sr+3}], {so} offen lds")
            a(f"s_add_u32 {so}, {so}, {8*896}")
        b = BF + 8*(s % NB)
        if s < 28:
            for rt in range(2):
                a(f"buffer_load_dwordx4 {vr(b+4*rt, 4)}, v8, s[24:27], s{48+rt} offen offset:{(s & 3)*1024}")
            if (s & 3) == 3:
                a("s_add_u32 s48, s48, 4096"); a("s_add_u32 s49, s49, 4096")
                if ROT:
                    a("s_add_u32 s60, s60, 1")
                    a("s_cmp_eq_u32 s60, 7")
                    a(f"s_cselect_b32 s61, {28*1024}, 0")
                    a(f"s_cselect_b32 s62, {28*16*896}, 0")
                    a("s_sub_u32 s48, s48, s61"); a("s_sub_u32 s49, s49, s61"); a("s_sub_u32 s46, s46, s62")
        else:
            o = s - 28
            for rt in range(2):
                for hf in range(2):
                    a(f"buffer_load_dwordx2 {vr(b+4*rt+2*hf, 2)}, v9, s[24:27], s{50+rt} offen offset:{(o & 3)*1024 + hf*512}")
            if (o & 3) == 3:
                a("s_add_u32 s50, s50, 4096"); a("s_add_u32 s51, s51, 4096")
    def reads(s):
        slot = s % RING
        for ct in range(2):
            b = ((s & 1) * 2 + ct) * 4
            a(f"ds_read_b64_tr_b16 {ar(b, 2)}, v{20+ct} offset:{slot*2048}")
            a(f"ds_read_b64_tr_b16 {ar(b+2, 2)}, v{20+ct} offset:{slot*2048 + 1024}")
    def younger(s, issued):
        return sum(nloads(x) for x in range(s + 1, issued + 1))
    for s in range(PD): loads(s)
    st()
    a(f"s_waitcnt vmcnt({younger(0, PD-1)})")
    st(); a("s_waitcnt lgkmcnt(0)")
    reads(0)
    for s in range(NS):
        issued = min(NS - 1, s + PD)
        if s + PD < NS: loads(s + PD)
        if s + 1 < NS:
            a(f"s_waitcnt vmcnt({younger(s+1, issued)})")
            reads(s + 1)
            a("s_waitcnt lgkmcnt(4)")
        else:
            a("s_waitcnt lgkmcnt(0)")
        b = BF + 8*(s % NB)
        for ct in range(2):
            for rt in range(2):
                d = vr(ACC + 16*(2*ct+rt), 16)
                c = "0" if s == 0 else d
                a(f"v_mfma_f32_32x32x16_bf16 {d}, {ar(((s & 1)*2+ct)*4, 4)}, {vr(b+4*rt, 4)}, {c}")
    st()
    PITCH = 272
    RB = 4 * RING * 2048
    a("v_and_b32 v2, 31, v1")
    a(f"s_movk_i32 s42, {PITCH}")
    a("v_mul_lo_u32 v2, v2, s42")
    a("v_lshl_add_u32 v2, v13, 4, v2")
    a(f"s_mul_i32 s43, s40, {64*PITCH}")
    a(f"s_add_u32 s43, s43, {RB}")
    a("v_add_u32 v2, s43, v2")
    for ct in range(2):
        for rt in range(2):
            for q in range(4):
                a(f"ds_write_b128 v2, {vr(ACC + 16*(2*ct+rt) + 4*q, 4)} offset:{rt*32*PITCH + ct*128 + q*32}")
    a("v_lshrrev_b32 v2, 3, v0")
    a("v_mul_lo_u32 v2, v2, s42")
    a("v_and_b32 v3, 7, v0")
    a("v_lshl_add_u32 v2, v3, 5, v2")
    a(f"v_add_u32 v2, {RB}, v2")
    a(f"v_add_u32 v3, {2*64*PITCH}, v2")
    a("s_waitcnt lgkmcnt(0)")
    a("s_barrier")
    for e in range(2):
        for w in range(4):
            for hf in range(2):
                a(f"ds_read_b128 {vr(ACC + 32*e + 8*w + 4*hf, 4)}, v{2 + (w >> 1)} offset:{(w & 1)*64*PITCH + e*32*PITCH + hf*16}")
        if e == 0: a("s_waitcnt lgkmcnt(4)")
    for r in range(8):
        if r & 1: a(f"v_and_b32 v{36+r}, 0xffff0000, v{32 + r//2}")
        else: a(f"v_lshlrev_b32 v{36+r}, 16, v{32 + r//2}")
    a("s_waitcnt lgkmcnt(0)")
    for e in range(2):
        b = ACC + 32*e
        for r in range(8):
            xr = 24 + 4*e + r//2
            if r & 1: a(f"v_and_b32 v{44+r}, 0xffff0000, v{xr}")
            else: a(f"v_lshlrev_b32 v{44+r}, 16, v{xr}")
        for r in range(8): a(f"v_add_f32 v{44+r}, v{44+r}, v{36+r}")
        for r in range(8): a(f"v_add_f32 v{b+r}, v{b+r}, v{b+8+r}")
        for r in range(8): a(f"v_add_f32 v{b+16+r}, v{b+16+r}, v{b+24+r}")
        for r in range(8): a(f"v_add_f32 v{b+r}, v{b+r}, v{b+16+r}")
        for r in range(8): a(f"v_add_f32 v{b+r}, v{b+r}, v{44+r}")
        for r in range(4): a(f"v_cvt_pk_bf16_f32 v{52+4*e+r}, v{b+2*r}, v{b+2*r+1}")
        a(f"buffer_store_dwordx4 {vr(52+4*e, 4)}, v22, s[56:59], s{52+e} offen")
    st()
    if STAMPS: a("s_waitcnt vmcnt(0)")
    st()
    st.dump(32, 40)
    a.label("K3_end")
    a("s_endpgm")
    return name, dict(vgpr=256 + 16, accum=256)

def build(path, which=("k1",)):
    a = Asm()
    launches = {"k1": "; @launch kernel=k1_kernel grid=(224,1,1) block=(256,1,1) lds=163840",
                "k2": "; @launch kernel=k2_kernel grid=(256,1,1) block=(256,1,1) lds=49152",
                "k3": "; @launch kernel=k3_kernel grid=(224,1,1) block=(256,1,1) lds=163840"}
    for k in which: a.raw(launches[k])
    a.raw('.amdgcn_target "amdgcn-amd-amdhsa--gfx950"')
    descs = []
    for k in which:
        descs.append(globals()["gen_" + k](a))
    for name, d in descs:
        kernel_desc(a, name, d["vgpr"], 102, d["accum"])
    open(path, "w").write(a.text())
    print("padded nops:", a.padded)

if __name__ == "__main__":
    if len(sys.argv) > 3 and sys.argv[3] == "st": STAMPS = True
    for kv in sys.argv[4:]:
        k, v = kv.split("="); OPT[k] = int(v)
    build(sys.argv[1], tuple(sys.argv[2].split(",")))
```

```python
import sys
import gen1
from gen1 import *

SC = "sc1"

def merge(main, fill, skip=0):
    slots = [i for i, m in enumerate(main) if m.startswith('v_mfma')][skip:]
    out, k, n = [], 0, len(fill)
    pos = {s: j for j, s in enumerate(slots)}
    for i, m in enumerate(main):
        out.append(m)
        if i in pos:
            tgt = (n * (pos[i] + 1)) // len(slots)
            while k < tgt:
                out.extend(fill[k]); k += 1
    for g in fill[k:]: out.extend(g)
    return out

def g1_phase(a, st, L):
    XF, ACC, BIAS, RR = 128, 64, 224 + 16, 48
    BIASA = 32
    XS, U0, U1, MISC = 0, 65536, 94208, 151552
    a("s_lshl_b32 s41, s38, 2")
    a("s_add_u32 s41, s41, s40")
    a("""s_lshl_b32 s42, s38, 1
    s_add_u32 s42, s42, s39
    s_mul_i32 s43, s42, 37
    s_lshr_b32 s43, s43, 8
    s_mul_i32 s43, s43, 7
    s_sub_u32 s42, s42, s43""")
    if not OPT.get('rot', 1): a("s_mov_b32 s42, 0")
    KB = 44
    for n in range(7):
        if n == 0: a(f"s_mov_b32 s{KB}, s42")
        else:
            a(f"s_add_u32 s{KB+n}, s{KB+n-1}, 1")
            a(f"s_cmp_eq_u32 s{KB+n}, 7")
            a(f"s_cselect_b32 s{KB+n}, 0, s{KB+n}")
    a("""v_lshrrev_b32 v2, 3, v1
    v_and_b32 v3, 7, v1
    v_lshrrev_b32 v4, 1, v2
    v_xor_b32 v5, v3, v4
    s_movk_i32 s43, 896
    v_mul_lo_u32 v6, v2, s43
    v_lshl_add_u32 v8, v5, 4, v6
    v_xor_b32 v5, 4, v5
    v_lshl_add_u32 v9, v5, 4, v6""")
    a(f"v_add_u32 v9, {8*896 - 1024}, v9")
    a(f"v_add_u32 v10, {16*896 - 2048}, v8")
    a(f"v_add_u32 v11, {16*896 - 2048}, v9")
    a("s_mul_i32 s51, s41, 28672")
    a("s_lshl_b32 s52, s40, 14")
    def x_dma(n):
        o = []
        o.append(f"s_lshl_b32 s53, s{KB+n}, 7")
        o.append("s_add_u32 s53, s53, s51")
        o.append(f"s_add_u32 m0, s52, {(n & 3)*4096}")
        for rg in range(4):
            o.append(f"buffer_load_dwordx4 v{8+rg}, s[8:11], s53 offen offset:{rg*1024} lds")
        return o
    a.wait_srd()
    for n in range(4): a.extend(x_dma(n))
    a("""v_and_b32 v4, 1, v4
    v_lshlrev_b32 v4, 2, v4
    v_xor_b32 v5, v3, v4
    s_movk_i32 s43, 2688
    v_mul_lo_u32 v6, v2, s43
    v_lshl_add_u32 v12, v5, 4, v6
    s_movk_i32 s43, 3584
    v_mul_lo_u32 v6, v2, s43
    v_lshl_add_u32 v14, v5, 4, v6""")
    a(f"v_add_u32 v13, {8*2688 - 1024}, v12")
    a(f"v_add_u32 v15, {8*3584 - 1024}, v14")
    a("""v_lshrrev_b32 v2, 2, v1
    v_and_b32 v3, 3, v1
    s_movk_i32 s43, 2688
    v_mul_lo_u32 v6, v2, s43
    v_lshl_add_u32 v16, v3, 4, v6""")
    a("v_lshrrev_b32 v17, 5, v1")
    a("""s_mul_i32 s54, s39, 192
    s_and_b32 s43, s39, 1
    s_lshl_b32 s55, s43, 6
    s_add_u32 s55, s54, s55
    s_xor_b32 s43, s43, 1
    s_lshl_b32 s43, s43, 7
    s_add_u32 s54, s54, s43
    s_lshl_b32 s56, s39, 8""")
    a(f"s_mul_i32 s57, s40, {16*2688}")
    a("s_add_u32 s58, s57, s54")
    a("s_add_u32 s57, s57, s55")
    a(f"s_mul_i32 s59, s40, {16*3584}")
    a("s_add_u32 s59, s59, s56")
    a("s_lshl_b32 s60, s40, 10")
    a("s_lshl_b32 s61, s40, 11")
    def single_dma(n):
        return [f"s_mul_i32 s53, s{KB+n}, {64*2688}", "s_add_u32 s53, s53, s58", f"s_add_u32 m0, s60, {U0 + n*4096}",
                "buffer_load_dwordx4 v16, s[12:15], s53 offen lds"]
    def pair_dma(n, which, base):
        rs, sr, vo, sb = (2688, 12, 12, 57) if which == 0 else (3584, 16, 14, 59)
        o = [f"s_mul_i32 s53, s{KB+n}, {64*rs}", f"s_add_u32 s53, s53, s{sb}", f"s_add_u32 m0, s61, {base + n*8192}"]
        for p in range(2):
            o.append(f"buffer_load_dwordx4 v{vo+p}, s[{sr}:{sr+3}], s53 offen offset:{p*1024} lds")
        return o
    a("""v_and_b32 v2, 31, v1
    v_bfe_u32 v3, v2, 1, 3
    v_lshlrev_b32 v4, 7, v2
    v_add_u32 v4, s52, v4""")
    for q in range(4):
        a(f"v_add_u32 v5, {2*q}, v17")
        a("v_xor_b32 v5, v5, v3")
        a(f"v_lshl_add_u32 v{18+q}, v5, 4, v4")
    a("""v_and_b32 v2, 15, v1
    v_bfe_u32 v3, v1, 4, 1
    v_lshrrev_b32 v4, 2, v2
    v_bfe_u32 v5, v2, 1, 1
    v_lshl_add_u32 v5, v3, 1, v5
    v_bfe_u32 v6, v2, 3, 1
    v_lshlrev_b32 v6, 2, v6
    v_xor_b32 v5, v5, v6
    v_lshlrev_b32 v7, 10, v17
    v_lshl_add_u32 v7, v4, 7, v7
    v_and_b32 v6, 1, v2
    v_lshl_add_u32 v7, v6, 3, v7
    v_lshl_add_u32 v22, v5, 4, v7
    v_xor_b32 v5, 4, v5
    v_lshl_add_u32 v23, v5, 4, v7
    v_lshl_add_u32 v7, v17, 3, v4
    v_lshlrev_b32 v7, 6, v7
    v_lshl_add_u32 v7, v3, 5, v7
    v_and_b32 v6, 3, v2
    v_lshl_add_u32 v26, v6, 3, v7""")
    a(f"v_add_u32 v26, {U0}, v26")
    a(f"v_add_u32 v24, {U1}, v22")
    a(f"v_add_u32 v25, {U1}, v23")
    a("v_lshlrev_b32 v27, 3, v1")
    a("v_lshlrev_b32 v28, 4, v1")
    a("""v_and_b32 v2, 31, v1
    s_movk_i32 s43, 7168
    v_mul_lo_u32 v29, v17, s43
    v_lshl_add_u32 v29, v2, 4, v29""")
    a("v_lshlrev_b32 v30, 3, v17")
    a("s_mov_b32 s62, 0x3f803f80")
    for q in range(4): a(f"v_mov_b32 v{32+q}, 0")
    st()
    extra = [single_dma(n) for n in range(7)] + [pair_dma(n, 0, U1) for n in range(7)]
    issued = 16
    pos_end = {n: 4*(n+1) for n in range(4)}
    ex = 0
    for n in range(7):
        a(f"s_waitcnt vmcnt({issued - pos_end[n]})")
        for q in range(4):
            a(f"ds_read_b128 {vr(XF + 16*n + 4*q, 4)}, v{18+q} offset:{(n & 3)*4096}")
        if n >= 1:
            for d in range(16*(n-1), 16*n):
                a(f"v_dot2_f32_bf16 v{32 + (d & 1)}, v{XF+d}, s62, v{32 + (d & 1)}")
                a(f"v_dot2_f32_bf16 v{34 + (d & 1)}, v{XF+d}, v{XF+d}, v{34 + (d & 1)}")
        a("s_waitcnt lgkmcnt(0)")
        if n + 4 < 7:
            a.extend(x_dma(n + 4)); issued += 4; pos_end[n+4] = issued
        else:
            cnt = [4, 3, 2, 5][n - 3]
            for g in extra[ex:ex+cnt]:
                a.extend(g); issued += sum(1 for x in g if x.startswith("buffer"))
            ex += cnt
    assert ex == 14
    st()
    for tl in range(4):
        for q in range(4):
            a(f"buffer_load_dwordx2 {ar(BIASA + tl*8 + q*2, 2)}, v30, s[20:23], s56 offen offset:{tl*64 + q*16}")
    for d in range(96, 112):
        a(f"v_dot2_f32_bf16 v{32 + (d & 1)}, v{XF+d}, s62, v{32 + (d & 1)}")
        a(f"v_dot2_f32_bf16 v{34 + (d & 1)}, v{XF+d}, v{XF+d}, v{34 + (d & 1)}")
    a("""v_add_f32 v32, v32, v33
    v_add_f32 v34, v34, v35
    v_mov_b32 v33, v32
    v_mov_b32 v35, v34
    v_permlane32_swap_b32 v32, v33
    v_permlane32_swap_b32 v34, v35
    v_add_f32 v32, v32, v33
    v_add_f32 v34, v34, v35""")
    a(f"v_mul_f32 v32, {f32(1.0/448)}, v32")
    a(f"v_mul_f32 v34, {f32(1.0/448)}, v34")
    a("v_fma_f32 v34, -v32, v32, v34")
    a("v_cvt_pk_bf16_f32 v33, v32, v32")
    a("v_and_b32 v33, 0xffff0000, v33")
    a("v_sub_f32 v33, 0, v33")
    a("v_max_f32 v34, 0, v34")
    a("v_cvt_pk_bf16_f32 v34, v34, v34")
    a("v_and_b32 v34, 0xffff0000, v34")
    a(f"v_add_f32 v34, {f32(1e-5)}, v34")
    a("v_cvt_pk_bf16_f32 v34, v34, v34")
    a("v_and_b32 v34, 0xffff0000, v34")
    a("v_sqrt_f32 v34, v34")
    a("v_cvt_pk_bf16_f32 v34, v34, v34")
    a("v_and_b32 v34, 0xffff0000, v34")
    a("v_rcp_f32 v31, v34")
    a("v_and_b32 v2, 31, v1")
    a("s_lshl_b32 s43, s40, 7")
    a(f"s_add_u32 s43, s43, {MISC}")
    a("v_lshl_add_u32 v2, v2, 2, s43")
    a("ds_write_b32 v2, v31")
    a("v_lshl_add_u32 v3, v17, 4, s43")
    a(f"s_waitcnt vmcnt({14 + 16}) lgkmcnt(0)")
    a("s_barrier")
    st()
    for q in range(4):
        a(f"ds_read_b128 {vr(RR + 4*q, 4)}, v3 offset:{32*q}")
    a("s_mov_b32 s62, 0x00003f80")
    a("s_mov_b32 s63, 0x3f800000")
    u2 = [pair_dma(n, 1, XS) for n in range(7)]
    for d0 in range(0, 112, 4):
        for d in range(d0, d0 + 4):
            a(f"v_dot2_f32_bf16 v{36 + 2*(d & 3)}, v{XF+d}, s62, v33")
            a(f"v_dot2_f32_bf16 v{37 + 2*(d & 3)}, v{XF+d}, s63, v33")
        for d in range(d0, d0 + 4):
            a(f"v_cvt_pk_bf16_f32 v{XF+d}, v{36 + 2*(d & 3)}, v{37 + 2*(d & 3)}")
        if d0 % 16 == 12: a.extend(u2[d0 // 16])
    a(f"v_mul_f32 v4, {f32(QSCALE)}, v31")
    a("s_cmp_lt_u32 s54, 896")
    a("s_cselect_b64 vcc, -1, 0")
    a("v_cndmask_b32 v2, v31, v4, vcc")
    a("s_cmp_lt_u32 s55, 896")
    a("s_cselect_b64 vcc, -1, 0")
    a("v_cndmask_b32 v3, v31, v4, vcc")
    a(f"s_mul_i32 s43, s41, {QK_T}")
    a("s_lshl_b32 s64, s54, 5"); a("s_add_u32 s64, s64, s43")
    a("s_lshl_b32 s65, s55, 5"); a("s_add_u32 s65, s65, s43")
    a(f"s_mul_i32 s43, s41, {V_T}")
    a(f"s_add_u32 s43, s43, {WS_V - 2*896*8}")
    a("s_lshl_b32 s66, s54, 3"); a("s_add_u32 s66, s66, s43")
    a("s_lshl_b32 s67, s55, 3"); a("s_add_u32 s67, s67, s43")
    a(f"s_mul_i32 s68, s41, {H_T}")
    a("s_lshl_b32 s43, s39, 13")
    a("s_add_u32 s68, s68, s43")
    a(f"s_add_u32 s68, s68, {WS_H}")
    a(f"s_mov_b32 s62, {f32(GC2)}")
    a(f"v_mov_b32 v4, {f32(GC1)}")
    a("s_add_u32 s59, s59, 128")
    st(); a("s_waitcnt lgkmcnt(0)")

    def kloop(ntile, addrs, step, second, normal, acc):
        NR = 3
        o = []
        def reads(s):
            for T in range(ntile):
                b = ((s % NR) * 2 + T) * 4
                o.append(f"ds_read_b64_tr_b16 {ar(b, 2)}, v{addrs[T]} offset:{s*step}")
                o.append(f"ds_read_b64_tr_b16 {ar(b+2, 2)}, v{addrs[T]} offset:{s*step + second}")
        reads(0); reads(1)
        for s in range(28):
            if s + 2 < 28: reads(s + 2)
            rem = min(27, s + 2) - s
            o.append(f"s_waitcnt lgkmcnt({rem * 2 * ntile})")
            for T in range(ntile):
                b = ((s % NR) * 2 + T) * 4
                w, x = ar(b, 4), vr(XF + 4*s, 4)
                A, B = (x, w) if normal else (w, x)
                c = "0" if s == 0 else vr(acc + 16*T, 16)
                o.append(f"v_mfma_f32_32x32x16_bf16 {vr(acc + 16*T, 16)}, {A}, {B}, {c}")
        return o
    PK = 240
    def epi_qk(acc, T, sc, soff):
        b = acc + 16*T; pk = PK + 8*T; o = []
        for q in range(4):
            for r in range(4*q, 4*q+4): o.append([f"v_mul_f32 v{b+r}, v{b+r}, v{sc}"])
            for r in range(2*q, 2*q+2): o.append([f"v_cvt_pk_bf16_f32 v{pk+r}, v{b+2*r}, v{b+2*r+1}"])
            o.append([f"buffer_store_dwordx2 {vr(pk+2*q, 2)}, v27, s[24:27], {soff} offen offset:{T*2048 + q*512} {SC}"])
        return o
    def epi_v(acc, T, soff):
        b = acc + 16*T; pk = PK + 8*T; o = []
        for f in range(2):
            for r in range(8*f, 8*f+8): o.append([f"v_mul_f32 v{b+r}, v{b+r}, v{RR+r}"])
            for r in range(4*f, 4*f+4): o.append([f"v_cvt_pk_bf16_f32 v{pk+r}, v{b+2*r}, v{b+2*r+1}"])
            if f == 0: o.append([f"buffer_store_dwordx4 {vr(pk, 4)}, v29, s[24:27], {soff} offen offset:{T*512} {SC}"])
            else: o.append([f"s_add_u32 s43, {soff}, 14336",
                            f"buffer_store_dwordx4 {vr(pk+4, 4)}, v29, s[24:27], s43 offen offset:{T*512} {SC}"])
        return o
    def epi_h(acc, T, tl, soff, packed):
        b = acc + 16*T; pk = PK + 8*T; o = []
        for f in range(2):
            R = range(8*f, 8*f+8)
            t = lambda r: 32 + (r & 7) + 8*(f & 1)
            for r in range(4*f, 4*f+4): o.append([f"v_accvgpr_read_b32 v{pk+r}, a{BIASA + tl*8 + r}"])
            for r in R:
                if r & 1: o.append([f"v_and_b32 v{t(r)}, 0xffff0000, v{pk + r//2}"])
                else: o.append([f"v_lshlrev_b32 v{t(r)}, 16, v{pk + r//2}"])
            if packed:
                R2 = range(8*f, 8*f+8, 2)
                p2 = lambda x: vr(x, 2)
                for r in R2: o.append([f"v_pk_fma_f32 {p2(b+r)}, {p2(b+r)}, v[6:7], {p2(t(r))}"])
                for r in R2: o.append([f"v_pk_mul_f32 {p2(t(r))}, {p2(b+r)}, {p2(b+r)}"])
                for r in R2: o.append([f"v_pk_fma_f32 {p2(t(r))}, {p2(t(r))}, v[8:9], v[10:11]"])
                for r in R2: o.append([f"v_pk_mul_f32 {p2(t(r))}, {p2(t(r))}, {p2(b+r)}"])
                for r in R: o.append([f"v_exp_f32 v{t(r)}, v{t(r)}"])
                for r in R2: o.append([f"v_pk_add_f32 {p2(t(r))}, {p2(t(r))}, v[12:13]"])
                for r in R: o.append([f"v_rcp_f32 v{t(r)}, v{t(r)}"])
                for r in R2: o.append([f"v_pk_mul_f32 {p2(b+r)}, {p2(b+r)}, {p2(t(r))}"])
            else:
                for r in R: o.append([f"v_fma_f32 v{b+r}, v{b+r}, v31, v{t(r)}"])
                for r in R: o.append([f"v_mul_f32 v{t(r)}, v{b+r}, v{b+r}"])
                for r in R: o.append([f"v_fma_f32 v{t(r)}, v{t(r)}, s62, v4"])
                for r in R: o.append([f"v_mul_f32 v{t(r)}, v{t(r)}, v{b+r}"])
                for r in R: o.append([f"v_exp_f32 v{t(r)}, v{t(r)}"])
                for r in R: o.append([f"v_add_f32 v{t(r)}, 1.0, v{t(r)}"])
                for r in R: o.append([f"v_rcp_f32 v{t(r)}, v{t(r)}"])
                for r in R: o.append([f"v_mul_f32 v{b+r}, v{b+r}, v{t(r)}"])
            for r in range(4*f, 4*f+4): o.append([f"v_cvt_pk_bf16_f32 v{pk+r}, v{b+2*r}, v{b+2*r+1}"])
            o.append([f"buffer_store_dwordx4 {vr(pk+4*f, 4)}, v28, s[24:27], {soff} offen offset:{(2*T+f)*1024} {SC}"])
        return o
    A0, A1 = ACC, ACC + 32
    def path(sv, pv, tag):
        a.extend(kloop(1, [26], 1024, 256, sv, A0))
        a("s_waitcnt vmcnt(30)")
        a("s_barrier")
        e0 = epi_v(A0, 0, "s66") if sv else epi_qk(A0, 0, 2, "s64")
        a.extend(merge(kloop(2, [24, 25], 2048, 512, pv, A1), e0, skip=4))
        a(f"s_waitcnt vmcnt({2 if sv else 4})")
        a("s_barrier")
        e1 = (epi_v(A1, 0, "s67") + epi_v(A1, 1, "s67")) if pv else (epi_qk(A1, 0, 3, "s65") + epi_qk(A1, 1, 3, "s65"))
        u3 = [pair_dma(n, 1, U1) for n in range(7)]
        a.extend(merge(kloop(2, [22, 23], 2048, 512, False, A0), u3 + e1, skip=2))
        a(f"s_waitcnt vmcnt({4 if pv else 8})")
    a(f"s_cmp_ge_u32 s39, 10")
    a(f"s_cbranch_scc1 {L}_pc")
    a(f"s_cmp_eq_u32 s39, 9")
    a(f"s_cbranch_scc1 {L}_pb")
    path(False, False, "a")
    a(f"s_branch {L}_join")
    a.label(f"{L}_pb")
    path(False, True, "b")
    a(f"s_branch {L}_join")
    a.label(f"{L}_pc")
    path(True, True, "c")
    a.label(f"{L}_join")
    a("s_barrier")
    st(); a("s_waitcnt lgkmcnt(0)")
    a.extend(merge(kloop(2, [24, 25], 2048, 512, False, A1), epi_h(A0, 0, 0, "s68", False) + epi_h(A0, 1, 1, "s68", False), skip=2))
    st()
    a("s_add_u32 s68, s68, 4096")
    a("v_mov_b32 v6, v31"); a("v_mov_b32 v7, v31")
    a("v_mov_b32 v8, s62"); a("v_mov_b32 v9, s62")
    a("v_mov_b32 v10, v4"); a("v_mov_b32 v11, v4")
    a("v_mov_b32 v12, 1.0"); a("v_mov_b32 v13, 1.0")
    for g in epi_h(A1, 0, 2, "s68", True) + epi_h(A1, 1, 3, "s68", True): a.extend(g)
    st()

def gen_k1(a):
    name = "k1_kernel"
    kernel_header(a, name)
    st = Stamper(a, 0)
    a("s_cmp_ge_u32 s2, 256")
    a("s_cbranch_scc1 K1_end")
    st()
    load_ptrs(a, [(4, 0), (6, 8), (28, 32), (30, 40), (32, 80), (34, 48), (36, 16)])
    a("""v_and_b32 v1, 63, v0
    v_lshrrev_b32 v2, 6, v0
    s_nop 0
    v_readfirstlane_b32 s40, v2""")
    a("s_cmp_ge_u32 s2, 224")
    a("s_cbranch_scc1 K1_helper")
    a("""s_and_b32 s42, s2, 7
    s_lshr_b32 s43, s2, 3
    s_mul_i32 s44, s43, 37
    s_lshr_b32 s44, s44, 8
    s_mul_i32 s45, s44, 7
    s_sub_u32 s45, s43, s45
    s_lshr_b32 s38, s42, 1
    s_lshl_b32 s38, s38, 2
    s_add_u32 s38, s38, s44
    s_and_b32 s39, s42, 1
    s_mul_i32 s39, s39, 7
    s_add_u32 s39, s39, s45""")
    def wait_srd():
        a("s_waitcnt lgkmcnt(0)")
        srd(a, 8, 4, S * D * 2)
        srd(a, 12, 6, D * 3 * D * 2)
        srd(a, 16, 28, D * F * 2)
        srd(a, 20, 30, F * 2)
        srd(a, 24, 32, WS_SIZE)
    a.wait_srd = wait_srd
    g1_phase(a, st, "K1")
    if gen1.STAMPS: a("s_waitcnt vmcnt(0)")
    st()
    st.dump(32, 40)
    a("s_endpgm")
    a.label("K1_helper")
    a("s_waitcnt lgkmcnt(0)")
    srd(a, 8, 28, D * F * 2)
    srd(a, 12, 34, F * D * 2)
    srd(a, 16, 36, D * D * 2)
    a("s_sub_u32 s42, s2, 224")
    a("s_lshl_b32 s42, s42, 2")
    a("s_add_u32 s42, s42, s40")
    a("v_lshlrev_b32 v2, 7, v1")
    a("s_lshl_b32 s43, s42, 13")
    a("s_add_u32 s44, s43, 0x100000")
    if OPT.get('pf', 1):
        a("buffer_load_dword v3, v2, s[8:11], s43 offen")
        a("buffer_load_dword v4, v2, s[8:11], s44 offen")
        a("buffer_load_dword v5, v2, s[12:15], s43 offen")
        a("buffer_load_dword v6, v2, s[12:15], s44 offen")
        a("buffer_load_dword v7, v2, s[16:19], s43 offen")
        a("s_waitcnt vmcnt(0)")
    a.label("K1_end")
    a("s_endpgm")
    return name, dict(vgpr=256 + 64, accum=256)

def build(path, which):
    a = Asm()
    launches = {"k1": "; @launch kernel=k1_kernel grid=(256,1,1) block=(256,1,1) lds=163840",
                "k2": "; @launch kernel=k2_kernel grid=(256,1,1) block=(256,1,1) lds=49152",
                "k3": "; @launch kernel=k3_kernel grid=(224,1,1) block=(256,1,1) lds=163840"}
    for k in which: a.raw(launches[k])
    a.raw('.amdgcn_target "amdgcn-amd-amdhsa--gfx950"')
    descs = [globals()["gen_" + k](a) for k in which]
    for name, d in descs:
        kernel_desc(a, name, d["vgpr"], 102, d["accum"])
    open(path, "w").write(a.text())
    print("padded nops:", a.padded)

if __name__ == "__main__":
    if len(sys.argv) > 3 and sys.argv[3] == "st": gen1.STAMPS = True
    for kv in sys.argv[4:]:
        k, v = kv.split("="); OPT[k] = int(v)
    build(sys.argv[1], tuple(sys.argv[2].split(",")))
```

```python
import re

REG_RE = re.compile(r'\b([vas])(\d+)\b|\b([vas])\[(\d+):(\d+)\]|\b(vcc|exec|m0|scc)\b|\b(vcc_lo|vcc_hi|exec_lo|exec_hi)\b')

def regs_of(op):
    out = set()
    for m in REG_RE.finditer(op):
        if m.group(1):
            out.add((m.group(1), int(m.group(2))))
        elif m.group(3):
            for i in range(int(m.group(4)), int(m.group(5)) + 1):
                out.add((m.group(3), i))
        elif m.group(6):
            out.add((m.group(6), 0))
        elif m.group(7):
            out.add((m.group(7)[:-3], 0))
    return out

TRANS = ('v_exp_f32', 'v_log_f32', 'v_rcp_f32', 'v_rsq_f32', 'v_sqrt_f32', 'v_sin_f32', 'v_cos_f32')

class Ins:
    __slots__ = ('text', 'op', 'rd', 'wr', 'cls', 'ops', 'passes', 'srcc', 'ab', 'states', 'wide', 'data')
    def __init__(self, text):
        self.text = text
        t = text.split(';')[0].strip()
        parts = t.split(None, 1)
        self.op = op = parts[0]
        rest = parts[1] if len(parts) > 1 else ''
        ops = [o.strip() for o in re.split(r',(?![^\[]*\])', rest)] if rest else []
        self.ops = ops
        self.rd, self.wr = set(), set()
        self.passes = 0; self.srcc = set(); self.ab = set(); self.states = 1; self.wide = False; self.data = set()
        base = op.replace('_e32', '').replace('_e64', '')
        def R(i): return regs_of(ops[i]) if i < len(ops) else set()
        allr = [regs_of(o) for o in ops]
        if op.startswith('v_mfma'):
            self.cls = 'mfma'
            self.wr = R(0); self.ab = R(1) | R(2); self.srcc = R(3); self.rd = self.ab | self.srcc
            self.passes = 8 if '32x32' in op else 4
        elif op.startswith('v_cmp'):
            self.cls = 'valu'
            self.wr = R(0); self.rd = set().union(*allr[1:])
            if op.startswith('v_cmpx'): self.wr = self.wr | {('exec', 0)}
        elif op.startswith('v_'):
            self.cls = 'valu'
            self.wr = R(0); self.rd = set().union(*allr[1:]) if len(allr) > 1 else set()
            if base in ('v_add_co_u32', 'v_sub_co_u32', 'v_addc_co_u32', 'v_subb_co_u32', 'v_mad_u64_u32'):
                self.wr = R(0) | R(1); self.rd = set().union(*allr[2:])
            if base.startswith('v_permlane') and 'swap' in base:
                self.wr = R(0) | R(1); self.rd = R(0) | R(1)
            if base in ('v_fmac_f32', 'v_dot2c_f32_bf16', 'v_writelane_b32', 'v_pk_fmac_f16') or 'dpp' in op or 'sdwa' in op:
                self.rd = self.rd | R(0)
            if base == 'v_cndmask_b32' and len(ops) == 3: self.rd.add(('vcc', 0))
        elif op.startswith('ds_'):
            self.cls = 'ds'
            if op.startswith('ds_write') or (op.startswith('ds_add') and 'rtn' not in op):
                self.rd = set().union(*allr)
            else:
                self.wr = R(0); self.rd = set().union(*allr[1:])
        elif op.startswith('buffer_') or op.startswith('global_'):
            self.cls = 'vmem'
            if op in ('buffer_wbl2', 'buffer_inv'):
                pass
            elif ' lds' in t + ' ' and re.search(r'\blds\b', t):
                self.cls = 'dma'; self.rd = set().union(*allr) | {('m0', 0)}
            elif 'store' in op:
                self.rd = set().union(*allr)
                self.data = R(0) if op.startswith('buffer_') else R(1)
                self.wide = op.endswith('x3') or op.endswith('x4')
            elif 'atomic' in op:
                self.rd = set().union(*allr)
                if re.search(r'\bsc0\b', t): self.wr = R(0)
            else:
                self.wr = R(0); self.rd = set().union(*allr[1:])
        elif op == 's_nop':
            self.cls = 'nop'; self.states = int(ops[0], 0) + 1
        elif op.startswith('s_load') or op.startswith('s_buffer_load') or op in ('s_memtime', 's_memrealtime'):
            self.cls = 'smem'; self.wr = R(0); self.rd = set().union(*allr[1:]) if len(allr) > 1 else set()
        elif op.startswith('s_cbranch') or op == 's_branch':
            self.cls = 'branch'
        elif op in ('s_waitcnt', 's_barrier', 's_endpgm', 's_sleep', 's_setprio'):
            self.cls = 'misc'
        elif op.startswith('s_cmp') or op.startswith('s_bitcmp'):
            self.cls = 'salu'; self.rd = set().union(*allr); self.wr = {('scc', 0)}
        elif op.startswith('s_'):
            self.cls = 'salu'; self.wr = R(0); self.rd = set().union(*allr[1:]) if len(allr) > 1 else set()
            if 'saveexec' in op: self.wr = self.wr | {('exec', 0)}
        else:
            raise ValueError("unknown instr " + text)
        self.op = base

def isv(r): return r[0] in ('v', 'a')
def iss(r): return r[0] in ('s', 'vcc')

def need(p, c):
    n = 0
    pv = {r for r in p.wr if isv(r)}
    if p.cls == 'valu':
        dl = p.op.startswith('v_dot')
        if c.cls == 'mfma' and pv & c.rd: n = max(n, 3 if dl else 2)
        ps = {r for r in p.wr if iss(r)}
        if ps:
            if c.cls in ('vmem', 'dma') and ps & c.rd: n = max(n, 5)
            if c.cls == 'valu' and ps & c.rd:
                n = max(n, 4 if c.op in ('v_readlane_b32', 'v_writelane_b32') else 2)
            if c.cls in ('salu', 'branch', 'smem') and ps & c.rd: n = max(n, 1)
        if c.cls == 'valu' and pv & c.rd:
            if c.op in ('v_readfirstlane_b32', 'v_readlane_b32'): n = max(n, 1)
            if c.op.startswith('v_permlane') or 'dpp' in c.op: n = max(n, 2)
            if p.op in TRANS and c.op not in TRANS: n = max(n, 1)
            if 'sdwa' in p.op or 'op_sel' in p.text: n = max(n, 1)
        if dl and (pv & (c.rd | c.wr)) and c.cls in ('valu', 'vmem', 'ds', 'dma'):
            same_acc = c.op == p.op and ((c.op == 'v_dot2c_f32_bf16' and not (pv & (regs_of(c.ops[1]) | regs_of(c.ops[2])))) or
                                         (c.op == 'v_dot2_f32_bf16' and not (pv & (regs_of(c.ops[1]) | regs_of(c.ops[2])))))
            if not same_acc: n = max(n, 3)
        if ('exec', 0) in p.wr:
            if c.cls == 'mfma': n = max(n, 4)
            if c.cls == 'valu' and (c.op.startswith('v_permlane') or c.op.startswith('v_read') or c.op.startswith('v_write')): n = max(n, 4)
            if c.cls == 'valu' and 'dpp' in c.op: n = max(n, 5)
    if p.cls == 'mfma':
        big = {8: 12, 4: 8}[p.passes]
        if c.cls == 'mfma':
            if pv & c.ab: n = max(n, big)
            if pv & c.srcc:
                if not (c.srcc == p.wr and c.passes == p.passes): n = max(n, big - 2)
            elif pv & c.wr: n = max(n, big - 2)
        elif c.cls in ('valu', 'vmem', 'ds', 'dma'):
            if pv & (c.rd | c.wr): n = max(n, big)
            if c.cls == 'valu' and p.srcc & c.wr: n = max(n, p.passes - 1)
            if c.cls in ('vmem', 'ds') and p.srcc & c.wr: n = max(n, p.passes - 1)
    if p.cls == 'salu' and ('m0', 0) in p.wr and (c.cls == 'dma' or c.op in ('v_writelane_b32', 'v_readlane_b32')) and ('m0', 0) in c.rd: n = max(n, 1)
    if p.cls == 'vmem' and p.wide and p.data & c.wr:
        n = max(n, 2)
    return n

class Asm:
    def __init__(self):
        self.items = []
        self.nlabel = 0
    def __call__(self, s):
        for l in s.strip("\n").split("\n"):
            l = l.strip()
            if not l: continue
            if l.startswith(';'):
                self.items.append(('raw', "    " + l)); continue
            if l.startswith('WAIT'):
                toks = l.split()
                self.items.append(('wait', [(toks[i][4], toks[i+1]) for i in range(0, len(toks), 2)])); continue
            if l.endswith(':'):
                self.items.append(('label', l[:-1])); continue
            self.items.append(Ins(l))
    def label(self, name): self.items.append(('label', name))
    def newlabel(self, p="L"):
        self.nlabel += 1
        return f"{p}_{self.nlabel}"
    def raw(self, s): self.items.append(('raw', s))
    def save(self, n): self.items.append(('save', n))
    def restore(self, n): self.items.append(('restore', n))
    def extend(self, lst):
        for x in lst: self(x)

    def _resolve(self):
        res = []
        vm, lg = [], []
        saved = {}
        for it in self.items:
            if isinstance(it, tuple) and it[0] == 'save':
                saved[it[1]] = (list(vm), list(lg)); continue
            if isinstance(it, tuple) and it[0] == 'restore':
                vm, lg = list(saved[it[1]][0]), list(saved[it[1]][1]); continue
            if isinstance(it, tuple) and it[0] == 'wait':
                parts = []
                for kind, tag in it[1]:
                    lst, mx, nm = (vm, 63, 'vmcnt') if kind == 'V' else (lg, 15, 'lgkmcnt')
                    idx = max((i for i, t in enumerate(lst) if t == tag), default=None)
                    if idx is None: raise RuntimeError("wait on unknown tag " + tag)
                    n = len(lst) - 1 - idx
                    if n <= mx: parts.append(f"{nm}({n})")
                    else: parts.append(f"{nm}({mx})")
                res.append(Ins("s_waitcnt " + " ".join(parts)))
                continue
            if isinstance(it, Ins):
                m = re.search(r';\s*@(\S+)', it.text)
                tag = m.group(1) if m else None
                if tag == 'nocount': pass
                elif it.cls in ('vmem', 'dma'): vm.append(tag)
                elif it.cls == 'ds': lg.append(tag)
            res.append(it)
        return res
    def _pad(self):
        out = []
        win = []
        def req(win, c):
            dist = 0; r = 0
            for p in reversed(win):
                n = need(p, c)
                if n > dist: r = max(r, n - dist)
                dist += p.states
                if dist >= 20: break
            return r
        self.padded = 0
        for it in self._resolve():
            if isinstance(it, Ins):
                r = req(win, it)
                while r > 0:
                    k = min(r, 16)
                    nop = Ins(f"s_nop {k-1}")
                    out.append(nop); win.append(nop); r -= k; self.padded += k
                out.append(it); win.append(it)
                if it.op in ('s_endpgm', 's_branch'): win = []
                win = win[-24:]
            else:
                out.append(it)
        labels = {it[1]: i for i, it in enumerate(out) if not isinstance(it, Ins) and it[0] == 'label'}
        for i, it in enumerate(out):
            if isinstance(it, Ins) and it.cls == 'branch':
                tgt = labels.get(it.ops[0])
                if tgt is None: continue
                w = [x for x in out[max(0, i - 40):i + 1] if isinstance(x, Ins)]
                for k in range(len(w) - 2, -1, -1):
                    if w[k].op in ('s_endpgm', 's_branch'):
                        w = w[k + 1:]; break
                cnt = 0
                for x in out[tgt:]:
                    if not isinstance(x, Ins): continue
                    r = req(w, x)
                    if r > 0:
                        raise RuntimeError(f"hazard across branch {it.text} -> {x.text}: short {r}")
                    w.append(x); cnt += x.states
                    if cnt > 20 or x.op in ('s_endpgm', 's_branch'): break
        return out
    def text(self):
        ls = []
        for it in self._pad():
            if isinstance(it, Ins): ls.append("    " + it.text)
            elif it[0] == 'label': ls.append(it[1] + ":")
            else: ls.append(it[1])
        return "\n".join(ls) + "\n"

def kernel_header(a, name):
    a.raw(".text")
    a.raw(f".globl {name}")
    a.raw(".p2align 8")
    a.raw(f".type {name},@function")
    a.label(name)

def kernel_desc(a, name, vgpr, sgpr=102, accum=None):
    if accum is None:
        accum = min(256, (vgpr + 3) // 4 * 4)
    a.raw('.section .rodata,"a"')
    a.raw(".p2align 6")
    a.raw(f".amdhsa_kernel {name}")
    a.raw(f"  .amdhsa_next_free_vgpr {vgpr}")
    a.raw(f"  .amdhsa_next_free_sgpr {sgpr}")
    a.raw(f"  .amdhsa_accum_offset {accum}")
    a.raw("  .amdhsa_group_segment_fixed_size 0")
    a.raw("  .amdhsa_kernarg_size 88")
    a.raw("  .amdhsa_user_sgpr_count 2")
    a.raw("  .amdhsa_user_sgpr_kernarg_segment_ptr 1")
    a.raw("  .amdhsa_system_sgpr_workgroup_id_x 1")
    a.raw("  .amdhsa_float_denorm_mode_32 3")
    a.raw("  .amdhsa_float_denorm_mode_16_64 3")
    a.raw(".end_amdhsa_kernel")

def srd(a, d, base, nbytes):
    a(f"s_mov_b32 s{d}, s{base}")
    a(f"s_and_b32 s{d+1}, s{base+1}, 0xffff")
    a(f"s_mov_b32 s{d+2}, {nbytes}")
    a(f"s_mov_b32 s{d+3}, 0x00020000")

def interleave(main, fill, start=0, per=None):
    slots = [i for i, m in enumerate(main) if m.startswith('v_mfma')]
    slots = slots[start:]
    out = []
    n = len(fill)
    if not slots:
        return list(main) + list(fill)
    k = 0
    pos = {s: j for j, s in enumerate(slots)}
    for i, m in enumerate(main):
        out.append(m)
        if i in pos:
            j = pos[i]
            tgt = (n * (j + 1) + len(slots) - 1) // len(slots) if per is None else min(n, per * (j + 1))
            while k < tgt:
                out.append(fill[k]); k += 1
    out.extend(fill[k:])
    return out
```

```python
import math, struct, sys
from asmlib import *

S, D, F, H, DH = 2048, 448, 1792, 16, 28
WS_QK, WS_V, WS_H, WS_O, WS_FL = 0x0, 0x400000, 0x600000, 0xE00000, 0x1000000
WS_SIZE = 0x1040000
FLG = WS_FL + 0x8000
WS_DBG = 0xF800000
QK_T, V_T, H_T, O_T = 57344, 28672, 114688, 28672
NAME = "parallel_sum__sliding_block__dense_activation_gelu__prompt_kernel"
STAMPS = False
OPT = {}

def f32(x): return "0x%08x" % struct.unpack("<I", struct.pack("<f", x))[0]
LOG2E = 1.4426950408889634
QSCALE = DH ** -0.5 * LOG2E
GC1 = -2.0 * math.sqrt(2.0 / math.pi) * LOG2E
GC2 = GC1 * 0.044715
NEG = -1e30
def vr(b, n): return f"v[{b}:{b+n-1}]"
MF = "v_mfma_f32_32x32x16_bf16"

P0, P1, P2, P3, P4, MISC = 0, 28672, 57344, 86016, 114688, 143360
UB = [P2, P3, P0, P2]
CNT, RRT, BIAST, MSLOT = MISC, MISC + 256, MISC + 1024, MISC + 4096
LK, LV, LQ = 0, 24576, 49152
XISS, FXS, RD0, RD1, RD2, RD3, RD4, FU0, FU1, FXS2, FU3, NONCE, FU1A, AG0, AG1, AG2, AG3 = range(17)
WV, I1, JJ, HEAD, I2, RB, CB, NON = 48, 49, 50, 51, 52, 53, 54, 55
SPIN = 20000

class Stamper:
    def __init__(self, a): self.a, self.n = a, 0
    def __call__(self, idx=None):
        if idx is not None: self.n = idx
        if STAMPS:
            self.a("s_memrealtime s[98:99]")
            self.a("s_waitcnt lgkmcnt(0)")
            self.a(f"v_writelane_b32 v31, s98, {self.n}")
        self.n += 1
    def dump(self):
        if not STAMPS: return
        a = self.a
        a("s_memrealtime s[98:99]")
        a("s_waitcnt vmcnt(0) lgkmcnt(0)")
        a("v_writelane_b32 v31, s98, 31")
        a("v_writelane_b32 v31, s100, 30")
        a("s_mov_b32 s26, 0x10000000")
        a("s_lshl_b32 s96, s2, 3")
        a("v_lshrrev_b32 v2, 6, v0")
        a("v_add_u32 v2, s96, v2")
        a("v_lshlrev_b32 v2, 5, v2")
        a("v_add_lshl_u32 v2, v2, v1, 2")
        a(f"s_mov_b32 s96, {WS_DBG}")
        a("s_mov_b32 exec_hi, 0")
        a("buffer_store_dword v31, v2, s[24:27], s96 offen")

def merge(main, fill, skip=0, last=0):
    if OPT.get('noepi', 0): fill = [g for g in fill if any('buffer_store' in x for x in g)]
    if OPT.get('nost', 0): fill = [g for g in fill[:-1] if not g[0].startswith('buffer_store')] + fill[-1:]
    slots = [i for i, m in enumerate(main) if m.startswith('v_mfma')]
    slots = slots[skip:len(slots) - last]
    out, k, n = [], 0, len(fill)
    pos = {s: j for j, s in enumerate(slots)}
    for i, m in enumerate(main):
        out.append(m)
        if i in pos:
            tgt = (n * (pos[i] + 1)) // len(slots)
            while k < tgt:
                out.extend(fill[k]); k += 1
    for g in fill[k:]: out.extend(g)
    return out

def signal(c):
    return ["s_mov_b64 exec, 1", f"ds_add_u32 v27, v30 offset:{4*c}", "s_mov_b64 exec, -1"]

def lds_wait(a, c, n=4):
    L = a.newlabel("LW")
    a("s_mov_b32 s95, 0")
    a.label(L)
    a(f"ds_read_b32 v29, v27 offset:{4*c}")
    a("s_add_u32 s95, s95, 1")
    a("s_lshr_b32 s94, s95, 18")
    a("s_waitcnt lgkmcnt(0)")
    a("v_readfirstlane_b32 s97, v29")
    a("s_add_u32 s97, s97, s94")
    a(f"s_cmp_ge_u32 s97, {n}")
    a(f"s_cbranch_scc1 {L}_d")
    a(f"s_sleep {OPT.get('lsl', 2)}")
    a(f"s_branch {L}")
    a.label(f"{L}_d")

def gen_A(a, stubs):
    st = Stamper(a)
    XF, A0, A1 = 128, 64, 96
    RING = [48, 56, 240, 248]
    KB = 57
    st()
    a("s_setprio 2")
    a("v_lshrrev_b32 v24, 5, v1")
    a("v_lshlrev_b32 v21, 3, v1")
    a("v_lshlrev_b32 v22, 4, v1")
    a("v_mov_b32 v5, 0")
    a("s_cmp_ge_u32 s56, 28")
    a("s_cbranch_scc1 A_helper")
    a(f"s_lshl_b32 s86, s{I1}, 2")
    a(f"s_add_u32 s86, s86, s{WV}")
    a("""v_lshrrev_b32 v2, 3, v1
    v_and_b32 v3, 7, v1
    v_lshrrev_b32 v4, 1, v2
    v_xor_b32 v5, v3, v4
    v_mul_u32_u24 v6, 896, v2
    v_lshl_add_u32 v8, v5, 4, v6
    v_xor_b32 v5, 4, v5
    v_lshl_add_u32 v9, v5, 4, v6""")
    a(f"v_add_u32 v9, {8*896 - 1024}, v9")
    a(f"v_add_u32 v10, {16*896 - 2048}, v8")
    a(f"v_add_u32 v11, {16*896 - 2048}, v9")
    a("s_mul_i32 s87, s86, 28672")
    a(f"s_mul_i32 s88, s{WV}, 14336")
    def x_dma(n):
        o = [f"s_lshl_b32 s89, s{KB+n}, 7", "s_add_u32 s89, s89, s87", f"s_add_u32 m0, s88, {(n % 3)*4096}"]
        for rg in range(4):
            o.append(f"buffer_load_dwordx4 v{8+rg}, s[8:11], s89 offen offset:{rg*1024} lds ; @x{n}")
        return o
    for n in range(3): a.extend(x_dma(n))
    a("""v_and_b32 v2, 31, v1
    v_bfe_u32 v3, v2, 1, 3
    v_lshlrev_b32 v4, 7, v2
    v_add_u32 v4, s88, v4""")
    for q in range(4):
        a(f"v_add_u32 v5, {2*q}, v24")
        a("v_xor_b32 v5, v5, v3")
        a(f"v_lshl_add_u32 v{12+q}, v5, 4, v4")
    a("""v_and_b32 v2, 15, v1
    v_bfe_u32 v3, v1, 4, 1
    v_lshrrev_b32 v4, 2, v2
    v_bfe_u32 v5, v2, 1, 1
    v_lshl_add_u32 v5, v3, 1, v5
    v_bfe_u32 v6, v2, 3, 1
    v_lshlrev_b32 v6, 2, v6
    v_xor_b32 v5, v5, v6
    v_lshlrev_b32 v7, 10, v24
    v_lshl_add_u32 v7, v4, 7, v7
    v_and_b32 v6, 1, v2
    v_lshl_add_u32 v7, v6, 3, v7
    v_lshl_add_u32 v16, v5, 4, v7
    v_xor_b32 v5, 4, v5
    v_lshl_add_u32 v17, v5, 4, v7
    v_lshl_add_u32 v7, v24, 3, v4
    v_lshlrev_b32 v7, 6, v7
    v_lshl_add_u32 v7, v3, 5, v7
    v_and_b32 v6, 3, v2
    v_lshl_add_u32 v20, v6, 3, v7""")
    a(f"v_add_u32 v20, {UB[0]}, v20")
    a(f"v_add_u32 v18, {UB[1]}, v16")
    a(f"v_add_u32 v19, {UB[1]}, v17")
    a("""v_and_b32 v2, 31, v1
    v_mul_u32_u24 v23, 7168, v24
    v_lshl_add_u32 v23, v2, 4, v23""")
    a(f"v_lshlrev_b32 v28, 4, v24")
    a(f"v_add_u32 v28, {BIAST}, v28")
    a(f"""s_mul_i32 s64, s{JJ}, 192
    s_and_b32 s65, s{JJ}, 1
    s_lshl_b32 s66, s65, 6
    s_add_u32 s66, s64, s66
    s_xor_b32 s65, s65, 1
    s_lshl_b32 s65, s65, 7
    s_add_u32 s64, s64, s65""")
    a(f"s_mul_i32 s65, s86, {QK_T}")
    a("s_lshl_b32 s67, s64, 5"); a("s_add_u32 s67, s67, s65")
    a("s_lshl_b32 s68, s66, 5"); a("s_add_u32 s68, s68, s65")
    a(f"s_mul_i32 s65, s86, {V_T}")
    a(f"s_add_u32 s65, s65, {WS_V - 2*896*8}")
    a("s_lshl_b32 s69, s64, 3"); a("s_add_u32 s69, s69, s65")
    a("s_add_u32 s70, s69, 14336")
    a("s_lshl_b32 s71, s66, 3"); a("s_add_u32 s71, s71, s65")
    a("s_add_u32 s72, s71, 14336")
    a(f"s_mul_i32 s73, s86, {H_T}")
    a(f"s_lshl_b32 s65, s{JJ}, 13")
    a("s_add_u32 s73, s73, s65")
    a(f"s_add_u32 s73, s73, {WS_H}")
    a("s_add_u32 s74, s73, 4096")
    a(f"s_lshl_b32 s75, s{I1}, 4")
    a(f"s_add_u32 s75, s75, s{JJ}")
    a("s_lshl_b32 s75, s75, 7")
    a(f"s_add_u32 s75, s75, {FLG}")
    a("s_add_u32 s76, s75, 0x8000")
    a("s_add_u32 s77, s75, 0x10000")
    a("s_mov_b32 s78, 0x3f803f80")
    for q in range(4): a(f"v_mov_b32 v{32+q}, 0")
    a("s_barrier")
    st()
    for n in range(7):
        a(f"WAITV x{n}")
        for q in range(4):
            a(f"ds_read_b128 {vr(XF + 16*n + 4*q, 4)}, v{12+q} offset:{(n % 3)*4096}")
        if n >= 1:
            for d in range(16*(n-1), 16*n):
                a(f"v_dot2c_f32_bf16 v{32 + (d & 1)}, s78, v{XF+d}")
                a(f"v_dot2c_f32_bf16 v{34 + (d & 1)}, v{XF+d}, v{XF+d}")
        a("s_waitcnt lgkmcnt(0)")
        if n + 3 < 7: a.extend(x_dma(n + 3))
        if n == OPT.get('xiss', 3): a.extend(signal(XISS))
    a.extend(signal(FXS))
    st()
    for d in range(96, 112):
        a(f"v_dot2c_f32_bf16 v{32 + (d & 1)}, s78, v{XF+d}")
        a(f"v_dot2c_f32_bf16 v{34 + (d & 1)}, v{XF+d}, v{XF+d}")
    a("""v_add_f32 v32, v32, v33
    v_add_f32 v34, v34, v35
    v_mov_b32 v33, v32
    v_mov_b32 v35, v34
    v_permlane32_swap_b32 v32, v33
    v_permlane32_swap_b32 v34, v35
    v_add_f32 v32, v32, v33
    v_add_f32 v34, v34, v35""")
    a(f"v_mul_f32 v32, {f32(1.0/448)}, v32")
    a(f"v_mul_f32 v34, {f32(1.0/448)}, v34")
    a("v_fma_f32 v34, -v32, v32, v34")
    a("v_cvt_pk_bf16_f32 v33, v32, v32")
    a("v_and_b32 v33, 0xffff0000, v33")
    a("v_sub_f32 v7, 0, v33")
    a("v_max_f32 v34, 0, v34")
    a("v_cvt_pk_bf16_f32 v34, v34, v34")
    a("v_and_b32 v34, 0xffff0000, v34")
    a(f"v_add_f32 v34, {f32(1e-5)}, v34")
    a("v_cvt_pk_bf16_f32 v34, v34, v34")
    a("v_and_b32 v34, 0xffff0000, v34")
    a("v_sqrt_f32 v34, v34")
    a("v_cvt_pk_bf16_f32 v34, v34, v34")
    a("v_and_b32 v34, 0xffff0000, v34")
    a("v_rcp_f32 v25, v34")
    a("v_and_b32 v2, 31, v1")
    a(f"s_lshl_b32 s65, s{WV}, 7")
    a(f"s_add_u32 s65, s65, {RRT}")
    a("v_lshl_add_u32 v2, v2, 2, s65")
    a("ds_write_b32 v2, v25")
    a("v_lshl_add_u32 v3, v24, 4, s65")
    a(f"ds_read_b32 v6, v27 offset:{4*NONCE}")
    a("s_mov_b32 s78, 0x00003f80")
    a("s_mov_b32 s79, 0x3f800000")
    for d0 in range(0, 112, 4):
        for d in range(d0, d0 + 4):
            a(f"v_dot2_f32_bf16 v{64 + 2*(d & 7)}, v{XF+d}, s78, v7")
            a(f"v_dot2_f32_bf16 v{65 + 2*(d & 7)}, v{XF+d}, s79, v7")
        if d0 >= 4:
            for d in range(d0 - 4, d0):
                a(f"v_cvt_pk_bf16_f32 v{XF+d}, v{64 + 2*(d & 7)}, v{65 + 2*(d & 7)}")
        if d0 == 8:
            for q in range(4):
                a(f"ds_read_b128 {vr(32 + 4*q, 4)}, v3 offset:{32*q}")
    a(f"v_mul_f32 v4, {f32(QSCALE)}, v25")
    a("s_cmp_lt_u32 s64, 896")
    a("s_cselect_b64 vcc, -1, 0")
    a("v_cndmask_b32 v2, v25, v4, vcc")
    a("s_cmp_lt_u32 s66, 896")
    a("s_cselect_b64 vcc, -1, 0")
    a("v_cndmask_b32 v3, v25, v4, vcc")
    for d in range(108, 112):
        a(f"v_cvt_pk_bf16_f32 v{XF+d}, v{64 + 2*(d & 7)}, v{65 + 2*(d & 7)}")
    a(f"s_mov_b32 s78, {f32(GC2)}")
    a(f"v_mov_b32 v26, {f32(GC1)}")
    a(f"v_add_u32 v12, {UB[3]}, v16")
    a(f"v_add_u32 v13, {UB[3]}, v17")
    a("v_mov_b32 v5, 0")
    st()
    lds_wait(a, RD0)
    st()

    LA = 3
    units = [(0, 14), (1, 28), (2, 28), (3, 28)]
    seq = [(u, s) for u, n in units for s in range(n)]
    start = {0: 0, 1: 14, 2: 42, 3: 70}
    def reads(g):
        u, s = seq[g]; b = RING[g % 4]; o = []
        for T in range(2):
            if u == 0: ad, off, sec = 20, (2*s + T) * 1024, 256
            else: ad, off, sec = {1: 18, 2: 16, 3: 12}[u] + T, s * 2048, 512
            o.append(f"ds_read_b64_tr_b16 {vr(b + 4*T, 2)}, v{ad} offset:{off} ; @w{g}")
            o.append(f"ds_read_b64_tr_b16 {vr(b + 4*T + 2, 2)}, v{ad} offset:{off + sec} ; @w{g}")
        return o
    def check(c, tag):
        L = a.newlabel("AC")
        stubs.append((L, c))
        return [f"WAITL f{c}", "v_readfirstlane_b32 s97, v29", "s_cmp_lt_u32 s97, 4", f"s_cbranch_scc1 {L}", f"{L}_r:"]
    def unit(u, normal, tag):
        o = []
        n = units[u][1]; acc = A0 if u in (0, 2) else A1
        for s in range(n):
            g = start[u] + s
            if u < 3 and s == n - LA - 4: o.append(f"ds_read_b32 v29, v27 offset:{4*(RD1+u)} ; @f{RD1+u}")
            if u < 3 and s == n - LA: o.extend(check(RD1 + u, tag))
            if g + LA < len(seq): o.extend(reads(g + LA))
            o.append(f"WAITL w{g}")
            if s == n - 1: o.extend(signal([FU0, FU1, FXS2, FU3][u]))
            if u == 1 and s == 13: o.extend(signal(FU1A))
            for T in range(2):
                w = vr(RING[g % 4] + 4*T, 4)
                if u == 0: x, d, first = vr(XF + 4*(2*s + T), 4), vr(acc, 16), (s == 0 and T == 0)
                else: x, d, first = vr(XF + 4*s, 4), vr(acc + 16*T, 16), s == 0
                A, B = (x, w) if normal else (w, x)
                o.append(f"{MF} {d}, {A}, {B}, {'0' if first else d}")
        return o
    def epi_qk(b, T, sc, soff):
        o = []
        for q in range(4):
            for r in range(4*q, 4*q+4): o.append([f"v_mul_f32 v{b+r}, v{b+r}, v{sc}"])
            for r in range(2): o.append([f"v_cvt_pk_bf16_f32 v{b+4*q+r}, v{b+4*q+2*r}, v{b+4*q+2*r+1}"])
            o.append([f"buffer_store_dwordx2 {vr(b+4*q, 2)}, v21, s[24:27], s{soff} offen offset:{T*2048 + q*512} sc1 ; @qkv"])
        return o
    def epi_v(b, T, soff):
        o = []
        for f in range(2):
            for r in range(8*f, 8*f+8): o.append([f"v_mul_f32 v{b+r}, v{b+r}, v{32+r}"])
            for r in range(4): o.append([f"v_cvt_pk_bf16_f32 v{b+8*f+r}, v{b+8*f+2*r}, v{b+8*f+2*r+1}"])
            o.append([f"buffer_store_dwordx4 {vr(b+8*f, 4)}, v23, s[24:27], s{soff+f} offen offset:{T*512} sc1 ; @qkv"])
        return o
    def epi_h(b, T, tl, soff, packed, tag):
        o = []
        for f in range(2):
            R = range(8*f, 8*f+8); t = lambda r: 32 + r
            o.append([f"ds_read_b128 {vr(32+8*f+4*q, 4)}, v28 offset:{tl*128 + (2*f+q)*32} ; @b{tl}{f}" for q in range(2)])
        for f in range(2):
            R = range(8*f, 8*f+8); t = lambda r: 32 + r
            o.append([f"WAITL b{tl}{f}"])
            if packed:
                R2 = range(8*f, 8*f+8, 2); p2 = lambda x: vr(x, 2)
                for r in R2: o.append([f"v_pk_fma_f32 {p2(b+r)}, {p2(b+r)}, v[8:9], {p2(t(r))}"])
                for r in R2: o.append([f"v_pk_mul_f32 {p2(t(r))}, {p2(b+r)}, {p2(b+r)}"])
                for r in R2: o.append([f"v_pk_fma_f32 {p2(t(r))}, {p2(t(r))}, v[10:11], v[12:13]"])
                for r in R2: o.append([f"v_pk_mul_f32 {p2(t(r))}, {p2(t(r))}, {p2(b+r)}"])
                for r in R: o.append([f"v_exp_f32 v{t(r)}, v{t(r)}"])
                for r in R2: o.append([f"v_pk_add_f32 {p2(t(r))}, {p2(t(r))}, v[14:15]"])
                for r in R: o.append([f"v_rcp_f32 v{t(r)}, v{t(r)}"])
                for r in R2: o.append([f"v_pk_mul_f32 {p2(b+r)}, {p2(b+r)}, {p2(t(r))}"])
            else:
                for r in R: o.append([f"v_fma_f32 v{b+r}, v{b+r}, v25, v{t(r)}"])
                for r in R: o.append([f"v_mul_f32 v{t(r)}, v{b+r}, v{b+r}"])
                for r in R: o.append([f"v_fma_f32 v{t(r)}, v{t(r)}, s78, v26"])
                for r in R: o.append([f"v_mul_f32 v{t(r)}, v{t(r)}, v{b+r}"])
                for r in R: o.append([f"v_exp_f32 v{t(r)}, v{t(r)}"])
                for r in R: o.append([f"v_add_f32 v{t(r)}, 1.0, v{t(r)}"])
                for r in R: o.append([f"v_rcp_f32 v{t(r)}, v{t(r)}"])
                for r in R: o.append([f"v_mul_f32 v{b+r}, v{b+r}, v{t(r)}"])
            for r in range(4): o.append([f"v_cvt_pk_bf16_f32 v{b+8*f+r}, v{b+8*f+2*r}, v{b+8*f+2*r+1}"])
            o.append([f"buffer_store_dwordx4 {vr(b+8*f, 4)}, v22, s[24:27], s{soff} offen offset:{(2*T+f)*1024} sc1 ; @{tag}"])
        return o
    def flag(kind, tag):
        L = a.newlabel("FG")
        o = [f"WAITV {tag}", "s_mov_b64 exec, 1", f"ds_add_rtn_u32 v4, v27, v30 offset:{4*(AG0+kind)} ; @ag{kind}", "s_mov_b64 exec, -1"]
        st_ = ["s_mov_b64 exec, 1", f"buffer_store_dword v6, v5, s[24:27], s{75 + kind if kind < 3 else 68} offen sc1 ; @nocount"]
        p = [f"WAITL ag{kind}", "v_readfirstlane_b32 s97, v4", "s_cmp_lg_u32 s97, 3", f"s_cbranch_scc1 {L}"] + st_ + ["s_mov_b64 exec, -1", f"{L}:"]
        return o, p
    def path(sv, pv, tag):
        for g in range(LA): a.extend(reads(g))
        a.extend(unit(0, sv, tag))
        st(5)
        e0 = epi_v(A0, 0, 69) if sv else epi_qk(A0, 0, 2, 67)
        a.extend(merge(unit(1, pv, tag), e0, skip=4, last=30))
        st()
        e1 = (epi_v(A1, 0, 71) + epi_v(A1+16, 1, 71)) if pv else (epi_qk(A1, 0, 3, 68) + epi_qk(A1+16, 1, 3, 68))
        f0 = flag(0, "qkv")
        u2 = merge(unit(2, False, tag), e1, skip=3, last=36)
        u2 = merge(u2, [f0[0]], skip=OPT.get('f0at', 40), last=55 - OPT.get('f0at', 40))
        u2 = merge(u2, [f0[1]], skip=OPT.get('f0at', 40) + 4, last=51 - OPT.get('f0at', 40))
        a.extend(u2)
        st()
        st()
    a.save("p")
    a(f"s_cmp_ge_u32 s{JJ}, 10")
    a("s_cbranch_scc1 A_pc")
    a(f"s_cmp_eq_u32 s{JJ}, 9")
    a("s_cbranch_scc1 A_pb")
    path(False, False, "a")
    a("s_branch A_join")
    a.label("A_pb"); a.restore("p")
    path(False, True, "b")
    a("s_branch A_join")
    a.label("A_pc"); a.restore("p")
    path(True, True, "c")
    a.label("A_join")
    a.extend(merge(unit(3, False, "j"), epi_h(A0, 0, 0, 73, False, "h1") + epi_h(A0+16, 1, 1, 73, False, "h1"), skip=3))
    st()
    a("v_mov_b32 v8, v25"); a("v_mov_b32 v9, v25")
    a("v_mov_b32 v10, s78"); a("v_mov_b32 v11, s78")
    a("v_mov_b32 v12, v26"); a("v_mov_b32 v13, v26")
    a("v_mov_b32 v14, 1.0"); a("v_mov_b32 v15, 1.0")
    for g in epi_h(A1, 0, 2, 74, True, "h2"): a.extend(g)
    e3 = epi_h(A1+16, 1, 3, 74, True, "h2")
    f1 = flag(1, "h1")
    hp = len(e3) // 2 + 1
    for g in e3[:hp]: a.extend(g)
    st()
    a.extend(f1[0])
    st()
    for g in e3[hp:]: a.extend(g)
    a.extend(f1[1])
    st()
    a("s_branch A_attn")
    a.label("A_helper")
    a("s_barrier")
    a(f"ds_read_b32 v6, v27 offset:{4*NONCE}")
    a.label("A_attn")
    SR, QF, OA, PB = 96, 40, 48, 64
    KV = [80, 88, 240, 248]
    a("v_and_b32 v12, 31, v1")
    a(f"v_mov_b32 v2, {f32(NEG)}")
    a("v_lshlrev_b32 v3, 2, v24")
    a("v_sub_u32 v3, v12, v3")
    for r in range(16):
        key = 8 * (r >> 2) + (r & 3)
        a(f"v_cmp_le_i32 vcc, {key}, v3")
        a(f"v_cndmask_b32 v{SR+128+r}, v2, 0, vcc")
        a(f"v_cndmask_b32 v{SR+r}, 0, v2, vcc")
    a(f"s_lshl_b32 s64, s{WV}, 11")
    a("v_add_u32 v14, s64, v21")
    a("v_add_u32 v15, s64, v22")
    a(f"v_add_u32 v15, {LV}, v15")
    a("v_mov_b32 v32, 0x3f803f80")
    for r in (33, 34, 35, 37, 38, 39): a(f"v_mov_b32 v{r}, 0")
    a(f"s_lshl_b32 s66, s{I2}, 2")
    a(f"s_add_u32 s66, s66, s{WV}")
    a(f"s_mul_i32 s67, s66, {O_T}")
    a(f"s_mul_i32 s68, s{HEAD}, 1792")
    a("s_add_u32 s67, s67, s68")
    a(f"s_add_u32 s67, s67, {WS_O}")
    a(f"s_lshl_b32 s68, s{I2}, 4")
    a(f"s_add_u32 s68, s68, s{HEAD}")
    a("s_lshl_b32 s68, s68, 7")
    a(f"s_add_u32 s68, s68, {FLG + 0x18000}")
    a("s_cmp_ge_u32 s56, 28")
    a("s_cbranch_scc1 A_nof")
    f2 = flag(2, "h2")
    a.extend(f2[0]); a.extend(f2[1])
    a.label("A_nof")
    lds_wait(a, RD4)
    st()
    for f in range(2):
        a(f"ds_read2st64_b64 {vr(QF + 4*f, 4)}, v14 offset0:{LQ//512 + 2*f} offset1:{LQ//512 + 2*f + 1} ; @q")
    def kread(s): return [f"ds_read2st64_b64 {vr(KV[s % 4] + 4*f, 4)}, v14 offset0:{4*s + 2*f} offset1:{4*s + 2*f + 1} ; @k{s}" for f in range(2)]
    def vread(s): return [f"ds_read_b128 {vr(KV[(s+1) % 4] + 4*f, 4)}, v15 offset:{2048*s + 1024*f} ; @v{s}" for f in range(2)]
    def maxes(s):
        b = SR + 16*s; o = []
        for r in range(0, 16, 2):
            acc = 8 + ((r >> 1) & 3)
            if s == 0 and r < 8: o.append(f"v_max_f32 v{acc}, v{b+r}, v{b+r+1}")
            else: o.append(f"v_max3_f32 v{acc}, v{b+r}, v{b+r+1}, v{acc}")
        return o
    for s in range(3): a.extend(kread(s))
    for s in range(9):
        if s + 3 < 9: a.extend(kread(s + 3))
        else: a.extend(vread(s + 3 - 9))
        a(f"WAITL k{s}")
        d = vr(SR + 16*s, 16)
        m = maxes(s - 2) if s >= 2 else []
        a(f"{MF} {d}, {vr(KV[s % 4], 4)}, {vr(QF, 4)}, {d if s in (0, 8) else '0'}")
        a.extend(m[:4])
        a(f"{MF} {d}, {vr(KV[s % 4] + 4, 4)}, {vr(QF+4, 4)}, {d}")
        a.extend(m[4:])
    a.extend(maxes(7))
    a.extend(maxes(8))
    a("""v_max3_f32 v2, v8, v9, v10
    v_max_f32 v2, v2, v11
    v_mov_b32 v3, v2
    v_permlane32_swap_b32 v2, v3
    v_max_f32 v2, v2, v3
    v_sub_f32 v2, 0, v2
    v_cvt_pk_bf16_f32 v3, v2, v2
    v_and_b32 v3, 0xffff0000, v3
    v_sub_f32 v3, v2, v3
    v_cvt_pk_bf16_f32 v36, v2, v3
    v_cmp_eq_u32 vcc, 0, v24
    v_cndmask_b32 v36, 0, v36, vcc""")
    st()
    def shift(s): return f"{MF} {vr(SR+16*s, 16)}, v[32:35], v[36:39], {vr(SR+16*s, 16)}"
    a(shift(0)); a(shift(1))
    def pv(s):
        pb = PB + 8*(s & 1)
        return [f"{MF} {vr(OA, 16)}, {vr(KV[(s+1) % 4] + 4*f, 4)}, {vr(pb + 4*f, 4)}, {'0' if (s == 0 and f == 0) else vr(OA, 16)}" for f in range(2)]
    for s in range(9):
        b = SR + 16*s; pb = PB + 8*(s & 1)
        mm = []
        if s + 2 < 9: mm.append(shift(s + 2))
        if s >= 1: mm = [f"WAITL v{s-1}"] + pv(s - 1)[:1] + mm + pv(s - 1)[1:] + (vread(s + 2) if s + 2 < 9 else [])
        ex = [f"v_exp_f32 v{b+r}, v{b+r}" for r in range(16)]
        cv = [f"v_cvt_pk_bf16_f32 v{pb+r}, v{b+2*r}, v{b+2*r+1}" for r in range(8)]
        body = ex[:4]
        k = 0
        chunks = [ex[4:8], ex[8:12], ex[12:16] + cv]
        for x in mm:
            body.append(x)
            if x.startswith(MF) and k < 3:
                body.extend(chunks[k]); k += 1
        for c in chunks[k:]: body.extend(c)
        a.extend(body)
    a("WAITL v8")
    a.extend(pv(8))
    st()
    a(f"v_mov_b32 v2, v{OA+12}")
    a(f"v_mov_b32 v3, v{OA+12}")
    a("v_permlane32_swap_b32 v2, v3")
    a("v_rcp_f32 v3, v3")
    for r in range(16): a(f"v_mul_f32 v{OA+r}, v{OA+r}, v3")
    for r in range(8): a(f"v_cvt_pk_bf16_f32 v{PB+r}, v{OA+2*r}, v{OA+2*r+1}")
    for q in range(4):
        if q == 3: a("s_mov_b32 exec_hi, 0")
        a(f"buffer_store_dwordx2 {vr(PB+2*q, 2)}, v21, s[24:27], s67 offen offset:{q*512} sc1 ; @o")
    f3 = flag(3, "o")
    a.extend(f3[0]); a.extend(f3[1])
    st()
    st.dump()
    a("s_endpgm")
    for L, c in stubs:
        a.label(L)
        lds_wait(a, c)
        a(f"s_branch {L}_r")

def gpoll(a, va, sg):
    L = a.newlabel("GP")
    a("s_mov_b32 s96, 0")
    a.label(L)
    a(f"buffer_load_dword v5, v{va}, s[24:27], s{sg} offen sc1")
    a("s_waitcnt vmcnt(0)")
    a.extend(fcheck(1, 5))
    a(f"s_cbranch_scc1 {L}_d")
    a(f"s_sleep {OPT.get('gsl', 4)}")
    a("s_add_u32 s96, s96, 1")
    a(f"s_cmp_lt_u32 s96, {SPIN}")
    a(f"s_cbranch_scc1 {L}")
    a.label(f"{L}_d")

def fcheck(nreg, base):
    o = []
    if nreg == 4:
        for r in range(4): o.append(f"v_xor_b32 v{base+r}, s{NON}, v{base+r}")
        o.append(f"v_or3_b32 v{base}, v{base}, v{base+1}, v{base+2}")
        o.append(f"v_or_b32 v{base}, v{base}, v{base+3}")
        o.append(f"v_cmp_ne_u32 vcc, 0, v{base}")
    else:
        o.append(f"v_cmp_ne_u32 vcc, s{NON}, v{base}")
    o.append("s_nop 1")
    o.append("s_cmp_eq_u64 vcc, 0")
    return o

def gen_B(a):
    st = Stamper(a)
    KB = 57
    ACC, AR, HR, WR = 32, 96, 112, 152
    NH, NREG, NS = 5, 13, 35
    st()
    a(f"s_cmp_lg_u32 s{WV}, 0")
    a("s_cbranch_scc1 B_noinit")
    a(f"s_add_u32 s64, s84, {WS_FL}")
    a("s_addc_u32 s65, s85, 0")
    a("s_load_dword s66, s[64:65], 0")
    a("v_mov_b32 v2, 0")
    a("v_lshl_add_u32 v3, v1, 2, v27")
    a("ds_write_b32 v3, v2")
    a("s_waitcnt lgkmcnt(0)")
    a("s_mul_i32 s66, s66, 0x9E3779B1")
    a("s_add_u32 s66, s66, 0x7F4A7C15")
    a("v_mov_b32 v2, s66")
    a(f"ds_write_b32 v27, v2 offset:{4*NONCE}")
    a("s_waitcnt lgkmcnt(0)")
    a.label("B_noinit")
    if OPT.get('cpf', 1):
        a(f"s_cmp_lg_u32 s{WV}, 1")
        a("s_cbranch_scc1 B_nopf")
        a("s_getpc_b64 s[64:65]")
        a.label("B_pc")
        a(f"s_sub_u32 s64, s64, B_pc-{NAME}")
        a("s_subb_u32 s65, s65, 0")
        a("s_and_b32 s66, s56, 7")
        a("s_mul_i32 s66, s66, 5120")
        a("v_lshl_add_u32 v2, v1, 7, s66")
        a(f"v_mov_b32 v4, K_end-{NAME}-4")
        a("v_min_u32 v3, v2, v4")
        a("s_mov_b32 exec_hi, 0xff")
        a("global_load_dword v240, v3, s[64:65] ; @nocount")
        a("s_mov_b64 exec, -1")
        a.label("B_nopf")
    a("v_lshrrev_b32 v24, 5, v1")
    a("v_lshlrev_b32 v21, 3, v1")
    a("v_lshlrev_b32 v22, 4, v1")
    a("s_barrier")
    a(f"ds_read_b32 v2, v27 offset:{4*NONCE}")
    a("s_waitcnt lgkmcnt(0)")
    a(f"v_readfirstlane_b32 s{NON}, v2")
    a("s_cmp_ge_u32 s56, 28")
    a("s_cbranch_scc1 B_helper")
    a("""v_lshrrev_b32 v2, 3, v1
    v_and_b32 v3, 7, v1
    v_bfe_u32 v4, v2, 1, 1
    v_lshlrev_b32 v4, 2, v4
    v_xor_b32 v5, v3, v4
    v_mul_u32_u24 v6, 2688, v2
    v_lshl_add_u32 v8, v5, 4, v6
    v_mul_u32_u24 v6, 3584, v2
    v_lshl_add_u32 v10, v5, 4, v6
    v_mul_u32_u24 v6, 896, v2
    v_lshl_add_u32 v12, v5, 4, v6""")
    a(f"v_add_u32 v9, {8*2688 - 1024}, v8")
    a(f"v_add_u32 v11, {8*3584 - 1024}, v10")
    a(f"v_add_u32 v13, {8*896 - 1024}, v12")
    a("""v_lshrrev_b32 v2, 2, v1
    v_and_b32 v3, 3, v1
    v_mul_u32_u24 v6, 2688, v2
    v_lshl_add_u32 v14, v3, 4, v6""")
    a(f"""s_mul_i32 s64, s{JJ}, 192
    s_and_b32 s65, s{JJ}, 1
    s_lshl_b32 s66, s65, 6
    s_add_u32 s66, s64, s66
    s_xor_b32 s65, s65, 1
    s_lshl_b32 s65, s65, 7
    s_add_u32 s64, s64, s65""")
    a(f"s_mul_i32 s65, s{WV}, {16*2688}")
    a("s_add_u32 s64, s64, s65")
    a("s_add_u32 s66, s66, s65")
    a(f"s_mul_i32 s67, s{WV}, {16*3584}")
    a(f"s_lshl_b32 s65, s{JJ}, 8")
    a("s_add_u32 s67, s67, s65")
    a("s_add_u32 s68, s67, 128")
    a(f"s_lshl_b32 s69, s{WV}, 10")
    a(f"s_lshl_b32 s70, s{WV}, 11")
    a("v_lshlrev_b32 v15, 2, v1")
    a("buffer_load_dword v16, v15, s[20:23], s65 offen ; @bias")
    def single_dma(n):
        return [f"s_mul_i32 s65, s{KB+n}, {64*2688}", "s_add_u32 s65, s65, s64", f"s_add_u32 m0, s69, {UB[0] + n*4096}",
                "buffer_load_dwordx4 v14, s[12:15], s65 offen lds ; @u0"]
    def pair_dma(n, u):
        rs, sr, vo, sb, base = [None, (2688, 12, 8, 66, UB[1]), (3584, 16, 10, 67, UB[2]), (3584, 16, 10, 68, UB[3])][u]
        o = [f"s_mul_i32 s65, s{KB+n}, {64*rs}", f"s_add_u32 s65, s65, s{sb}", f"s_add_u32 m0, s70, {base + n*8192}"]
        for p in range(2):
            o.append(f"buffer_load_dwordx4 v{vo+p}, s[{sr}:{sr+3}], s65 offen offset:{p*1024} lds ; @u{u}")
        return o
    a("""v_and_b32 v2, 15, v1
    v_bfe_u32 v3, v1, 4, 1
    v_lshrrev_b32 v4, 2, v2
    v_bfe_u32 v5, v2, 1, 1
    v_lshl_add_u32 v5, v3, 1, v5
    v_bfe_u32 v6, v2, 3, 1
    v_lshlrev_b32 v6, 2, v6
    v_xor_b32 v5, v5, v6
    v_lshl_add_u32 v4, v24, 2, v4
    v_lshlrev_b32 v4, 7, v4
    v_and_b32 v6, 1, v2
    v_lshl_add_u32 v4, v6, 3, v4
    v_lshl_add_u32 v2, v5, 4, v4
    v_xor_b32 v5, 4, v5
    v_lshl_add_u32 v3, v5, 4, v4""")
    a(f"s_mul_i32 s71, s{WV}, 7168");  a(f"s_add_u32 s71, s71, {P4}")
    a(f"s_lshl_b32 s72, s{WV}, 12");   a(f"s_add_u32 s72, s72, {MSLOT}")
    a(f"s_mul_i32 s73, s{WV}, 14336"); a(f"s_add_u32 s73, s73, {P2}")
    for k, sg in enumerate((71, 72, 73)):
        a(f"v_add_u32 v{17+2*k if k < 2 else 25}, s{sg}, v2")
        a(f"v_add_u32 v{18+2*k if k < 2 else 26}, s{sg}, v3")
    SL = [(72, m*2048, 19) for m in range(2)] + [(71, e*2048, 17) for e in range(3)] + [(73, l*2048, 25) for l in range(7)]
    NE = OPT.get('ne', 4)
    smap = {}
    for s_ in range(NS):
        if s_ < NE + 2: smap[s_] = s_ % 2
        elif s_ < NE + 5: smap[s_] = 2 + (s_ - NE - 2)
        elif s_ < NREG + 5: smap[s_] = smap[s_ - 5]
        elif s_ < NREG + 12: smap[s_] = 5 + (s_ - NREG - 5)
        else: smap[s_] = smap[s_ - 12]
    def slot(s): return SL[smap[s]]
    a(f"s_lshl_b32 s74, s{CB}, 7")
    a(f"s_mul_i32 s75, s{WV}, {16*896}")
    a("s_add_u32 s75, s75, s74")
    a(f"s_lshl_b32 s84, s{CB}, 1" if OPT.get('hrot', 1) else "s_mov_b32 s84, 0")
    a(f"s_mul_i32 s65, s84, {128*896}")
    a("s_add_u32 s75, s75, s65")
    a(f"s_sub_u32 s85, s75, {14*128*896}")
    a(f"s_mul_i32 s76, s{WV}, {7*16*896}")
    a("s_add_u32 s76, s76, s74")
    def w_dma(s):
        sg, c, _ = slot(s)
        if s < 28: sr, sb, off = 28, 75, ((s % 14) * 8 + (4 if s >= 14 else 0)) * 16 * 896
        else: sr, sb, off = 32, 76, (s - 28) * 16 * 896
        if s < 28: o = [f"s_cmp_ge_u32 s84, {14 - s % 14}", "s_cselect_b32 s65, s85, s75", f"s_add_u32 s65, s65, {off}", f"s_add_u32 m0, s{sg}, {c}"]
        else: o = [f"s_add_u32 s65, s{sb}, {off}", f"s_add_u32 m0, s{sg}, {c}"]
        for p in range(2):
            o.append(f"buffer_load_dwordx4 v{12+p}, s[{sr}:{sr+3}], s65 offen offset:{p*1024} lds ; @d{s}")
        return o
    def wreg(s): return WR + 8*s if s < NREG else AR + 8*(s & 1)
    def w_read(s):
        _, c, ad = slot(s); b = wreg(s); o = []
        for ct in range(2):
            o.append(f"ds_read_b64_tr_b16 {vr(b+4*ct, 2)}, v{ad+ct} offset:{c} ; @r{s}")
            o.append(f"ds_read_b64_tr_b16 {vr(b+4*ct+2, 2)}, v{ad+ct} offset:{c + 1024} ; @r{s}")
        return o
    st()
    if OPT.get('xiss', 3) < 7: lds_wait(a, XISS)
    for n in range(7): a.extend(single_dma(n))
    for n in range(3): a.extend(pair_dma(n, 1))
    a("WAITV u0")
    a.extend(signal(RD0))
    for n in range(3, 7): a.extend(pair_dma(n, 1))
    a("v_lshlrev_b32 v2, 16, v16")
    a("v_and_b32 v3, 0xffff0000, v16")
    a(f"v_add_u32 v4, {BIAST}, v21")
    a("ds_write_b64 v4, v[2:3]")
    st()
    lds_wait(a, FXS)
    for n in range(3): a.extend(pair_dma(n, 2))
    a("WAITV u1")
    a.extend(signal(RD1))
    for n in range(3, 7): a.extend(pair_dma(n, 2))
    a.extend(w_dma(0)); a.extend(w_dma(1))
    if OPT.get('touch', 0):
        a(f"s_and_b32 s65, s{RB}, 3")
        a("s_lshl_b32 s65, s65, 2")
        a(f"s_add_u32 s65, s65, s{WV}")
        a(f"s_mul_i32 s86, s65, {112*896}")
        a("s_add_u32 s86, s86, s74")
        a(f"s_add_u32 s87, s86, {56*896}")
        a(f"s_mul_i32 s88, s65, {28*896}")
        a("s_add_u32 s88, s88, s74")
        a("v_mul_u32_u24 v2, 896, v1")
        a("s_mov_b32 exec_hi, 0xffffff")
        a(f"buffer_load_dword v{HR}, v2, s[28:31], s86 offen")
        a(f"buffer_load_dword v{HR+1}, v2, s[28:31], s87 offen")
        a("s_mov_b64 exec, 0xfffffff")
        a(f"buffer_load_dword v{HR+2}, v2, s[32:35], s88 offen")
        a("s_mov_b64 exec, -1")
    a("WAITV u2")
    a.extend(signal(RD2))
    st()
    def regstep(s, nxt):
        a(f"WAITV d{s}")
        a.extend(w_read(s))
        a("s_waitcnt lgkmcnt(0)")
        a.extend(w_dma(nxt))
    regstep(0, 2); regstep(1, 3)
    lds_wait(a, FU0)
    for n in range(3): a.extend(pair_dma(n, 3))
    for s_ in range(2, NE): regstep(s_, s_ + 2)
    lds_wait(a, FU1A)
    for n in range(3, 7): a.extend(pair_dma(n, 3))
    a("WAITV u3")
    a.extend(signal(RD3))
    lds_wait(a, FU1)
    for s_ in range(NE + 2, NE + 5): a.extend(w_dma(s_))
    for s_ in range(NE, NREG): regstep(s_, s_ + 5)
    st()
    lds_wait(a, FXS2)
    a("s_branch B_kv")
    a.label("B_helper")
    a("v_mov_b32 v12, 0"); a("v_mov_b32 v13, 0")
    a("s_sub_u32 s64, s56, 28")
    a("s_lshl_b32 s64, s64, 3")
    a("s_and_b32 s65, s2, 7")
    a("s_add_u32 s64, s64, s65")
    a("s_lshl_b32 s64, s64, 2")
    a(f"s_add_u32 s64, s64, s{WV}")
    a("v_lshlrev_b32 v2, 7, v1")
    a("s_lshl_b32 s64, s64, 13")
    a("s_add_u32 s65, s64, 0x100000")
    a("buffer_load_dword v242, v2, s[16:19], s64 offen")
    a("buffer_load_dword v243, v2, s[16:19], s65 offen")
    a("buffer_load_dword v244, v2, s[28:31], s64 offen")
    a("buffer_load_dword v245, v2, s[28:31], s65 offen")
    a("buffer_load_dword v246, v2, s[32:35], s64 offen")
    a.label("B_kv")
    a(f"s_cmp_lg_u32 s{WV}, 0")
    a("s_cbranch_scc1 B_noarr")
    a("s_mov_b64 exec, 1")
    a("v_mov_b32 v7, 1")
    a("v_mov_b32 v3, 0")
    a("buffer_atomic_add v7, v3, s[44:47], 0 offen sc0")
    a("s_mov_b64 exec, -1")
    a.label("B_noarr")
    a("v_and_b32 v2, 31, v1")
    a("v_mul_u32_u24 v23, 7168, v24")
    a("v_lshl_add_u32 v23, v2, 4, v23")
    a(f"s_lshl_b32 s77, s{I2}, 2")
    a("v_lshrrev_b32 v3, 3, v1")
    a(f"s_min_u32 s65, s{I2}, 2")
    a("v_min_u32 v3, s65, v3")
    a(f"v_sub_u32 v3, s{I2}, v3")
    a("v_and_b32 v4, 7, v1")
    a("v_min_u32 v4, 5, v4")
    a("v_lshrrev_b32 v5, 1, v4")
    a("v_mul_u32_u24 v5, 448, v5")
    a("v_and_b32 v4, 1, v4")
    a("v_mul_u32_u24 v4, 27, v4")
    a(f"s_mul_i32 s65, s{HEAD}, 28")
    a("v_add3_u32 v4, v4, v5, s65")
    a("v_mul_u32_u24 v4, 683, v4")
    a("v_lshrrev_b32 v4, 16, v4")
    a("v_lshl_add_u32 v4, v3, 4, v4")
    a("v_lshlrev_b32 v4, 7, v4")
    a(f"s_mov_b32 s78, {FLG}")
    a("v_cmp_eq_u32 vcc, 28, v2")
    a("v_mov_b32 v3, 0x3f803f80")
    a("v_cndmask_b32 v3, 0, v3, vcc")
    a(f"s_mul_i32 s79, s{WV}, 3")
    a("s_add_u32 s79, s79, s77")
    for k in range(3):
        b = ACC + 16*k
        a(f"s_add_u32 s65, s79, {k}")
        a("s_cmp_lt_u32 s65, 8")
        a("s_cselect_b32 s65, 0xf149, 0")
        a(f"v_mov_b32 v{b+4}, s65"); a(f"v_mov_b32 v{b+5}, 0"); a(f"v_mov_b32 v{b+6}, s65"); a(f"v_mov_b32 v{b+7}, 0")
        for r in range(8, 16): a(f"v_mov_b32 v{b+r}, v3")
    QB = ACC + 48
    a(f"v_mov_b32 v{QB+4}, 0x3f80"); a(f"v_mov_b32 v{QB+5}, 0"); a(f"v_mov_b32 v{QB+6}, 0x3f80"); a(f"v_mov_b32 v{QB+7}, 0")
    a(f"s_mul_i32 s80, s{HEAD}, 1792")
    a(f"s_mul_i32 s81, s{HEAD}, 448")
    a(f"s_add_u32 s81, s81, {WS_V}")
    a("s_mov_b32 s86, -1"); a("s_mov_b32 s87, 0xffff")
    a("s_mov_b32 s88, 0x0fffffff"); a("s_mov_b32 s89, 0x0fffffff")
    st()
    gpoll(a, 4, 78)
    if STAMPS: a("v_writelane_b32 v31, s96, 29")
    st()
    a(f"s_add_u32 s65, s77, s{WV}")
    a(f"s_mul_i32 s65, s65, {QK_T}")
    a("s_add_u32 s65, s65, s80")
    a(f"buffer_load_dwordx4 {vr(QB, 4)}, v22, s[24:27], s65 offen sc1")
    a("s_mov_b64 exec, s[86:87]")
    a(f"buffer_load_dwordx4 {vr(QB+4, 4)}, v22, s[24:27], s65 offen offset:1024 sc1 ; @q")
    a("s_mov_b64 exec, -1")
    for k in range(3):
        b = ACC + 16*k
        a(f"s_add_u32 s90, s79, {k}")
        a("s_sub_u32 s91, s90, 8")
        a(f"s_mul_i32 s92, s91, {QK_T}")
        a("s_add_u32 s92, s92, s80")
        a(f"s_add_u32 s92, s92, {112*256}")
        a(f"s_mul_i32 s93, s91, {V_T}")
        a("s_add_u32 s93, s93, s81")
        a("s_cmp_lt_u32 s90, 8")
        a("s_cselect_b32 s92, 0x7fff0000, s92")
        a("s_cselect_b32 s93, 0x7fff0000, s93")
        a("s_add_u32 s94, s93, 14336")
        a(f"buffer_load_dwordx4 {vr(b, 4)}, v22, s[24:27], s92 offen sc1")
        a("s_mov_b64 exec, s[86:87]")
        a(f"buffer_load_dwordx4 {vr(b+4, 4)}, v22, s[24:27], s92 offen offset:1024 sc1")
        a("s_mov_b64 exec, s[88:89]")
        a(f"buffer_load_dwordx4 {vr(b+8, 4)}, v23, s[24:27], s93 offen sc1")
        a(f"buffer_load_dwordx4 {vr(b+12, 4)}, v23, s[24:27], s94 offen sc1 ; @kv{k}")
        a("s_mov_b64 exec, -1")
    a(f"s_mul_i32 s65, s{WV}, 6144")
    a("v_add_u32 v2, s65, v22")
    a(f"s_lshl_b32 s65, s{WV}, 11")
    a("v_add_u32 v3, s65, v22")
    a("WAITV q")
    a(f"ds_write_b128 v3, {vr(QB, 4)} offset:{LQ}")
    a(f"ds_write_b128 v3, {vr(QB+4, 4)} offset:{LQ + 1024}")
    for k in range(3):
        b = ACC + 16*k
        a(f"WAITV kv{k}")
        a(f"ds_write_b128 v2, {vr(b, 4)} offset:{LK + k*2048}")
        a(f"ds_write_b128 v2, {vr(b+4, 4)} offset:{LK + k*2048 + 1024}")
        a(f"ds_write_b128 v2, {vr(b+8, 4)} offset:{LV + k*2048}")
        a(f"ds_write_b128 v2, {vr(b+12, 4)} offset:{LV + k*2048 + 1024}")
    a.extend(signal(RD4))
    a(f"s_cmp_lg_u32 s{WV}, 0")
    a("s_cbranch_scc1 B_noep")
    a("v_readfirstlane_b32 s65, v7")
    a("s_cmp_lg_u32 s65, 255")
    a("s_cbranch_scc1 B_noep")
    a(f"v_mov_b32 v2, s{NON}")
    a("v_mov_b32 v3, 0")
    a(f"s_mov_b32 s65, {WS_FL}")
    a("s_mov_b64 exec, 1")
    a("buffer_store_dword v2, v3, s[24:27], s65 offen sc1")
    a("s_mov_b64 exec, -1")
    a.label("B_noep")
    st()
    a("s_cmp_ge_u32 s56, 28")
    a("s_cbranch_scc1 B_end")
    a(f"s_mul_i32 s77, s{RB}, {2*H_T}")
    a(f"s_lshl_b32 s65, s{WV}, 10")
    a("s_add_u32 s77, s77, s65")
    a(f"s_add_u32 s77, s77, {WS_H}")
    a("s_lshl_b32 s65, s84, 13")
    a("s_add_u32 s77, s77, s65")
    a(f"s_sub_u32 s86, s77, {14*8192}")
    a(f"v_add_u32 v23, {H_T}, v22")
    a(f"s_mul_i32 s78, s{RB}, {2*O_T}")
    a(f"s_mul_i32 s65, s{WV}, 7168")
    a("s_add_u32 s78, s78, s65")
    a(f"s_add_u32 s78, s78, {WS_O}")
    a(f"v_add_u32 v16, {O_T}, v21")
    a("v_and_b32 v6, 15, v1")
    a("v_min_u32 v4, 13, v6")
    a("v_lshlrev_b32 v4, 7, v4")
    a("v_lshlrev_b32 v6, 7, v6")
    a(f"s_lshr_b32 s79, s{RB}, 1")
    a("s_lshl_b32 s79, s79, 11")
    a(f"s_add_u32 s79, s79, {FLG + 0x8000}")
    a("s_add_u32 s80, s79, 0x8000")
    a("s_add_u32 s81, s79, 0x10000")
    lds_wait(a, FU3)
    for s in range(NREG + 5, NREG + 12): a.extend(w_dma(s))
    st()
    pool = [HR + 8*k for k in range(NH)] + [AR, AR + 8]
    hb = {}
    def h_load(s):
        b = hb[s] = pool.pop(0)
        if s < 28:
            off = (s % 14) * 8192 + (4096 if s >= 14 else 0)
            return [f"s_cmp_ge_u32 s84, {14 - s % 14}", "s_cselect_b32 s65, s86, s77", f"s_add_u32 s65, s65, {off}",
                    f"buffer_load_dwordx4 {vr(b, 4)}, v22, s[24:27], s65 offen sc1 ; @h{s}",
                    f"buffer_load_dwordx4 {vr(b+4, 4)}, v23, s[24:27], s65 offen sc1 ; @h{s}"]
        o = [f"s_add_u32 s65, s78, {(s - 28) * 1024}"]
        for rt in range(2):
            for hf in range(2):
                o.append(f"buffer_load_dwordx2 {vr(b+4*rt+2*hf, 2)}, v{21 if rt == 0 else 16}, s[24:27], s65 offen offset:{hf*512} sc1 ; @h{s}")
        return o
    gpoll(a, 4, 79)
    st()
    PD = OPT.get('pd', 8)
    CK = {OPT.get('ck14', 9): (14, 80), OPT.get('ck28', 26): (28, 81)}
    limit, nxt = 13, 0
    bstubs = []
    XR = WR + 8*(NREG - 2)
    for s in range(NS):
        if s + 3 in CK:
            first, sg = CK[s + 3]
            a(f"buffer_load_dword v5, v{4 if sg == 80 else 6}, s[24:27], s{sg} offen sc1 ; @fl{first}")
        if s in CK:
            first, sg = CK[s]
            L = a.newlabel("BC")
            st()
            a(f"WAITV fl{first}")
            a.extend(fcheck(1, 5))
            a(f"s_cbranch_scc0 {L}")
            a.label(f"{L}_r")
            st()
            bstubs.append((L, sg))
            limit = min(NS - 1, first + 13)
        while nxt <= min(limit, s + PD) and pool:
            a.extend(h_load(nxt)); nxt += 1
        assert nxt > s
        if s + 1 >= NREG and s + 1 < NS:
            a(f"WAITV d{s+1}")
            a.extend(w_read(s + 1))
        a(f"WAITV h{s}" + (f" WAITL r{s}" if s >= NREG else ""))
        if s >= NREG and s + 12 < NS: a.extend(w_dma(s + 12))
        if s == 20:
            a("v_subrev_u32 v2, 256, v0")
            a("v_lshrrev_b32 v3, 3, v2")
            a("v_and_b32 v2, 7, v2")
            a("v_mul_u32_u24 v8, 896, v3")
            a("v_lshl_add_u32 v8, v2, 4, v8")
            a("v_lshlrev_b32 v9, 4, v2")
            a(f"s_mul_i32 s82, s{RB}, {64*896}")
            a("s_add_u32 s82, s82, s74")
            a(f"s_add_u32 s83, s82, {32*896}")
            a(f"buffer_load_dwordx4 {vr(XR, 4)}, v8, s[8:11], s82 offen")
            a(f"buffer_load_dwordx4 {vr(XR+4, 4)}, v8, s[8:11], s83 offen")
            a(f"buffer_load_dwordx4 {vr(XR+8, 4)}, v9, s[36:39], s74 offen")
        b = hb[s]
        for ct in range(2):
            for rt in range(2):
                d = vr(ACC + 16*(2*ct+rt), 16)
                a(f"{MF} {d}, {vr(wreg(s) + 4*ct, 4)}, {vr(b+4*rt, 4)}, {'0' if s == 0 else d}")
        if b not in (AR, AR + 8): pool.append(b)
        if s < NREG - 2: pool.append(wreg(s))
    st()
    PITCH = 272
    a("v_and_b32 v10, 31, v1")
    a(f"v_mul_u32_u24 v10, {PITCH}, v10")
    a("v_lshl_add_u32 v10, v24, 4, v10")
    a(f"s_mul_i32 s65, s{WV}, {64*PITCH}")
    a("v_add_u32 v10, s65, v10")
    a(f"v_mul_u32_u24 v11, {PITCH}, v3")
    a("v_lshl_add_u32 v11, v2, 5, v11")
    a(f"v_add_u32 v12, {2*64*PITCH}, v11")
    a("s_barrier")
    for ct in range(2):
        for rt in range(2):
            for q in range(4):
                a(f"ds_write_b128 v10, {vr(ACC + 16*(2*ct+rt) + 4*q, 4)} offset:{rt*32*PITCH + ct*128 + q*32}")
            if ct == 1 and rt == 0: a("s_waitcnt lgkmcnt(4)")
    XB = WR
    for r in range(8):
        if r & 1: a(f"v_and_b32 v{XB+r}, 0xffff0000, v{XR + 8 + r//2}")
        else: a(f"v_lshlrev_b32 v{XB+r}, 16, v{XR + 8 + r//2}")
    for e in range(2):
        for r in range(8):
            xr = XR + 4*e + r//2
            if r & 1: a(f"v_and_b32 v{XB+8+8*e+r}, 0xffff0000, v{xr}")
            else: a(f"v_lshlrev_b32 v{XB+8+8*e+r}, 16, v{xr}")
        for r in range(0, 8, 2): a(f"v_pk_add_f32 {vr(XB+8+8*e+r, 2)}, {vr(XB+8+8*e+r, 2)}, {vr(XB+r, 2)}")
    a("s_waitcnt lgkmcnt(0)")
    a("s_barrier")
    for e in range(2):
        for w in range(4):
            for hf in range(2):
                a(f"ds_read_b128 {vr(ACC + 32*e + 8*w + 4*hf, 4)}, v{11 + (w >> 1)} offset:{(w & 1)*64*PITCH + e*32*PITCH + hf*16} ; @e{e}")
        if e == 0: a("s_waitcnt lgkmcnt(4)")
    for e in range(2):
        b = ACC + 32*e
        a(f"WAITL e{e}")
        for r in range(0, 8, 2): a(f"v_pk_add_f32 {vr(b+r, 2)}, {vr(b+r, 2)}, {vr(b+8+r, 2)}")
        for r in range(0, 8, 2): a(f"v_pk_add_f32 {vr(b+16+r, 2)}, {vr(b+16+r, 2)}, {vr(b+24+r, 2)}")
        for r in range(0, 8, 2): a(f"v_pk_add_f32 {vr(b+r, 2)}, {vr(b+r, 2)}, {vr(XB+8+8*e+r, 2)}")
        for r in range(0, 8, 2): a(f"v_pk_add_f32 {vr(b+r, 2)}, {vr(b+r, 2)}, {vr(b+16+r, 2)}")
        for r in range(4): a(f"v_cvt_pk_bf16_f32 v{b+r}, v{b+2*r}, v{b+2*r+1}")
        a(f"buffer_store_dwordx4 {vr(b, 4)}, v8, s[40:43], s{82+e} offen sc1")
    st()
    a.label("B_end")
    st.dump()
    a("s_endpgm")
    for L, sg in bstubs:
        a.label(L)
        gpoll(a, 4 if sg == 80 else 6, sg)
        a(f"s_branch {L}_r")

def build(path):
    a = Asm()
    a.raw(open("hdr.txt").read().rstrip() if OPT.get('hdr', 0) else "; fused kernel")
    a.raw("; @launch grid=(256,1,1) block=(512,1,1) lds=163840")
    a.raw('.amdgcn_target "amdgcn-amd-amdhsa--gfx950"')
    kernel_header(a, NAME)
    a("s_cmp_ge_u32 s2, 256")
    a("s_cbranch_scc1 K_exit")
    if STAMPS: a("s_memrealtime s[100:101]")
    a("s_load_dwordx16 s[64:79], s[0:1], 0")
    a("s_load_dwordx4 s[80:83], s[0:1], 64")
    a("s_load_dwordx2 s[84:85], s[0:1], 80")
    a("""v_and_b32 v1, 63, v0
    v_lshrrev_b32 v2, 6, v0
    s_and_b32 s3, s2, 7
    v_readfirstlane_b32 s4, v2
    s_lshr_b32 s56, s2, 3
    s_mul_i32 s5, s56, 37
    s_lshr_b32 s5, s5, 8
    s_mul_i32 s6, s5, 7
    s_sub_u32 s6, s56, s6""")
    a(f"""s_lshr_b32 s{I1}, s3, 1
    s_lshl_b32 s{I1}, s{I1}, 2
    s_add_u32 s{I1}, s{I1}, s5
    s_and_b32 s{JJ}, s3, 1
    s_mul_i32 s{JJ}, s{JJ}, 7
    s_add_u32 s{JJ}, s{JJ}, s6
    s_and_b32 s{HEAD}, s56, 1
    s_lshl_b32 s7, s3, 1
    s_add_u32 s{HEAD}, s{HEAD}, s7
    s_lshr_b32 s{I2}, s56, 1
    s_lshl_b32 s{RB}, s3, 2
    s_add_u32 s{RB}, s{RB}, s5
    s_mov_b32 s{CB}, s6
    s_and_b32 s{WV}, s4, 3""")
    a(f"""s_lshl_b32 s57, s{I1}, 1
    s_add_u32 s57, s57, s{JJ}
    s_mul_i32 s7, s57, 37
    s_lshr_b32 s7, s7, 8
    s_mul_i32 s7, s7, 7
    s_sub_u32 s57, s57, s7""")
    for n in range(1, 7):
        a(f"s_add_u32 s{57+n}, s{56+n}, 1")
        a(f"s_cmp_eq_u32 s{57+n}, 7")
        a(f"s_cselect_b32 s{57+n}, 0, s{57+n}")
    a(f"v_mov_b32 v27, {CNT}")
    a("v_mov_b32 v30, 1")
    a("s_waitcnt lgkmcnt(0)")
    srd(a, 8, 64, S * D * 2)
    srd(a, 24, 84, WS_SIZE)
    a("s_cmp_ge_u32 s4, 4")
    a("s_cbranch_scc1 B_start")
    a.save("role")
    gen_A(a, [])
    a.label("B_start"); a.restore("role")
    srd(a, 12, 66, D * 3 * D * 2)
    srd(a, 16, 72, D * F * 2)
    srd(a, 20, 74, F * 2)
    srd(a, 28, 76, F * D * 2)
    srd(a, 32, 68, D * D * 2)
    srd(a, 36, 78, D * 2)
    srd(a, 40, 80, S * D * 2)
    srd(a, 44, 82, 256)
    gen_B(a)
    a.label("K_exit")
    a("s_endpgm")
    a.label("K_end")
    kernel_desc(a, NAME, 256, 102, 256)
    open(path, "w").write(a.text())
    print("padded nops:", a.padded)

if __name__ == "__main__":
    if len(sys.argv) > 2 and sys.argv[2] == "st": STAMPS = True
    for kv in sys.argv[3:]:
        k, v = kv.split("="); OPT[k] = int(v)
    build(sys.argv[1])
```

```python
import math, struct, sys
from asmlib import *

S, D, F, H, DH = 2048, 448, 1792, 16, 28
WS_QK, WS_V, WS_H, WS_O, WS_FL = 0x0, 0x400000, 0x600000, 0xE00000, 0x1000000
WS_SIZE = 0x1040000
FLG = WS_FL + 0x8000
WS_DBG = 0xF800000
QK_T, V_T, H_T, O_T = 57344, 28672, 114688, 28672
NAME = "parallel_sum__sliding_block__dense_activation_gelu__prompt_kernel"
STAMPS = False
OPT = {}

def f32(x): return "0x%08x" % struct.unpack("<I", struct.pack("<f", x))[0]
LOG2E = 1.4426950408889634
QSCALE = DH ** -0.5 * LOG2E
GC1 = -2.0 * math.sqrt(2.0 / math.pi) * LOG2E
GC2 = GC1 * 0.044715
NEG = -1e30
def vr(b, n): return f"v[{b}:{b+n-1}]"
MF = "v_mfma_f32_32x32x16_bf16"

P0, P1, P2, P3, P4, MISC = 0, 28672, 57344, 86016, 114688, 143360
UB = [P2, P4, P0, P2]
CNT, RRT, BIAST, MSLOT = MISC, MISC + 256, MISC + 1024, MISC + 4096
LK, LV, LQ = 0, 24576, 49152
XISS, FXS, RD0, RD1, RD2, RD3, RD4, FU0, FU1, FU2, FU3, NONCE, AG0, AG1, AG2, AG3 = range(16)
WV, I1, JJ, HEAD, I2, RB, CB, NON = 48, 49, 50, 51, 52, 53, 54, 55
SPIN = 20000

class Stamper:
    def __init__(self, a): self.a, self.n = a, 0
    def __call__(self, idx=None):
        if idx is not None: self.n = idx
        if STAMPS:
            self.a("s_memrealtime s[98:99]")
            self.a("s_waitcnt lgkmcnt(0)")
            self.a(f"v_writelane_b32 v31, s98, {self.n}")
        self.n += 1
    def dump(self):
        if not STAMPS: return
        a = self.a
        a("s_memrealtime s[98:99]")
        a("s_waitcnt vmcnt(0) lgkmcnt(0)")
        a("v_writelane_b32 v31, s98, 31")
        a("v_writelane_b32 v31, s100, 30")
        a("s_mov_b32 s26, 0x10000000")
        a("s_lshl_b32 s96, s2, 3")
        a("v_lshrrev_b32 v2, 6, v0")
        a("v_add_u32 v2, s96, v2")
        a("v_lshlrev_b32 v2, 5, v2")
        a("v_add_lshl_u32 v2, v2, v1, 2")
        a(f"s_mov_b32 s96, {WS_DBG}")
        a("s_mov_b32 exec_hi, 0")
        a("buffer_store_dword v31, v2, s[24:27], s96 offen")
        if OPT.get('dd', -1) >= 0:
            L = a.newlabel("DD")
            a(f"s_cmp_lg_u32 s2, {OPT.get('dw', 100)}")
            a(f"s_cbranch_scc1 {L}")
            a(f"s_cmp_lg_u32 s4, {OPT['dd']}")
            a(f"s_cbranch_scc1 {L}")
            a("v_subrev_u32 v3, s100, v31")
            a("v_lshlrev_b32 v2, 2, v1")
            a("buffer_store_dword v3, v2, s[44:47], 0 offen")
            a.label(L)

def LS(): return '' if OPT.get('loc', 0) > 1 else 'sc1'

def LL(): return ['sc1', '', 'nt', 'sc0'][OPT.get('ll', 0)]

def merge(main, fill, skip=0, last=0):
    if OPT.get('noepi', 0): fill = [g for g in fill if any('buffer_store' in x for x in g)]
    if OPT.get('nost', 0): fill = [g for g in fill[:-1] if not g[0].startswith('buffer_store')] + fill[-1:]
    slots = [i for i, m in enumerate(main) if m.startswith('v_mfma')]
    slots = slots[skip:len(slots) - last]
    out, k, n = [], 0, len(fill)
    pos = {s: j for j, s in enumerate(slots)}
    for i, m in enumerate(main):
        out.append(m)
        if i in pos:
            tgt = (n * (pos[i] + 1)) // len(slots)
            while k < tgt:
                out.extend(fill[k]); k += 1
    for g in fill[k:]: out.extend(g)
    return out

def signal(c):
    return ["s_mov_b64 exec, 1", f"ds_add_u32 v27, v30 offset:{4*c}", "s_mov_b64 exec, -1"]

def lds_wait(a, c, n=4):
    L = a.newlabel("LW")
    a("s_mov_b32 s95, 0")
    a.label(L)
    a(f"ds_read_b32 v29, v27 offset:{4*c}")
    a("s_add_u32 s95, s95, 1")
    a("s_lshr_b32 s94, s95, 18")
    a("s_waitcnt lgkmcnt(0)")
    a("v_readfirstlane_b32 s97, v29")
    a("s_add_u32 s97, s97, s94")
    a(f"s_cmp_ge_u32 s97, {n}")
    a(f"s_cbranch_scc1 {L}_d")
    a(f"s_sleep {OPT.get('lsl', 2)}")
    a(f"s_branch {L}")
    a.label(f"{L}_d")

def gen_A(a, stubs):
    st = Stamper(a)
    XF, A0, A1 = 128, 64, 96
    RING = [48, 56, 240, 248]
    KB = 57
    st()
    a("s_setprio 2")
    a("v_lshrrev_b32 v24, 5, v1")
    a("v_lshlrev_b32 v21, 3, v1")
    a("v_lshlrev_b32 v22, 4, v1")
    a("v_mov_b32 v5, 0")
    a("s_cmp_ge_u32 s56, 28")
    a("s_cbranch_scc1 A_helper")
    a(f"s_lshl_b32 s86, s{I1}, 2")
    a(f"s_add_u32 s86, s86, s{WV}")
    a("""v_lshrrev_b32 v2, 3, v1
    v_and_b32 v3, 7, v1
    v_lshrrev_b32 v4, 1, v2
    v_xor_b32 v5, v3, v4
    v_mul_u32_u24 v6, 896, v2
    v_lshl_add_u32 v8, v5, 4, v6
    v_xor_b32 v5, 4, v5
    v_lshl_add_u32 v9, v5, 4, v6""")
    a(f"v_add_u32 v9, {8*896 - 1024}, v9")
    a(f"v_add_u32 v10, {16*896 - 2048}, v8")
    a(f"v_add_u32 v11, {16*896 - 2048}, v9")
    a("s_mul_i32 s87, s86, 28672")
    a(f"s_mul_i32 s88, s{WV}, 14336")
    def x_dma(n):
        o = [f"s_lshl_b32 s89, s{KB+n}, 7", "s_add_u32 s89, s89, s87", f"s_add_u32 m0, s88, {(n % 3)*4096}"]
        for rg in range(4):
            o.append(f"buffer_load_dwordx4 v{8+rg}, s[8:11], s89 offen offset:{rg*1024} lds ; @x{n}")
        return o
    for n in range(3): a.extend(x_dma(n))
    a("""v_and_b32 v2, 31, v1
    v_bfe_u32 v3, v2, 1, 3
    v_lshlrev_b32 v4, 7, v2
    v_add_u32 v4, s88, v4""")
    for q in range(4):
        a(f"v_add_u32 v5, {2*q}, v24")
        a("v_xor_b32 v5, v5, v3")
        a(f"v_lshl_add_u32 v{12+q}, v5, 4, v4")
    a("""v_and_b32 v2, 15, v1
    v_bfe_u32 v3, v1, 4, 1
    v_lshrrev_b32 v4, 2, v2
    v_bfe_u32 v5, v2, 1, 1
    v_lshl_add_u32 v5, v3, 1, v5
    v_bfe_u32 v6, v2, 3, 1
    v_lshlrev_b32 v6, 2, v6
    v_xor_b32 v5, v5, v6
    v_lshlrev_b32 v7, 10, v24
    v_lshl_add_u32 v7, v4, 7, v7
    v_and_b32 v6, 1, v2
    v_lshl_add_u32 v7, v6, 3, v7
    v_lshl_add_u32 v16, v5, 4, v7
    v_xor_b32 v5, 4, v5
    v_lshl_add_u32 v17, v5, 4, v7
    v_lshl_add_u32 v7, v24, 3, v4
    v_lshlrev_b32 v7, 6, v7
    v_lshl_add_u32 v7, v3, 5, v7
    v_and_b32 v6, 3, v2
    v_lshl_add_u32 v20, v6, 3, v7""")
    a(f"v_add_u32 v20, {UB[1]}, v20")
    a(f"v_add_u32 v18, {UB[0]}, v16")
    a(f"v_add_u32 v19, {UB[0]}, v17")
    a("""v_and_b32 v2, 31, v1
    v_mul_u32_u24 v23, 7168, v24
    v_lshl_add_u32 v23, v2, 4, v23""")
    a(f"v_lshlrev_b32 v28, 4, v24")
    a(f"v_add_u32 v28, {BIAST}, v28")
    a(f"""s_mul_i32 s64, s{JJ}, 192
    s_and_b32 s65, s{JJ}, 1
    s_lshl_b32 s66, s65, 6
    s_add_u32 s66, s64, s66
    s_xor_b32 s65, s65, 1
    s_lshl_b32 s65, s65, 7
    s_add_u32 s64, s64, s65""")
    a(f"s_mul_i32 s65, s86, {QK_T}")
    a("s_lshl_b32 s67, s64, 5"); a("s_add_u32 s67, s67, s65")
    a("s_lshl_b32 s68, s66, 5"); a("s_add_u32 s68, s68, s65")
    a(f"s_mul_i32 s65, s86, {V_T}")
    a(f"s_add_u32 s65, s65, {WS_V - 2*896*8}")
    a("s_lshl_b32 s69, s64, 3"); a("s_add_u32 s69, s69, s65")
    a("s_add_u32 s70, s69, 14336")
    a("s_lshl_b32 s71, s66, 3"); a("s_add_u32 s71, s71, s65")
    a("s_add_u32 s72, s71, 14336")
    a(f"s_mul_i32 s73, s86, {H_T}")
    a(f"s_lshl_b32 s65, s{JJ}, 13")
    a("s_add_u32 s73, s73, s65")
    a(f"s_add_u32 s73, s73, {WS_H}")
    a("s_add_u32 s74, s73, 4096")
    a(f"s_lshl_b32 s75, s{I1}, 4")
    a(f"s_add_u32 s75, s75, s{JJ}")
    a("s_lshl_b32 s75, s75, 7")
    a(f"s_add_u32 s75, s75, {FLG}")
    a("s_add_u32 s76, s75, 0x8000")
    a("s_add_u32 s77, s75, 0x10000")
    a("s_mov_b32 s78, 0x3f803f80")
    for q in range(4): a(f"v_mov_b32 v{32+q}, 0")
    a("s_barrier")
    st()
    for n in range(7):
        a(f"WAITV x{n}")
        for q in range(4):
            a(f"ds_read_b128 {vr(XF + 16*n + 4*q, 4)}, v{12+q} offset:{(n % 3)*4096}")
        if n >= 1:
            for d in range(16*(n-1), 16*n):
                a(f"v_dot2c_f32_bf16 v{32 + (d & 1)}, s78, v{XF+d}")
                a(f"v_dot2c_f32_bf16 v{34 + (d & 1)}, v{XF+d}, v{XF+d}")
        a("s_waitcnt lgkmcnt(0)")
        if n + 3 < 7: a.extend(x_dma(n + 3))
        if n == OPT.get('xiss', 3): a.extend(signal(XISS))
    a.extend(signal(FXS))
    st()
    for d in range(96, 112):
        a(f"v_dot2c_f32_bf16 v{32 + (d & 1)}, s78, v{XF+d}")
        a(f"v_dot2c_f32_bf16 v{34 + (d & 1)}, v{XF+d}, v{XF+d}")
    a("""v_add_f32 v32, v32, v33
    v_add_f32 v34, v34, v35
    v_mov_b32 v33, v32
    v_mov_b32 v35, v34
    v_permlane32_swap_b32 v32, v33
    v_permlane32_swap_b32 v34, v35
    v_add_f32 v32, v32, v33
    v_add_f32 v34, v34, v35""")
    a(f"v_mul_f32 v32, {f32(1.0/448)}, v32")
    a(f"v_mul_f32 v34, {f32(1.0/448)}, v34")
    a("v_fma_f32 v34, -v32, v32, v34")
    a("v_cvt_pk_bf16_f32 v33, v32, v32")
    a("v_and_b32 v33, 0xffff0000, v33")
    a("v_sub_f32 v7, 0, v33")
    a("v_max_f32 v34, 0, v34")
    a("v_cvt_pk_bf16_f32 v34, v34, v34")
    a("v_and_b32 v34, 0xffff0000, v34")
    a(f"v_add_f32 v34, {f32(1e-5)}, v34")
    a("v_cvt_pk_bf16_f32 v34, v34, v34")
    a("v_and_b32 v34, 0xffff0000, v34")
    a("v_sqrt_f32 v34, v34")
    a("v_cvt_pk_bf16_f32 v34, v34, v34")
    a("v_and_b32 v34, 0xffff0000, v34")
    a("v_rcp_f32 v25, v34")
    a("v_and_b32 v2, 31, v1")
    a(f"s_lshl_b32 s65, s{WV}, 7")
    a(f"s_add_u32 s65, s65, {RRT}")
    a("v_lshl_add_u32 v2, v2, 2, s65")
    a("ds_write_b32 v2, v25")
    a("v_lshl_add_u32 v12, v24, 4, s65")
    a(f"ds_read_b32 v6, v27 offset:{4*NONCE}")
    a("s_mov_b32 s78, 0x00003f80")
    a("s_mov_b32 s79, 0x3f800000")
    for d0 in range(0, 112, 4):
        for d in range(d0, d0 + 4):
            a(f"v_dot2_f32_bf16 v{64 + 2*(d & 7)}, v{XF+d}, s78, v7")
            a(f"v_dot2_f32_bf16 v{65 + 2*(d & 7)}, v{XF+d}, s79, v7")
        if d0 >= 4:
            for d in range(d0 - 4, d0):
                a(f"v_cvt_pk_bf16_f32 v{XF+d}, v{64 + 2*(d & 7)}, v{65 + 2*(d & 7)}")
    a(f"v_mul_f32 v4, {f32(QSCALE)}, v25")
    a("s_cmp_lt_u32 s64, 896")
    a("s_cselect_b64 vcc, -1, 0")
    a("v_cndmask_b32 v2, v25, v4, vcc")
    a("s_cmp_lt_u32 s66, 896")
    a("s_cselect_b64 vcc, -1, 0")
    a("v_cndmask_b32 v3, v25, v4, vcc")
    for d in range(108, 112):
        a(f"v_cvt_pk_bf16_f32 v{XF+d}, v{64 + 2*(d & 7)}, v{65 + 2*(d & 7)}")
    a(f"s_mov_b32 s78, {f32(GC2)}")
    a(f"v_mov_b32 v26, {f32(GC1)}")
    a("v_mov_b32 v5, 0")
    st()
    lds_wait(a, RD0)
    st()

    LA = 3
    units = [28, 14, 28, 28]
    seq = [(u, s) for u, n in enumerate(units) for s in range(n)]
    start = [0, 28, 42, 70]
    UACC = [(64, 80), (96, 96), (64, 112), (80, 96)]
    def reads(g):
        u, s = seq[g]; b = RING[g % 4]; o = []
        for T in range(2):
            if u == 1: ad, off, sec = 20, (2*s + T) * 1024, 256
            else: ad, off, sec = (16 if u == 2 else 18) + T, s * 2048, 512
            o.append(f"ds_read_b64_tr_b16 {vr(b + 4*T, 2)}, v{ad} offset:{off} ; @w{g}")
            o.append(f"ds_read_b64_tr_b16 {vr(b + 4*T + 2, 2)}, v{ad} offset:{off + sec} ; @w{g}")
        return o
    def check(c):
        L = a.newlabel("AC")
        stubs.append((L, c))
        return [f"WAITL f{c}", "v_readfirstlane_b32 s97, v29", "s_cmp_lt_u32 s97, 4", f"s_cbranch_scc1 {L}", f"{L}_r:"]
    def unit(u, normal):
        o = []
        n = units[u]
        for s in range(n):
            g = start[u] + s
            if u < 3 and s == n - LA - 4: o.append(f"ds_read_b32 v29, v27 offset:{4*(RD1+u)} ; @f{RD1+u}")
            if u < 3 and s == n - LA: o.extend(check(RD1 + u))
            if g + LA < len(seq): o.extend(reads(g + LA))
            o.append(f"WAITL w{g}")
            if s == n - 1: o.extend(signal(FU0 + u))
            for T in range(2):
                w = vr(RING[g % 4] + 4*T, 4)
                d = vr(UACC[u][T], 16)
                if u == 1: x, first = vr(XF + 4*(2*s + T), 4), (s == 0 and T == 0)
                else: x, first = vr(XF + 4*s, 4), s == 0
                A, B = (x, w) if normal else (w, x)
                o.append(f"{MF} {d}, {A}, {B}, {'0' if first else d}")
        return o
    def rr_read():
        return [[f"ds_read_b128 {vr(32 + 4*q, 4)}, v12 offset:{32*q} ; @rr" for q in range(4)], [], [], [], ["WAITL rr"]]
    def epi_qk(b, T, sc, soff):
        o = []
        for q in range(4):
            for r in range(4*q, 4*q+4): o.append([f"v_mul_f32 v{b+r}, v{b+r}, v{sc}"])
            for r in range(2): o.append([f"v_cvt_pk_bf16_f32 v{b+4*q+r}, v{b+4*q+2*r}, v{b+4*q+2*r+1}"])
            o.append([f"buffer_store_dwordx2 {vr(b+4*q, 2)}, v21, s[24:27], s{soff} offen offset:{T*2048 + q*512} sc1 ; @qkv"])
        return o
    def epi_v(b, T, soff):
        o = []
        for f in range(2):
            for r in range(8*f, 8*f+8): o.append([f"v_mul_f32 v{b+r}, v{b+r}, v{32+r}"])
            for r in range(4): o.append([f"v_cvt_pk_bf16_f32 v{b+8*f+r}, v{b+8*f+2*r}, v{b+8*f+2*r+1}"])
            o.append([f"buffer_store_dwordx4 {vr(b+8*f, 4)}, v23, s[24:27], s{soff+f} offen offset:{T*512} sc1 ; @qkv"])
        return o
    def epi_h(b, T, tl, soff, packed, tag):
        o = []
        for f in range(2):
            R = range(8*f, 8*f+8); t = lambda r: 32 + r
            o.append([f"ds_read_b128 {vr(32+8*f+4*q, 4)}, v28 offset:{tl*128 + (2*f+q)*32} ; @b{tl}{f}" for q in range(2)])
        for f in range(2):
            R = range(8*f, 8*f+8); t = lambda r: 32 + r
            o.append([f"WAITL b{tl}{f}"])
            if packed:
                R2 = range(8*f, 8*f+8, 2); p2 = lambda x: vr(x, 2)
                for r in R2: o.append([f"v_pk_fma_f32 {p2(b+r)}, {p2(b+r)}, v[8:9], {p2(t(r))}"])
                for r in R2: o.append([f"v_pk_mul_f32 {p2(t(r))}, {p2(b+r)}, {p2(b+r)}"])
                for r in R2: o.append([f"v_pk_fma_f32 {p2(t(r))}, {p2(t(r))}, v[10:11], v[12:13]"])
                for r in R2: o.append([f"v_pk_mul_f32 {p2(t(r))}, {p2(t(r))}, {p2(b+r)}"])
                for r in R: o.append([f"v_exp_f32 v{t(r)}, v{t(r)}"])
                for r in R2: o.append([f"v_pk_add_f32 {p2(t(r))}, {p2(t(r))}, v[14:15]"])
                for r in R: o.append([f"v_rcp_f32 v{t(r)}, v{t(r)}"])
                for r in R2: o.append([f"v_pk_mul_f32 {p2(b+r)}, {p2(b+r)}, {p2(t(r))}"])
            else:
                for r in R: o.append([f"v_fma_f32 v{b+r}, v{b+r}, v25, v{t(r)}"])
                for r in R: o.append([f"v_mul_f32 v{t(r)}, v{b+r}, v{b+r}"])
                for r in R: o.append([f"v_fma_f32 v{t(r)}, v{t(r)}, s78, v26"])
                for r in R: o.append([f"v_mul_f32 v{t(r)}, v{t(r)}, v{b+r}"])
                for r in R: o.append([f"v_exp_f32 v{t(r)}, v{t(r)}"])
                for r in R: o.append([f"v_add_f32 v{t(r)}, 1.0, v{t(r)}"])
                for r in R: o.append([f"v_rcp_f32 v{t(r)}, v{t(r)}"])
                for r in R: o.append([f"v_mul_f32 v{b+r}, v{b+r}, v{t(r)}"])
            for r in range(4): o.append([f"v_cvt_pk_bf16_f32 v{b+8*f+r}, v{b+8*f+2*r}, v{b+8*f+2*r+1}"])
            o.append([f"buffer_store_dwordx4 {vr(b+8*f, 4)}, v22, s[24:27], s{soff} offen offset:{(2*T+f)*1024} {LS()} ; @{tag}"])
        return o
    def flag(kind, tag):
        L = a.newlabel("FG")
        o = [f"WAITV {tag}", "s_mov_b64 exec, 1", f"ds_add_rtn_u32 v4, v27, v30 offset:{4*(AG0+kind)} ; @{'nocount' if kind == 2 else 'ag%d' % kind}", "s_mov_b64 exec, -1"]
        st_ = ["s_mov_b64 exec, 1", f"buffer_store_dword v6, v5, s[24:27], s{75 + kind if kind < 3 else 68} offen {LS() if kind in (1, 2) else 'sc1'} ; @nocount"]
        p = [f"WAITL ag{kind}" if kind != 2 else "s_waitcnt lgkmcnt(0)", "v_readfirstlane_b32 s97, v4", "s_cmp_lg_u32 s97, 3", f"s_cbranch_scc1 {L}"] + st_ + ["s_mov_b64 exec, -1", f"{L}:"]
        return o, p
    def at(main, grp, k):
        n = sum(1 for m in main if m.startswith('v_mfma'))
        return merge(main, [grp], skip=k, last=n - k - 1)
    def path(sv, pv):
        a.extend(merge(unit(1, sv), epi_h(64, 0, 0, 73, False, "h1"), skip=2))
        st(6)
        e0 = (rr_read() + epi_v(96, 0, 69)) if sv else epi_qk(96, 0, 2, 67)
        a.extend(merge(unit(2, pv), epi_h(80, 1, 1, 73, False, "h1") + e0, skip=0, last=OPT.get('pl', 10)))
        st()
        e1 = (([] if sv else rr_read()) + epi_v(64, 0, 71) + epi_v(112, 1, 71)) if pv else (epi_qk(64, 0, 3, 68) + epi_qk(112, 1, 3, 68))
        f1, f0 = flag(1, "h1"), flag(0, "qkv")
        u3 = merge(unit(3, False), e1, skip=3, last=36)
        k1, k0 = OPT.get('f1at', 1), OPT.get('f0at', 48)
        u3 = at(at(u3, f1[0], k1), f1[1], k1 + 4)
        u3 = at(at(u3, f0[0], k0), f0[1], k0 + 4)
        a.extend(u3)
        st()
    for g in range(LA): a.extend(reads(g))
    a.extend(unit(0, False))
    st(5)
    a.save("p")
    a(f"s_cmp_ge_u32 s{JJ}, 10")
    a("s_cbranch_scc1 A_pc")
    a(f"s_cmp_eq_u32 s{JJ}, 9")
    a("s_cbranch_scc1 A_pb")
    path(False, False)
    a("s_branch A_join")
    a.label("A_pb"); a.restore("p")
    path(False, True)
    a("s_branch A_join")
    a.label("A_pc"); a.restore("p")
    path(True, True)
    a("s_nop 7")
    a.label("A_join")
    a("v_mov_b32 v8, v25"); a("v_mov_b32 v9, v25")
    a("v_mov_b32 v10, s78"); a("v_mov_b32 v11, s78")
    a("v_mov_b32 v12, v26"); a("v_mov_b32 v13, v26")
    a("v_mov_b32 v14, 1.0"); a("v_mov_b32 v15, 1.0")
    for g in epi_h(80, 0, 2, 74, True, "h2") + epi_h(96, 1, 3, 74, True, "h2"): a.extend(g)
    a("s_mov_b32 s79, 0")
    st()
    a("s_branch A_attn")
    a.label("A_helper")
    a("s_mov_b32 s79, 1")
    a("s_barrier")
    a(f"ds_read_b32 v6, v27 offset:{4*NONCE}")
    a.label("A_attn")
    SR, QF, OA, PB = 96, 40, 48, 64
    KV = [80, 88, 240, 248]
    a("v_and_b32 v12, 31, v1")
    a(f"v_mov_b32 v2, {f32(NEG)}")
    a("v_lshlrev_b32 v3, 2, v24")
    a("v_sub_u32 v3, v12, v3")
    for r in range(16):
        key = 8 * (r >> 2) + (r & 3)
        a(f"v_cmp_le_i32 vcc, {key}, v3")
        a(f"v_cndmask_b32 v{SR+128+r}, v2, 0, vcc")
        a(f"v_cndmask_b32 v{SR+r}, 0, v2, vcc")
    a(f"s_lshl_b32 s64, s{WV}, 11")
    a("v_add_u32 v14, s64, v21")
    a("v_add_u32 v15, s64, v22")
    a(f"v_add_u32 v15, {LV}, v15")
    a("v_mov_b32 v32, 0x3f803f80")
    for r in (33, 34, 35, 37, 38, 39): a(f"v_mov_b32 v{r}, 0")
    a(f"s_lshl_b32 s66, s{I2}, 2")
    a(f"s_add_u32 s66, s66, s{WV}")
    a(f"s_mul_i32 s67, s66, {O_T}")
    a(f"s_mul_i32 s68, s{HEAD}, 1792")
    a("s_add_u32 s67, s67, s68")
    a(f"s_add_u32 s67, s67, {WS_O}")
    a(f"s_lshl_b32 s68, s{I2}, 4")
    a(f"s_add_u32 s68, s68, s{HEAD}")
    a("s_lshl_b32 s68, s68, 7")
    a(f"s_add_u32 s68, s68, {FLG + 0x18000}")
    a(f"ds_read_b32 v29, v27 offset:{4*RD4}")
    a("s_waitcnt lgkmcnt(0)")
    a("v_readfirstlane_b32 s97, v29")
    a("s_cmp_ge_u32 s97, 4")
    a("s_cbranch_scc1 A_kvok")
    a("s_cmp_lg_u32 s79, 0")
    a("s_cbranch_scc1 A_nof")
    f2 = flag(2, "h2")
    a.extend(f2[0]); a.extend(f2[1])
    a("s_mov_b32 s79, 1")
    a.label("A_nof")
    lds_wait(a, RD4)
    a.label("A_kvok")
    st()
    for f in range(2):
        a(f"ds_read2st64_b64 {vr(QF + 4*f, 4)}, v14 offset0:{LQ//512 + 2*f} offset1:{LQ//512 + 2*f + 1} ; @q")
    def kread(s): return [f"ds_read2st64_b64 {vr(KV[s % 4] + 4*f, 4)}, v14 offset0:{4*s + 2*f} offset1:{4*s + 2*f + 1} ; @k{s}" for f in range(2)]
    def vread(s): return [f"ds_read_b128 {vr(KV[(s+1) % 4] + 4*f, 4)}, v15 offset:{2048*s + 1024*f} ; @v{s}" for f in range(2)]
    def maxes(s):
        b = SR + 16*s; o = []
        for r in range(0, 16, 2):
            acc = 8 + ((r >> 1) & 3)
            if s == 0 and r < 8: o.append(f"v_max_f32 v{acc}, v{b+r}, v{b+r+1}")
            else: o.append(f"v_max3_f32 v{acc}, v{b+r}, v{b+r+1}, v{acc}")
        return o
    for s in range(3): a.extend(kread(s))
    for s in range(9):
        if s + 3 < 9: a.extend(kread(s + 3))
        else: a.extend(vread(s + 3 - 9))
        a(f"WAITL k{s}")
        d = vr(SR + 16*s, 16)
        m = maxes(s - 2) if s >= 2 else []
        a(f"{MF} {d}, {vr(KV[s % 4], 4)}, {vr(QF, 4)}, {d if s in (0, 8) else '0'}")
        a.extend(m[:4])
        a(f"{MF} {d}, {vr(KV[s % 4] + 4, 4)}, {vr(QF+4, 4)}, {d}")
        a.extend(m[4:])
    a.extend(maxes(7))
    a("s_cmp_lg_u32 s79, 0")
    a("s_cbranch_scc1 A_nof2")
    f2 = flag(2, "h2")
    a.extend(f2[0]); a.extend([x.replace("WAITL ag2", "s_waitcnt lgkmcnt(0)") for x in f2[1]])
    a.label("A_nof2")
    a.extend(maxes(8))
    a("""v_max3_f32 v2, v8, v9, v10
    v_max_f32 v2, v2, v11
    v_mov_b32 v3, v2
    v_permlane32_swap_b32 v2, v3
    v_max_f32 v2, v2, v3
    v_sub_f32 v2, 0, v2
    v_cvt_pk_bf16_f32 v3, v2, v2
    v_and_b32 v3, 0xffff0000, v3
    v_sub_f32 v3, v2, v3
    v_cvt_pk_bf16_f32 v36, v2, v3
    v_cmp_eq_u32 vcc, 0, v24
    v_cndmask_b32 v36, 0, v36, vcc""")
    st()
    def shift(s): return f"{MF} {vr(SR+16*s, 16)}, v[32:35], v[36:39], {vr(SR+16*s, 16)}"
    a(shift(0)); a(shift(1))
    def pv(s):
        pb = PB + 8*(s & 1)
        return [f"{MF} {vr(OA, 16)}, {vr(KV[(s+1) % 4] + 4*f, 4)}, {vr(pb + 4*f, 4)}, {'0' if (s == 0 and f == 0) else vr(OA, 16)}" for f in range(2)]
    for s in range(9):
        b = SR + 16*s; pb = PB + 8*(s & 1)
        mm = []
        if s + 2 < 9: mm.append(shift(s + 2))
        if s >= 1: mm = [f"WAITL v{s-1}"] + pv(s - 1)[:1] + mm + pv(s - 1)[1:] + (vread(s + 2) if s + 2 < 9 else [])
        ex = [f"v_exp_f32 v{b+r}, v{b+r}" for r in range(16)]
        cv = [f"v_cvt_pk_bf16_f32 v{pb+r}, v{b+2*r}, v{b+2*r+1}" for r in range(8)]
        body = ex[:4]
        k = 0
        chunks = [ex[4:8], ex[8:12], ex[12:16] + cv]
        for x in mm:
            body.append(x)
            if x.startswith(MF) and k < 3:
                body.extend(chunks[k]); k += 1
        for c in chunks[k:]: body.extend(c)
        a.extend(body)
    a("WAITL v8")
    a.extend(pv(8))
    st()
    a(f"v_mov_b32 v2, v{OA+12}")
    a(f"v_mov_b32 v3, v{OA+12}")
    a("v_permlane32_swap_b32 v2, v3")
    a("v_rcp_f32 v3, v3")
    for r in range(16): a(f"v_mul_f32 v{OA+r}, v{OA+r}, v3")
    for r in range(8): a(f"v_cvt_pk_bf16_f32 v{PB+r}, v{OA+2*r}, v{OA+2*r+1}")
    for q in range(4):
        if q == 3: a("s_mov_b32 exec_hi, 0")
        a(f"buffer_store_dwordx2 {vr(PB+2*q, 2)}, v21, s[24:27], s67 offen offset:{q*512} {LS()} ; @o")
    f3 = flag(3, "o")
    a.extend(f3[0]); a.extend(f3[1])
    st()
    st.dump()
    a("s_endpgm")
    for L, c in stubs:
        a.label(L)
        lds_wait(a, c)
        a(f"s_branch {L}_r")

def gpoll(a, va, sg, pre=False, sl=None):
    L = a.newlabel("GP")
    a("s_mov_b32 s96, 0")
    if pre:
        a("WAITV poll")
        a.extend(fcheck(1, 5))
        a(f"s_cbranch_scc1 {L}_d")
    a.label(L)
    a(f"buffer_load_dword v5, v{va}, s[24:27], s{sg} offen sc1 ; @nocount")
    a("s_waitcnt vmcnt(0)")
    a.extend(fcheck(1, 5))
    a(f"s_cbranch_scc1 {L}_d")
    a(f"s_sleep {sl or OPT.get('gsl', 8)}")
    a("s_add_u32 s96, s96, 1")
    a(f"s_cmp_lt_u32 s96, {SPIN}")
    a(f"s_cbranch_scc1 {L}")
    a.label(f"{L}_d")

def fcheck(nreg, base):
    o = []
    if nreg == 4:
        for r in range(4): o.append(f"v_xor_b32 v{base+r}, s{NON}, v{base+r}")
        o.append(f"v_or3_b32 v{base}, v{base}, v{base+1}, v{base+2}")
        o.append(f"v_or_b32 v{base}, v{base}, v{base+3}")
        o.append(f"v_cmp_ne_u32 vcc, 0, v{base}")
    else:
        o.append(f"v_cmp_ne_u32 vcc, s{NON}, v{base}")
    o.append("s_nop 1")
    o.append("s_cmp_eq_u64 vcc, 0")
    return o

def gen_B(a):
    st = Stamper(a)
    KB = 57
    ACC, NS = 32, 35
    BLK = [96 + 8*k for k in range(20)]
    st()
    a(f"s_cmp_lg_u32 s{WV}, 0")
    a("s_cbranch_scc1 B_noinit")
    a(f"s_add_u32 s64, s84, {WS_FL}")
    a("s_addc_u32 s65, s85, 0")
    a("s_load_dword s66, s[64:65], 0")
    a("v_mov_b32 v2, 0")
    a("v_lshl_add_u32 v3, v1, 2, v27")
    a("ds_write_b32 v3, v2")
    a("s_waitcnt lgkmcnt(0)")
    a("s_mul_i32 s66, s66, 0x9E3779B1")
    a("s_add_u32 s66, s66, 0x7F4A7C15")
    a("v_mov_b32 v2, s66")
    a(f"ds_write_b32 v27, v2 offset:{4*NONCE}")
    a("s_waitcnt lgkmcnt(0)")
    a.label("B_noinit")
    a("s_barrier")
    if OPT.get('cpf', 1):
        a(f"s_cmp_lg_u32 s{WV}, 1")
        a("s_cbranch_scc1 B_nopf")
        a("s_getpc_b64 s[64:65]")
        a.label("B_pc")
        a(f"s_sub_u32 s64, s64, B_pc-{NAME}")
        a("s_subb_u32 s65, s65, 0")
        a("s_and_b32 s66, s56, 7")
        a("s_mul_i32 s66, s66, 6144")
        a("v_lshl_add_u32 v2, v1, 7, s66")
        a(f"v_mov_b32 v4, K_end-{NAME}-4")
        a("v_min_u32 v3, v2, v4")
        a("s_mov_b32 exec_hi, 0xffff")
        a("global_load_dword v32, v3, s[64:65] ; @nocount")
        a("s_mov_b64 exec, -1")
        a.label("B_nopf")
    a("v_lshrrev_b32 v24, 5, v1")
    a("v_lshlrev_b32 v21, 3, v1")
    a("v_lshlrev_b32 v22, 4, v1")
    a("v_and_b32 v2, 31, v1")
    a("v_mul_u32_u24 v28, 7168, v24")
    a("v_lshl_add_u32 v28, v2, 4, v28")
    a("v_lshrrev_b32 v3, 3, v1")
    a(f"s_min_u32 s65, s{I2}, 2")
    a("v_min_u32 v3, s65, v3")
    a(f"v_sub_u32 v3, s{I2}, v3")
    a("v_and_b32 v4, 7, v1")
    a("v_min_u32 v4, 5, v4")
    a("v_lshrrev_b32 v5, 1, v4")
    a("v_mul_u32_u24 v5, 448, v5")
    a("v_and_b32 v4, 1, v4")
    a("v_mul_u32_u24 v4, 27, v4")
    a(f"s_mul_i32 s65, s{HEAD}, 28")
    a("v_add3_u32 v4, v4, v5, s65")
    a("v_mul_u32_u24 v4, 683, v4")
    a("v_lshrrev_b32 v4, 16, v4")
    a("v_lshl_add_u32 v4, v3, 4, v4")
    a("v_lshlrev_b32 v7, 7, v4")
    a("""v_lshrrev_b32 v2, 3, v1
    v_and_b32 v3, 7, v1
    v_bfe_u32 v4, v2, 1, 1
    v_lshlrev_b32 v4, 2, v4
    v_xor_b32 v5, v3, v4
    v_mul_u32_u24 v6, 2688, v2
    v_lshl_add_u32 v8, v5, 4, v6
    v_mul_u32_u24 v6, 3584, v2
    v_lshl_add_u32 v10, v5, 4, v6
    v_mul_u32_u24 v6, 896, v2
    v_lshl_add_u32 v12, v5, 4, v6""")
    a(f"v_add_u32 v9, {8*2688 - 1024}, v8")
    a(f"v_add_u32 v11, {8*3584 - 1024}, v10")
    a(f"v_add_u32 v13, {8*896 - 1024}, v12")
    a("""v_lshrrev_b32 v2, 2, v1
    v_and_b32 v3, 3, v1
    v_mul_u32_u24 v6, 2688, v2
    v_lshl_add_u32 v14, v3, 4, v6""")
    a(f"""s_mul_i32 s64, s{JJ}, 192
    s_and_b32 s65, s{JJ}, 1
    s_lshl_b32 s66, s65, 6
    s_add_u32 s66, s64, s66
    s_xor_b32 s65, s65, 1
    s_lshl_b32 s65, s65, 7
    s_add_u32 s64, s64, s65""")
    a(f"s_mul_i32 s65, s{WV}, {16*2688}")
    a("s_add_u32 s64, s64, s65")
    a("s_add_u32 s66, s66, s65")
    a(f"s_mul_i32 s67, s{WV}, {16*3584}")
    a(f"s_lshl_b32 s87, s{JJ}, 8")
    a("s_add_u32 s67, s67, s87")
    a("s_add_u32 s68, s67, 128")
    a(f"s_lshl_b32 s69, s{WV}, 10")
    a(f"s_lshl_b32 s70, s{WV}, 11")
    a("""v_and_b32 v2, 15, v1
    v_bfe_u32 v3, v1, 4, 1
    v_lshrrev_b32 v4, 2, v2
    v_bfe_u32 v5, v2, 1, 1
    v_lshl_add_u32 v5, v3, 1, v5
    v_bfe_u32 v6, v2, 3, 1
    v_lshlrev_b32 v6, 2, v6
    v_xor_b32 v5, v5, v6
    v_lshl_add_u32 v4, v24, 2, v4
    v_lshlrev_b32 v4, 7, v4
    v_and_b32 v6, 1, v2
    v_lshl_add_u32 v4, v6, 3, v4
    v_lshl_add_u32 v2, v5, 4, v4
    v_xor_b32 v5, 4, v5
    v_lshl_add_u32 v3, v5, 4, v4""")
    a(f"s_mul_i32 s71, s{WV}, 7168");  a(f"s_add_u32 s71, s71, {P4}")
    a(f"s_lshl_b32 s72, s{WV}, 12");   a(f"s_add_u32 s72, s72, {MSLOT}")
    a(f"s_mul_i32 s73, s{WV}, 14336"); a(f"s_add_u32 s73, s73, {P2}")
    for k, sg in enumerate((71, 72, 73)):
        a(f"v_add_u32 v{17+2*k if k < 2 else 25}, s{sg}, v2")
        a(f"v_add_u32 v{18+2*k if k < 2 else 26}, s{sg}, v3")
    a(f"s_lshl_b32 s74, s{CB}, 7")
    a(f"s_mul_i32 s75, s{WV}, {16*896}")
    a("s_add_u32 s75, s75, s74")
    a(f"s_lshl_b32 s84, s{CB}, 1" if OPT.get('hrot', 1) else "s_mov_b32 s84, 0")
    a(f"s_mul_i32 s65, s84, {128*896}")
    a("s_add_u32 s75, s75, s65")
    a(f"s_sub_u32 s85, s75, {14*128*896}")
    a(f"s_mul_i32 s76, s{WV}, {7*16*896}")
    a("s_add_u32 s76, s76, s74")
    a(f"s_mul_i32 s77, s{RB}, {2*H_T}")
    a("s_add_u32 s77, s77, s69")
    a(f"s_add_u32 s77, s77, {WS_H}")
    a("s_lshl_b32 s65, s84, 13")
    a("s_add_u32 s77, s77, s65")
    a(f"s_sub_u32 s86, s77, {14*8192}")
    a(f"v_add_u32 v23, {H_T}, v22")
    a(f"s_mul_i32 s78, s{RB}, {2*O_T}")
    a(f"s_mul_i32 s65, s{WV}, 7168")
    a("s_add_u32 s78, s78, s65")
    a(f"s_add_u32 s78, s78, {WS_O}")
    a("v_and_b32 v6, 15, v1")
    a("v_min_u32 v4, 13, v6")
    a("v_lshlrev_b32 v4, 7, v4")
    a("v_lshlrev_b32 v6, 7, v6")
    a(f"s_lshr_b32 s79, s{RB}, 1")
    a("s_lshl_b32 s79, s79, 11")
    a(f"s_add_u32 s79, s79, {FLG + 0x8000}")
    a("s_add_u32 s80, s79, 0x8000")
    a("s_add_u32 s81, s79, 0x10000")
    a(f"s_mov_b32 s82, {FLG}")
    a("v_lshlrev_b32 v15, 2, v1")
    a(f"ds_read_b32 v2, v27 offset:{4*NONCE}")
    a("s_waitcnt lgkmcnt(0)")
    a(f"v_readfirstlane_b32 s{NON}, v2")

    def single_dma(n):
        return [f"s_mul_i32 s65, s{KB+n}, {64*2688}", "s_add_u32 s65, s65, s64", f"s_add_u32 m0, s69, {UB[1] + n*4096}",
                "buffer_load_dwordx4 v14, s[12:15], s65 offen lds ; @u1"]
    def pair_dma(n, u):
        rs, sr, vo, sb = {0: (3584, 16, 10, 67), 2: (2688, 12, 8, 66), 3: (3584, 16, 10, 68)}[u]
        o = [f"s_mul_i32 s65, s{KB+n}, {64*rs}", f"s_add_u32 s65, s65, s{sb}", f"s_add_u32 m0, s70, {UB[u] + n*8192}"]
        for p in range(2):
            o.append(f"buffer_load_dwordx4 v{vo+p}, s[{sr}:{sr+3}], s65 offen offset:{p*1024} lds ; @u{u}")
        return o
    SL = [(72, m*2048, 19) for m in range(2)] + [(71, e*2048, 17) for e in range(3)] + [(73, l*2048, 25) for l in range(7)]
    smap, wblk = {}, {}
    def w_dma(s, sl):
        smap[s] = sl
        sg, c, _ = SL[sl]
        if s < 28:
            off = ((s % 14) * 8 + (4 if s >= 14 else 0)) * 16 * 896
            o = [f"s_cmp_ge_u32 s84, {14 - s % 14}", "s_cselect_b32 s65, s85, s75", f"s_add_u32 s65, s65, {off}"]
        else: o = [f"s_add_u32 s65, s76, {(s - 28) * 16 * 896}"]
        o.append(f"s_add_u32 m0, s{sg}, {c}")
        sr = 28 if s < 28 else 32
        for p in range(2):
            o.append(f"buffer_load_dwordx4 v{12+p}, s[{sr}:{sr+3}], s65 offen offset:{p*1024} lds ; @d{s}")
        return o
    def w_read(s, b):
        wblk[s] = b
        _, c, ad = SL[smap[s]]; o = []
        for ct in range(2):
            o.append(f"ds_read_b64_tr_b16 {vr(b+4*ct, 2)}, v{ad+ct} offset:{c} ; @r{s}")
            o.append(f"ds_read_b64_tr_b16 {vr(b+4*ct+2, 2)}, v{ad+ct} offset:{c + 1024} ; @r{s}")
        return o
    pool = list(BLK)
    def regstep(s, nxt):
        a(f"WAITV d{s}")
        a.extend(w_read(s, pool.pop()))
        a("s_waitcnt lgkmcnt(0)")
        if nxt is not None: a.extend(w_dma(nxt, smap[s]))
    def kv_stage(slp):
        a(f"s_lshl_b32 s88, s{I2}, 2")
        a(f"s_mul_i32 s89, s{WV}, 3")
        a("s_add_u32 s89, s89, s88")
        a(f"s_mul_i32 s90, s{WV}, 6144")
        a("v_and_b32 v2, 31, v1")
        a("v_lshl_add_u32 v2, v2, 3, s90")
        a("v_mov_b32 v9, 0")
        for k in range(3):
            a(f"s_add_u32 s65, s89, {k}")
            a("s_cmp_lt_u32 s65, 8")
            a("s_cselect_b32 s65, 0xf149, 0")
            a("v_mov_b32 v8, s65")
            a(f"ds_write_b64 v2, v[8:9] offset:{LK + k*2048 + 1792}")
        a("v_and_b32 v2, 31, v1")
        a("v_lshl_add_u32 v2, v2, 3, s70")
        a("v_mov_b32 v8, 0x3f80")
        a(f"ds_write_b64 v2, v[8:9] offset:{LQ + 1792}")
        a("""v_and_b32 v2, 3, v1
        v_cmp_eq_u32 vcc, 0, v2
        v_mov_b32 v3, 0x3f803f80
        v_cndmask_b32 v8, 0, v3, vcc
        v_mov_b32 v9, v8
        v_mov_b32 v10, v8
        v_mov_b32 v11, v8
        v_lshrrev_b32 v3, 2, v1
        v_lshlrev_b32 v3, 9, v3
        v_lshl_add_u32 v3, v2, 4, v3
        v_add_u32 v3, s90, v3
        s_mov_b32 exec_hi, 0xffff""")
        a(f"ds_write_b128 v3, v[8:11] offset:{LV + 448}")
        a("s_mov_b64 exec, -1")
        gpoll(a, 7, 82, False, slp)
        st()
        a(f"s_mul_i32 s91, s{HEAD}, 1792")
        a(f"s_add_u32 s65, s88, s{WV}")
        a(f"s_mul_i32 s65, s65, {QK_T}")
        a("s_add_u32 s65, s65, s91")
        a(f"s_add_u32 m0, s70, {LQ}")
        a("buffer_load_dwordx4 v22, s[24:27], s65 offen sc1 lds")
        a("s_mov_b32 exec_hi, 0xffff")
        a("buffer_load_dwordx4 v22, s[24:27], s65 offen offset:1024 sc1 lds")
        a("s_mov_b64 exec, -1")
        for k in range(3):
            a(f"s_add_u32 s92, s89, {k}")
            a("s_sub_u32 s93, s92, 8")
            a(f"s_mul_i32 s65, s93, {QK_T}")
            a("s_add_u32 s65, s65, s91")
            a(f"s_add_u32 s65, s65, {112*256}")
            a(f"s_mul_i32 s93, s93, {V_T}")
            a(f"s_mul_i32 s96, s{HEAD}, 448")
            a("s_add_u32 s93, s93, s96")
            a(f"s_add_u32 s93, s93, {WS_V}")
            a("s_cmp_lt_u32 s92, 8")
            a("s_cselect_b32 s65, 0x7fff0000, s65")
            a("s_cselect_b32 s93, 0x7fff0000, s93")
            a(f"s_add_u32 s92, s93, {14336 - 1024}")
            a(f"s_add_u32 m0, s90, {LK + k*2048}")
            a("buffer_load_dwordx4 v22, s[24:27], s65 offen sc1 lds")
            a("s_mov_b32 exec_hi, 0xffff")
            a("buffer_load_dwordx4 v22, s[24:27], s65 offen offset:1024 sc1 lds")
            a("s_mov_b32 exec_lo, 0x0fffffff")
            a("s_mov_b32 exec_hi, 0x0fffffff")
            a(f"s_add_u32 m0, s90, {LV + k*2048}")
            a("buffer_load_dwordx4 v28, s[24:27], s93 offen sc1 lds")
            a("buffer_load_dwordx4 v28, s[24:27], s92 offen offset:1024 sc1 lds ; @kv")
            a("s_mov_b64 exec, -1")
    a("s_cmp_ge_u32 s56, 28")
    a("s_cbranch_scc1 B_helper")
    a.save("bm")
    a("buffer_load_dword v16, v15, s[20:23], s87 offen ; @bias")
    st()
    if OPT.get('xiss', 3) < 7: lds_wait(a, XISS)
    for n in range(7): a.extend(pair_dma(n, 0))
    for n in range(4): a.extend(single_dma(n))
    a("WAITV u0")
    a.extend(signal(RD0))
    for n in range(4, 7): a.extend(single_dma(n))
    a("v_lshlrev_b32 v2, 16, v16")
    a("v_and_b32 v3, 0xffff0000, v16")
    a(f"v_add_u32 v5, {BIAST}, v21")
    a("ds_write_b64 v5, v[2:3]")
    a(f"v_add_u32 v16, {O_T}, v21")
    st()
    lds_wait(a, FXS)
    for n in range(3): a.extend(pair_dma(n, 2))
    a("WAITV u1")
    a.extend(signal(RD1))
    for n in range(3, 7): a.extend(pair_dma(n, 2))
    a.extend(w_dma(0, 0)); a.extend(w_dma(1, 1))
    a("WAITV u2")
    a.extend(signal(RD2))
    st()
    regstep(0, 2); regstep(1, 3)
    lds_wait(a, FU0)
    for n in range(7): a.extend(pair_dma(n, 3))
    regstep(2, 4); regstep(3, 5)
    a("WAITV u3")
    a.extend(signal(RD3))
    regstep(4, 6); regstep(5, 7)
    lds_wait(a, FU1)
    for k in range(3): a.extend(w_dma(8 + k, 2 + k))
    for s_ in range(6, 14): regstep(s_, s_ + 5)
    st()
    hb = {}
    def h_load(s):
        b = hb[s] = pool.pop(0)
        if s < 28:
            off = (s % 14) * 8192 + (4096 if s >= 14 else 0)
            return [f"s_cmp_ge_u32 s84, {14 - s % 14}", "s_cselect_b32 s65, s86, s77", f"s_add_u32 s65, s65, {off}",
                    f"buffer_load_dwordx4 {vr(b, 4)}, v22, s[24:27], s65 offen {LL()} ; @h{s}",
                    f"buffer_load_dwordx4 {vr(b+4, 4)}, v23, s[24:27], s65 offen {LL()} ; @h{s}"]
        o = [f"s_add_u32 s65, s78, {(s - 28) * 1024}"]
        for rt in range(2):
            for hf in range(2):
                o.append(f"buffer_load_dwordx2 {vr(b+4*rt+2*hf, 2)}, v{21 if rt == 0 else 16}, s[24:27], s65 offen offset:{hf*512} {LL()} ; @h{s}")
        return o
    def mfmas(s):
        for ct in range(2):
            for rt in range(2):
                d = vr(ACC + 16*(2*ct+rt), 16)
                a(f"{MF} {d}, {vr(wblk[s] + 4*ct, 4)}, {vr(hb[s]+4*rt, 4)}, {'0' if s == 0 else d}")
        pool.append(hb[s]); pool.append(wblk[s])
    PD = OPT.get('pd', 8)
    lds_wait(a, AG1)
    a(f"s_sleep {OPT.get('w1', 8)}")
    gpoll(a, 4, 79)
    st()
    nxt = 0
    for s in range(14):
        while nxt <= min(13, s + PD) and pool:
            a.extend(h_load(nxt)); nxt += 1
        a(f"WAITV h{s}")
        mfmas(s)
        if 8 <= s < 13:
            s_ = 14 + (s - 8)
            a.extend(w_read(s_, pool.pop(0)))
        if 9 <= s < 14:
            s_ = 14 + (s - 9)
            a(f"WAITL r{s_}")
            a.extend(w_dma(s_ + 5, smap[s_]))
    st()
    lds_wait(a, AG0)
    kv_stage(None)
    lds_wait(a, FU3)
    for k in range(7): a.extend(w_dma(24 + k, 5 + k))
    a("WAITV kv")
    a.extend(signal(RD4))
    st()
    for s_ in range(19, 24): a.extend(w_read(s_, pool.pop(0))); a("s_waitcnt lgkmcnt(8)")
    a("s_waitcnt lgkmcnt(0)")
    for s_ in range(19, 23): a.extend(w_dma(s_ + 12, smap[s_]))
    XR = pool.pop(); XR2 = pool.pop()
    a("v_subrev_u32 v2, 256, v0")
    a("v_lshrrev_b32 v3, 3, v2")
    a("v_and_b32 v2, 7, v2")
    a("v_mul_u32_u24 v8, 896, v3")
    a("v_lshl_add_u32 v8, v2, 4, v8")
    a("v_lshlrev_b32 v9, 4, v2")
    a(f"s_mul_i32 s88, s{RB}, {64*896}")
    a("s_add_u32 s88, s88, s74")
    a(f"s_add_u32 s89, s88, {32*896}")
    a(f"buffer_load_dwordx4 {vr(XR, 4)}, v8, s[8:11], s88 offen")
    a(f"buffer_load_dwordx4 {vr(XR+4, 4)}, v8, s[8:11], s89 offen")
    a(f"buffer_load_dwordx4 {vr(XR2, 4)}, v9, s[36:39], s74 offen")
    st()
    lds_wait(a, AG2)
    gpoll(a, 4, 80)
    st()
    CK = OPT.get('ck28', 26)
    limit = 27
    bstubs = []
    for s in range(14, NS):
        if s == CK:
            st()
            lds_wait(a, AG3)
            gpoll(a, 6, 81)
            st()
            limit = NS - 1
        while nxt <= min(limit, s + PD) and len(pool) > 2:
            a.extend(h_load(nxt)); nxt += 1
        assert nxt > s
        if s + 1 >= 24 and s + 1 < NS:
            a(f"WAITV d{s+1}")
            a.extend(w_read(s + 1, pool.pop(0)))
        a(f"WAITV h{s}" + (f" WAITL r{s}" if s >= 24 else ""))
        mfmas(s)
    st()
    PITCH = 272
    XB = [b for b in BLK if b not in (XR, XR2)][:3]
    a("v_and_b32 v10, 31, v1")
    a(f"v_mul_u32_u24 v10, {PITCH}, v10")
    a("v_lshl_add_u32 v10, v24, 4, v10")
    a(f"s_mul_i32 s65, s{WV}, {64*PITCH}")
    a("v_add_u32 v10, s65, v10")
    a(f"v_mul_u32_u24 v11, {PITCH}, v3")
    a("v_lshl_add_u32 v11, v2, 5, v11")
    a(f"v_add_u32 v12, {2*64*PITCH}, v11")
    a("s_barrier")
    for ct in range(2):
        for rt in range(2):
            for q in range(4):
                a(f"ds_write_b128 v10, {vr(ACC + 16*(2*ct+rt) + 4*q, 4)} offset:{rt*32*PITCH + ct*128 + q*32}")
            if ct == 1 and rt == 0: a("s_waitcnt lgkmcnt(4)")
    for r in range(8):
        if r & 1: a(f"v_and_b32 v{XB[0]+r}, 0xffff0000, v{XR2 + r//2}")
        else: a(f"v_lshlrev_b32 v{XB[0]+r}, 16, v{XR2 + r//2}")
    for e in range(2):
        for r in range(8):
            xr = XR + 4*e + r//2
            if r & 1: a(f"v_and_b32 v{XB[1+e]+r}, 0xffff0000, v{xr}")
            else: a(f"v_lshlrev_b32 v{XB[1+e]+r}, 16, v{xr}")
        for r in range(0, 8, 2): a(f"v_pk_add_f32 {vr(XB[1+e]+r, 2)}, {vr(XB[1+e]+r, 2)}, {vr(XB[0]+r, 2)}")
    a("s_waitcnt lgkmcnt(0)")
    a("s_barrier")
    for e in range(2):
        for w in range(4):
            for hf in range(2):
                a(f"ds_read_b128 {vr(ACC + 32*e + 8*w + 4*hf, 4)}, v{11 + (w >> 1)} offset:{(w & 1)*64*PITCH + e*32*PITCH + hf*16} ; @e{e}")
        if e == 0: a("s_waitcnt lgkmcnt(4)")
    for e in range(2):
        b = ACC + 32*e
        a(f"WAITL e{e}")
        for r in range(0, 8, 2): a(f"v_pk_add_f32 {vr(b+r, 2)}, {vr(b+r, 2)}, {vr(b+8+r, 2)}")
        for r in range(0, 8, 2): a(f"v_pk_add_f32 {vr(b+16+r, 2)}, {vr(b+16+r, 2)}, {vr(b+24+r, 2)}")
        for r in range(0, 8, 2): a(f"v_pk_add_f32 {vr(b+r, 2)}, {vr(b+r, 2)}, {vr(XB[1+e]+r, 2)}")
        for r in range(0, 8, 2): a(f"v_pk_add_f32 {vr(b+r, 2)}, {vr(b+r, 2)}, {vr(b+16+r, 2)}")
        for r in range(4): a(f"v_cvt_pk_bf16_f32 v{b+r}, v{b+2*r}, v{b+2*r+1}")
        a(f"buffer_store_dwordx4 {vr(b, 4)}, v8, s[40:43], s{88+e} offen sc1")
    st()
    st.dump()
    a("s_endpgm")
    a.label("B_helper"); a.restore("bm")
    a("s_sub_u32 s64, s56, 28")
    a("s_lshl_b32 s64, s64, 3")
    a("s_and_b32 s65, s2, 7")
    a("s_add_u32 s64, s64, s65")
    a("s_lshl_b32 s64, s64, 2")
    a(f"s_add_u32 s64, s64, s{WV}")
    a("v_lshlrev_b32 v2, 7, v1")
    a("s_lshl_b32 s64, s64, 13")
    a("s_add_u32 s65, s64, 0x100000")
    a("buffer_load_dword v42, v2, s[16:19], s64 offen")
    a("buffer_load_dword v43, v2, s[16:19], s65 offen")
    a("buffer_load_dword v44, v2, s[12:15], s64 offen")
    a("buffer_load_dword v45, v2, s[12:15], s65 offen")
    a("buffer_load_dword v46, v2, s[28:31], s64 offen")
    a("buffer_load_dword v47, v2, s[28:31], s65 offen")
    a("buffer_load_dword v48, v2, s[32:35], s64 offen")
    kv_stage(OPT.get('hsl', 32))
    a("WAITV kv")
    a.extend(signal(RD4))
    st.dump()
    a("s_cmp_lg_u32 s2, 255")
    a("s_cbranch_scc1 B_hend")
    a(f"s_cmp_lg_u32 s{WV}, 0")
    a("s_cbranch_scc1 B_hend")
    a("s_mov_b64 exec, -1")
    a("v_lshlrev_b32 v7, 7, v1")
    for k in range(4):
        a(f"s_mov_b32 s82, {FLG + 0x18000 + k*8192}")
        gpoll(a, 7, 82, False, 16)
    a(f"v_mov_b32 v2, s{NON}")
    a("v_mov_b32 v3, 0")
    a(f"s_mov_b32 s65, {WS_FL}")
    a("s_mov_b64 exec, 1")
    a("buffer_store_dword v2, v3, s[24:27], s65 offen sc1")
    a.label("B_hend")
    a("s_endpgm")

def build(path):
    a = Asm()
    a.raw(open("hdr.txt").read().rstrip() if OPT.get('hdr', 0) else "; fused kernel")
    a.raw("; @launch grid=(256,1,1) block=(512,1,1) lds=163840")
    a.raw('.amdgcn_target "amdgcn-amd-amdhsa--gfx950"')
    kernel_header(a, NAME)
    a("s_cmp_ge_u32 s2, 256")
    a("s_cbranch_scc1 K_exit")
    if STAMPS: a("s_memrealtime s[100:101]")
    a("s_load_dwordx16 s[64:79], s[0:1], 0")
    a("s_load_dwordx4 s[80:83], s[0:1], 64")
    a("s_load_dwordx2 s[84:85], s[0:1], 80")
    a("""v_and_b32 v1, 63, v0
    v_lshrrev_b32 v2, 6, v0
    s_and_b32 s3, s2, 7
    v_readfirstlane_b32 s4, v2
    s_lshr_b32 s56, s2, 3
    s_mul_i32 s5, s56, 37
    s_lshr_b32 s5, s5, 8
    s_mul_i32 s6, s5, 7
    s_sub_u32 s6, s56, s6""")
    if OPT.get('loc', 0):
        a(f"""s_lshr_b32 s7, s5, 1
        s_lshl_b32 s{I1}, s3, 1
        s_add_u32 s{I1}, s{I1}, s7
        s_and_b32 s{JJ}, s5, 1
        s_mul_i32 s{JJ}, s{JJ}, 7
        s_add_u32 s{JJ}, s{JJ}, s6
        s_and_b32 s{HEAD}, s56, 15
        s_lshr_b32 s7, s56, 4
        s_lshl_b32 s{I2}, s3, 1
        s_add_u32 s{I2}, s{I2}, s7""")
    else:
        a(f"""s_lshr_b32 s{I1}, s3, 1
        s_lshl_b32 s{I1}, s{I1}, 2
        s_add_u32 s{I1}, s{I1}, s5
        s_and_b32 s{JJ}, s3, 1
        s_mul_i32 s{JJ}, s{JJ}, 7
        s_add_u32 s{JJ}, s{JJ}, s6
        s_and_b32 s{HEAD}, s56, 1
        s_lshl_b32 s7, s3, 1
        s_add_u32 s{HEAD}, s{HEAD}, s7
        s_lshr_b32 s{I2}, s56, 1""")
    a(f"""s_lshl_b32 s{RB}, s3, 2
    s_add_u32 s{RB}, s{RB}, s5
    s_mov_b32 s{CB}, s6
    s_and_b32 s{WV}, s4, 3""")
    a(f"""s_lshl_b32 s57, s{I1}, 1
    s_add_u32 s57, s57, s{JJ}
    s_mul_i32 s7, s57, 37
    s_lshr_b32 s7, s7, 8
    s_mul_i32 s7, s7, 7
    s_sub_u32 s57, s57, s7""")
    for n in range(1, 7):
        a(f"s_add_u32 s{57+n}, s{56+n}, 1")
        a(f"s_cmp_eq_u32 s{57+n}, 7")
        a(f"s_cselect_b32 s{57+n}, 0, s{57+n}")
    a(f"v_mov_b32 v27, {CNT}")
    a("v_mov_b32 v30, 1")
    a("s_waitcnt lgkmcnt(0)")
    srd(a, 8, 64, S * D * 2)
    srd(a, 24, 84, WS_SIZE)
    if STAMPS: srd(a, 44, 82, 256)
    a("s_cmp_ge_u32 s4, 4")
    a("s_cbranch_scc1 B_start")
    a.save("role")
    gen_A(a, [])
    a.label("B_start"); a.restore("role")
    srd(a, 12, 66, D * 3 * D * 2)
    srd(a, 16, 72, D * F * 2)
    srd(a, 20, 74, F * 2)
    srd(a, 28, 76, F * D * 2)
    srd(a, 32, 68, D * D * 2)
    srd(a, 36, 78, D * 2)
    srd(a, 40, 80, S * D * 2)
    gen_B(a)
    a.label("K_exit")
    a("s_endpgm")
    a.label("K_end")
    kernel_desc(a, NAME, 256, 102, 256)
    open(path, "w").write(a.text())
    print("padded nops:", a.padded)

if __name__ == "__main__":
    if len(sys.argv) > 2 and sys.argv[2] == "st": STAMPS = True
    for kv in sys.argv[3:]:
        k, v = kv.split("="); OPT[k] = int(v)
    build(sys.argv[1])
```

```python
import math, struct, sys
from asmlib import *

S, D, F, H, DH = 2048, 448, 1792, 16, 28
WS_QK, WS_V, WS_H, WS_O, WS_FL = 0x0, 0x400000, 0x600000, 0xE00000, 0x1000000
WS_SIZE = 0x1040000
FLG = WS_FL + 0x8000
WS_DBG = 0xF800000
QK_T, V_T, H_T, O_T = 57344, 28672, 114688, 28672
NAME = "parallel_sum__sliding_block__dense_activation_gelu__prompt_kernel"
STAMPS = False
OPT = {}

def f32(x): return "0x%08x" % struct.unpack("<I", struct.pack("<f", x))[0]
LOG2E = 1.4426950408889634
QSCALE = DH ** -0.5 * LOG2E
GC1 = -2.0 * math.sqrt(2.0 / math.pi) * LOG2E
GC2 = GC1 * 0.044715
NEG = -1e30
def vr(b, n): return f"v[{b}:{b+n-1}]"
MF = "v_mfma_f32_32x32x16_bf16"

P0, P1, P2, P3, P4, MISC = 0, 28672, 57344, 86016, 114688, 143360
UB = [P2, P4, P0, P2]
CNT, RRT, BIAST, MSLOT = MISC, MISC + 256, MISC + 1024, MISC + 4096
LK, LV, LQ = 0, 24576, 49152
XISS, FXS, RD0, RD1, RD2, RD3, RD4, FU0, FU1, FU2, FU3, NONCE, AG0, AG1, AG2, AG3, FU1A = range(17)
WV, I1, JJ, HEAD, I2, RB, CB, NON = 48, 49, 50, 51, 52, 53, 54, 55
SPIN = 20000

class Stamper:
    def __init__(self, a): self.a, self.n = a, 0
    def __call__(self, idx=None):
        if idx is not None: self.n = idx
        if STAMPS:
            self.a("s_memtime s[98:99]" if OPT.get('cyc', 0) else "s_memrealtime s[98:99]")
            self.a("s_waitcnt lgkmcnt(0)")
            self.a(f"v_writelane_b32 v31, s98, {self.n}")
        self.n += 1
    def dump(self):
        if not STAMPS: return
        a = self.a
        a("s_memrealtime s[98:99]")
        a("s_waitcnt vmcnt(0) lgkmcnt(0)")
        a("v_writelane_b32 v31, s98, 31")
        a("v_writelane_b32 v31, s100, 30")
        a("s_mov_b32 s26, 0x10000000")
        a("s_lshl_b32 s96, s2, 3")
        a("v_lshrrev_b32 v2, 6, v0")
        a("v_add_u32 v2, s96, v2")
        a("v_lshlrev_b32 v2, 5, v2")
        a("v_add_lshl_u32 v2, v2, v1, 2")
        a(f"s_mov_b32 s96, {WS_DBG}")
        a("s_mov_b32 exec_hi, 0")
        a("buffer_store_dword v31, v2, s[24:27], s96 offen")
        if OPT.get('dd', -1) >= 0:
            L = a.newlabel("DD")
            a(f"s_cmp_lg_u32 s2, {OPT.get('dw', 100)}")
            a(f"s_cbranch_scc1 {L}")
            a(f"s_cmp_lg_u32 s4, {OPT['dd']}")
            a(f"s_cbranch_scc1 {L}")
            a("v_subrev_u32 v3, s100, v31")
            a("v_lshlrev_b32 v2, 2, v1")
            a("buffer_store_dword v3, v2, s[44:47], 0 offen")
            a.label(L)

def LS(): return '' if OPT.get('loc', 0) > 1 else 'sc1'

def LL(): return ['sc1', '', 'nt', 'sc0'][OPT.get('ll', 0)]

def nonce(a):
    a("s_waitcnt lgkmcnt(0)")
    a(f"s_mul_i32 s{NON}, s44, 0x9E3779B1")
    a(f"s_add_u32 s{NON}, s{NON}, 0x7F4A7C15")

def merge(main, fill, skip=0, last=0):
    if OPT.get('noepi', 0): fill = [g for g in fill if any('buffer_store' in x for x in g)]
    if OPT.get('nost', 0): fill = [g for g in fill[:-1] if not g[0].startswith('buffer_store')] + fill[-1:]
    slots = [i for i, m in enumerate(main) if m.startswith('v_mfma')]
    slots = slots[skip:len(slots) - last]
    out, k, n = [], 0, len(fill)
    pos = {s: j for j, s in enumerate(slots)}
    for i, m in enumerate(main):
        out.append(m)
        if i in pos:
            tgt = (n * (pos[i] + 1)) // len(slots)
            while k < tgt:
                out.extend(fill[k]); k += 1
    for g in fill[k:]: out.extend(g)
    return out

def signal(c):
    return ["s_mov_b64 exec, 1", f"ds_add_u32 v27, v30 offset:{4*c}", "s_mov_b64 exec, -1"]

def lds_wait(a, c, n=4):
    L = a.newlabel("LW")
    a("s_mov_b32 s95, 0")
    a.label(L)
    a(f"ds_read_b32 v29, v27 offset:{4*c}")
    a("s_add_u32 s95, s95, 1")
    a("s_lshr_b32 s94, s95, 18")
    a("s_waitcnt lgkmcnt(0)")
    a("v_readfirstlane_b32 s97, v29")
    a("s_add_u32 s97, s97, s94")
    a(f"s_cmp_ge_u32 s97, {n}")
    a(f"s_cbranch_scc1 {L}_d")
    a(f"s_sleep {OPT.get('lsl', 2)}")
    a(f"s_branch {L}")
    a.label(f"{L}_d")

def gen_A(a, stubs):
    st = Stamper(a)
    XF, A0, A1 = 128, 64, 96
    RING = [48, 56, 240, 248]
    KB = 57
    st()
    a("s_setprio 2")
    a("v_lshrrev_b32 v24, 5, v1")
    a("v_lshlrev_b32 v21, 3, v1")
    a("v_lshlrev_b32 v22, 4, v1")
    a("v_mov_b32 v5, 0")
    a("s_cmp_ge_u32 s56, 28")
    a("s_cbranch_scc1 A_helper")
    a(f"s_lshl_b32 s86, s{I1}, 2")
    a(f"s_add_u32 s86, s86, s{WV}")
    a("""v_lshrrev_b32 v2, 3, v1
    v_and_b32 v3, 7, v1
    v_lshrrev_b32 v4, 1, v2
    v_xor_b32 v5, v3, v4
    v_mul_u32_u24 v6, 896, v2
    v_lshl_add_u32 v8, v5, 4, v6
    v_xor_b32 v5, 4, v5
    v_lshl_add_u32 v9, v5, 4, v6""")
    a(f"v_add_u32 v9, {8*896 - 1024}, v9")
    a(f"v_add_u32 v10, {16*896 - 2048}, v8")
    a(f"v_add_u32 v11, {16*896 - 2048}, v9")
    a("s_mul_i32 s87, s86, 28672")
    a(f"s_mul_i32 s88, s{WV}, 14336")
    def x_dma(n):
        o = [f"s_lshl_b32 s89, s{KB+n}, 7", "s_add_u32 s89, s89, s87", f"s_add_u32 m0, s88, {(n % 3)*4096}"]
        for rg in range(4):
            o.append(f"buffer_load_dwordx4 v{8+rg}, s[8:11], s89 offen offset:{rg*1024} lds ; @x{n}")
        return o
    for n in range(3): a.extend(x_dma(n))
    a("""v_and_b32 v2, 31, v1
    v_bfe_u32 v3, v2, 1, 3
    v_lshlrev_b32 v4, 7, v2
    v_add_u32 v4, s88, v4""")
    for q in range(4):
        a(f"v_add_u32 v5, {2*q}, v24")
        a("v_xor_b32 v5, v5, v3")
        a(f"v_lshl_add_u32 v{12+q}, v5, 4, v4")
    a("""v_and_b32 v2, 15, v1
    v_bfe_u32 v3, v1, 4, 1
    v_lshrrev_b32 v4, 2, v2
    v_bfe_u32 v5, v2, 1, 1
    v_lshl_add_u32 v5, v3, 1, v5
    v_bfe_u32 v6, v2, 3, 1
    v_lshlrev_b32 v6, 2, v6
    v_xor_b32 v5, v5, v6
    v_lshlrev_b32 v7, 10, v24
    v_lshl_add_u32 v7, v4, 7, v7
    v_and_b32 v6, 1, v2
    v_lshl_add_u32 v7, v6, 3, v7
    v_lshl_add_u32 v16, v5, 4, v7
    v_xor_b32 v5, 4, v5
    v_lshl_add_u32 v17, v5, 4, v7
    v_lshl_add_u32 v7, v24, 3, v4
    v_lshlrev_b32 v7, 6, v7
    v_lshl_add_u32 v7, v3, 5, v7
    v_and_b32 v6, 3, v2
    v_lshl_add_u32 v20, v6, 3, v7""")
    a(f"v_add_u32 v20, {UB[1]}, v20")
    a(f"v_add_u32 v18, {UB[0]}, v16")
    a(f"v_add_u32 v19, {UB[0]}, v17")
    a("""v_and_b32 v2, 31, v1
    v_mul_u32_u24 v23, 7168, v24
    v_lshl_add_u32 v23, v2, 4, v23""")
    a(f"v_lshlrev_b32 v28, 4, v24")
    a(f"v_add_u32 v28, {BIAST}, v28")
    a(f"""s_mul_i32 s64, s{JJ}, 192
    s_and_b32 s65, s{JJ}, 1
    s_lshl_b32 s66, s65, 6
    s_add_u32 s66, s64, s66
    s_xor_b32 s65, s65, 1
    s_lshl_b32 s65, s65, 7
    s_add_u32 s64, s64, s65""")
    a(f"s_mul_i32 s65, s86, {QK_T}")
    a("s_lshl_b32 s67, s64, 5"); a("s_add_u32 s67, s67, s65")
    a("s_lshl_b32 s68, s66, 5"); a("s_add_u32 s68, s68, s65")
    a(f"s_mul_i32 s65, s86, {V_T}")
    a(f"s_add_u32 s65, s65, {WS_V - 2*896*8}")
    a("s_lshl_b32 s69, s64, 3"); a("s_add_u32 s69, s69, s65")
    a("s_add_u32 s70, s69, 14336")
    a("s_lshl_b32 s71, s66, 3"); a("s_add_u32 s71, s71, s65")
    a("s_add_u32 s72, s71, 14336")
    a(f"s_mul_i32 s73, s86, {H_T}")
    a(f"s_lshl_b32 s65, s{JJ}, 13")
    a("s_add_u32 s73, s73, s65")
    a(f"s_add_u32 s73, s73, {WS_H}")
    a("s_add_u32 s74, s73, 4096")
    a(f"s_lshl_b32 s75, s{I1}, 4")
    a(f"s_add_u32 s75, s75, s{JJ}")
    a("s_lshl_b32 s75, s75, 7")
    a(f"s_add_u32 s75, s75, {FLG}")
    a("s_add_u32 s76, s75, 0x8000")
    a("s_add_u32 s77, s75, 0x10000")
    a("s_mov_b32 s78, 0x3f803f80")
    for q in range(4): a(f"v_mov_b32 v{32+q}, 0")
    nonce(a)
    a("s_barrier")
    st()
    for n in range(7):
        a(f"WAITV x{n}")
        for q in range(4):
            a(f"ds_read_b128 {vr(XF + 16*n + 4*q, 4)}, v{12+q} offset:{(n % 3)*4096}")
        if n >= 1:
            for d in range(16*(n-1), 16*n):
                a(f"v_dot2c_f32_bf16 v{32 + (d & 1)}, s78, v{XF+d}")
                a(f"v_dot2c_f32_bf16 v{34 + (d & 1)}, v{XF+d}, v{XF+d}")
        a("s_waitcnt lgkmcnt(0)")
        if n + 3 < 7: a.extend(x_dma(n + 3))
        if n == OPT.get('xiss', 3): a.extend(signal(XISS))
    a.extend(signal(FXS))
    st()
    for d in range(96, 112):
        a(f"v_dot2c_f32_bf16 v{32 + (d & 1)}, s78, v{XF+d}")
        a(f"v_dot2c_f32_bf16 v{34 + (d & 1)}, v{XF+d}, v{XF+d}")
    a("""v_add_f32 v32, v32, v33
    v_add_f32 v34, v34, v35
    v_mov_b32 v33, v32
    v_mov_b32 v35, v34
    v_permlane32_swap_b32 v32, v33
    v_permlane32_swap_b32 v34, v35
    v_add_f32 v32, v32, v33
    v_add_f32 v34, v34, v35""")
    a(f"v_mul_f32 v32, {f32(1.0/448)}, v32")
    a(f"v_mul_f32 v34, {f32(1.0/448)}, v34")
    a("v_fma_f32 v34, -v32, v32, v34")
    a("v_cvt_pk_bf16_f32 v33, v32, v32")
    a("v_and_b32 v33, 0xffff0000, v33")
    a("v_sub_f32 v7, 0, v33")
    a("v_max_f32 v34, 0, v34")
    a("v_cvt_pk_bf16_f32 v34, v34, v34")
    a("v_and_b32 v34, 0xffff0000, v34")
    a(f"v_add_f32 v34, {f32(1e-5)}, v34")
    a("v_cvt_pk_bf16_f32 v34, v34, v34")
    a("v_and_b32 v34, 0xffff0000, v34")
    a("v_sqrt_f32 v34, v34")
    a("v_cvt_pk_bf16_f32 v34, v34, v34")
    a("v_and_b32 v34, 0xffff0000, v34")
    a("v_rcp_f32 v25, v34")
    a("v_and_b32 v2, 31, v1")
    a(f"s_lshl_b32 s65, s{WV}, 7")
    a(f"s_add_u32 s65, s65, {RRT}")
    a("v_lshl_add_u32 v2, v2, 2, s65")
    a("ds_write_b32 v2, v25")
    a("v_lshl_add_u32 v12, v24, 4, s65")
    a(f"v_mov_b32 v6, s{NON}")
    a("s_mov_b32 s78, 0x00003f80")
    a("s_mov_b32 s79, 0x3f800000")
    for d0 in range(0, 112, 4):
        for d in range(d0, d0 + 4):
            a(f"v_dot2_f32_bf16 v{64 + 2*(d & 7)}, v{XF+d}, s78, v7")
            a(f"v_dot2_f32_bf16 v{65 + 2*(d & 7)}, v{XF+d}, s79, v7")
        if d0 >= 4:
            for d in range(d0 - 4, d0):
                a(f"v_cvt_pk_bf16_f32 v{XF+d}, v{64 + 2*(d & 7)}, v{65 + 2*(d & 7)}")
    a(f"v_mul_f32 v4, {f32(QSCALE)}, v25")
    a("s_cmp_lt_u32 s64, 896")
    a("s_cselect_b64 vcc, -1, 0")
    a("v_cndmask_b32 v2, v25, v4, vcc")
    a("s_cmp_lt_u32 s66, 896")
    a("s_cselect_b64 vcc, -1, 0")
    a("v_cndmask_b32 v3, v25, v4, vcc")
    for d in range(108, 112):
        a(f"v_cvt_pk_bf16_f32 v{XF+d}, v{64 + 2*(d & 7)}, v{65 + 2*(d & 7)}")
    a(f"s_mov_b32 s78, {f32(GC2)}")
    a(f"v_mov_b32 v26, {f32(GC1)}")
    a("v_mov_b32 v5, 0")
    st()
    lds_wait(a, RD0)
    st()

    LA = 3
    units = [28, 14, 28, 28]
    seq = [(u, s) for u, n in enumerate(units) for s in range(n)]
    start = [0, 28, 42, 70]
    UACC = [(64, 80), (96, 96), (64, 80), (96, 112)]
    def reads(g):
        u, s = seq[g]; b = RING[g % 4]; o = []
        for T in range(2):
            if u == 1: ad, off, sec = 20, (2*s + T) * 1024, 256
            else: ad, off, sec = (16 if u == 2 else 18) + T, s * 2048, 512
            o.append(f"ds_read_b64_tr_b16 {vr(b + 4*T, 2)}, v{ad} offset:{off} ; @w{g}")
            o.append(f"ds_read_b64_tr_b16 {vr(b + 4*T + 2, 2)}, v{ad} offset:{off + sec} ; @w{g}")
        return o
    def check(c):
        L = a.newlabel("AC")
        stubs.append((L, c))
        return [f"WAITL f{c}", "v_readfirstlane_b32 s97, v29", "s_cmp_lt_u32 s97, 4", f"s_cbranch_scc1 {L}", f"{L}_r:"]
    def unit(u, normal):
        o = []
        n = units[u]
        for s in range(n):
            g = start[u] + s
            if u < 3 and s == n - LA - 4: o.append(f"ds_read_b32 v29, v27 offset:{4*(RD1+u)} ; @f{RD1+u}")
            if u < 3 and s == n - LA: o.extend(check(RD1 + u))
            if g + LA < len(seq): o.extend(reads(g + LA))
            o.append(f"WAITL w{g}")
            if s == n - 1: o.extend(signal(FU0 + u))
            for T in range(2):
                w = vr(RING[g % 4] + 4*T, 4)
                d = vr(UACC[u][T], 16)
                if u == 1: x, first = vr(XF + 4*(2*s + T), 4), (s == 0 and T == 0)
                else: x, first = vr(XF + 4*s, 4), s == 0
                A, B = (x, w) if normal else (w, x)
                o.append(f"{MF} {d}, {A}, {B}, {'0' if first else d}")
        return o
    def rr_read():
        return [[f"ds_read_b128 {vr(32 + 4*q, 4)}, v12 offset:{32*q} ; @rr" for q in range(4)], [], [], [], ["WAITL rr"]]
    def epi_qk(b, T, sc, soff):
        o = []
        for q in range(4):
            for r in range(4*q, 4*q+4): o.append([f"v_mul_f32 v{b+r}, v{b+r}, v{sc}"])
            for r in range(2): o.append([f"v_cvt_pk_bf16_f32 v{b+4*q+r}, v{b+4*q+2*r}, v{b+4*q+2*r+1}"])
            o.append([f"buffer_store_dwordx2 {vr(b+4*q, 2)}, v21, s[24:27], s{soff} offen offset:{T*2048 + q*512} sc1 ; @qkv"])
        return o
    def epi_v(b, T, soff):
        o = []
        for f in range(2):
            for r in range(8*f, 8*f+8): o.append([f"v_mul_f32 v{b+r}, v{b+r}, v{32+r}"])
            for r in range(4): o.append([f"v_cvt_pk_bf16_f32 v{b+8*f+r}, v{b+8*f+2*r}, v{b+8*f+2*r+1}"])
            o.append([f"buffer_store_dwordx4 {vr(b+8*f, 4)}, v23, s[24:27], s{soff+f} offen offset:{T*512} sc1 ; @qkv"])
        return o
    def epi_h(b, T, tl, soff, packed, tag):
        o = []
        for f in range(2):
            R = range(8*f, 8*f+8); t = lambda r: 32 + r
            o.append([f"ds_read_b128 {vr(32+8*f+4*q, 4)}, v28 offset:{tl*128 + (2*f+q)*32} ; @b{tl}{f}" for q in range(2)])
        for f in range(2):
            R = range(8*f, 8*f+8); t = lambda r: 32 + r
            o.append([f"WAITL b{tl}{f}"])
            if packed:
                R2 = range(8*f, 8*f+8, 2); p2 = lambda x: vr(x, 2)
                for r in R2: o.append([f"v_pk_fma_f32 {p2(b+r)}, {p2(b+r)}, v[8:9], {p2(t(r))}"])
                for r in R2: o.append([f"v_pk_mul_f32 {p2(t(r))}, {p2(b+r)}, {p2(b+r)}"])
                for r in R2: o.append([f"v_pk_fma_f32 {p2(t(r))}, {p2(t(r))}, v[10:11], v[12:13]"])
                for r in R2: o.append([f"v_pk_mul_f32 {p2(t(r))}, {p2(t(r))}, {p2(b+r)}"])
                for r in R: o.append([f"v_exp_f32 v{t(r)}, v{t(r)}"])
                for r in R2: o.append([f"v_pk_add_f32 {p2(t(r))}, {p2(t(r))}, v[14:15]"])
                for r in R: o.append([f"v_rcp_f32 v{t(r)}, v{t(r)}"])
                for r in R2: o.append([f"v_pk_mul_f32 {p2(b+r)}, {p2(b+r)}, {p2(t(r))}"])
            else:
                for r in R: o.append([f"v_fma_f32 v{b+r}, v{b+r}, v25, v{t(r)}"])
                for r in R: o.append([f"v_mul_f32 v{t(r)}, v{b+r}, v{b+r}"])
                for r in R: o.append([f"v_fma_f32 v{t(r)}, v{t(r)}, s78, v26"])
                for r in R: o.append([f"v_mul_f32 v{t(r)}, v{t(r)}, v{b+r}"])
                for r in R: o.append([f"v_exp_f32 v{t(r)}, v{t(r)}"])
                for r in R: o.append([f"v_add_f32 v{t(r)}, 1.0, v{t(r)}"])
                for r in R: o.append([f"v_rcp_f32 v{t(r)}, v{t(r)}"])
                for r in R: o.append([f"v_mul_f32 v{b+r}, v{b+r}, v{t(r)}"])
            for r in range(4): o.append([f"v_cvt_pk_bf16_f32 v{b+8*f+r}, v{b+8*f+2*r}, v{b+8*f+2*r+1}"])
            o.append([f"buffer_store_dwordx4 {vr(b+8*f, 4)}, v22, s[24:27], s{soff} offen offset:{(2*T+f)*1024} {LS()} ; @{tag}"])
        return o
    def flag(kind, tag):
        L = a.newlabel("FG")
        o = [f"WAITV {tag}", "s_mov_b64 exec, 1", f"ds_add_rtn_u32 v4, v27, v30 offset:{4*(AG0+kind)} ; @{'nocount' if kind == 2 else 'ag%d' % kind}", "s_mov_b64 exec, -1"]
        st_ = ["s_mov_b64 exec, 1", f"buffer_store_dword v6, v5, s[24:27], s{75 + kind if kind < 3 else 68} offen {LS() if kind in (1, 2) else 'sc1'} ; @nocount"]
        p = [f"WAITL ag{kind}" if kind != 2 else "s_waitcnt lgkmcnt(0)", "v_readfirstlane_b32 s97, v4", "s_cmp_lg_u32 s97, 3", f"s_cbranch_scc1 {L}"] + st_ + ["s_mov_b64 exec, -1", f"{L}:"]
        return o, p
    def at(main, grp, k):
        n = sum(1 for m in main if m.startswith('v_mfma'))
        return merge(main, [grp], skip=k, last=n - k - 1)
    def path(sv, pv):
        for g in range(LA): a.extend(reads(g))
        a.extend(merge(unit(0, pv), rr_read() if pv else [], skip=40))
        st(5)
        e0 = (epi_v(64, 0, 71) + epi_v(80, 1, 71)) if pv else (epi_qk(64, 0, 3, 68) + epi_qk(80, 1, 3, 68))
        a.extend(merge(unit(1, sv), e0, skip=3, last=2))
        st()
        e1 = epi_v(96, 0, 69) if sv else epi_qk(96, 0, 2, 67)
        f0 = flag(0, "qkv")
        u2 = merge(unit(2, False), e1, skip=3, last=46)
        k0 = OPT.get('f0at', 50)
        a.extend(at(at(u2, f0[0], k0), f0[1], k0 + 4))
        st()
    a.save("p")
    a(f"s_cmp_ge_u32 s{JJ}, 10")
    a("s_cbranch_scc1 A_pc")
    a(f"s_cmp_eq_u32 s{JJ}, 9")
    a("s_cbranch_scc1 A_pb")
    path(False, False)
    a("s_branch A_join")
    a.label("A_pb"); a.restore("p")
    path(False, True)
    a("s_branch A_join")
    a.label("A_pc"); a.restore("p")
    path(True, True)
    a.label("A_join")
    a.extend(merge(unit(3, False), epi_h(64, 0, 0, 73, False, "h1") + epi_h(80, 1, 1, 73, False, "h1"), skip=3, last=OPT.get('u3l', 14)))
    st()
    a("v_mov_b32 v8, v25"); a("v_mov_b32 v9, v25")
    a("v_mov_b32 v10, s78"); a("v_mov_b32 v11, s78")
    a("v_mov_b32 v12, v26"); a("v_mov_b32 v13, v26")
    a("v_mov_b32 v14, 1.0"); a("v_mov_b32 v15, 1.0")
    e3 = epi_h(96, 0, 2, 74, True, "h2") + epi_h(112, 1, 3, 74, True, "h2")
    f1 = flag(1, "h1")
    hp = len(e3) * OPT.get('f1at', 30) // 100
    for g in e3[:hp]: a.extend(g)
    a.extend(f1[0])
    for g in e3[hp:hp+10]: a.extend(g)
    a.extend(f1[1])
    for g in e3[hp+10:]: a.extend(g)
    a("s_mov_b32 s79, 0")
    st()
    a("s_branch A_attn")
    a.label("A_helper")
    a("s_mov_b32 s79, 1")
    nonce(a)
    a("s_barrier")
    a(f"v_mov_b32 v6, s{NON}")
    a.label("A_attn")
    SR, QF, OA, PB = 96, 40, 48, 64
    KV = [80, 88, 240, 248]
    a("v_and_b32 v12, 31, v1")
    a(f"v_mov_b32 v2, {f32(NEG)}")
    a("v_lshlrev_b32 v3, 2, v24")
    a("v_sub_u32 v3, v12, v3")
    for r in range(16):
        key = 8 * (r >> 2) + (r & 3)
        a(f"v_cmp_le_i32 vcc, {key}, v3")
        a(f"v_cndmask_b32 v{SR+128+r}, v2, 0, vcc")
        a(f"v_cndmask_b32 v{SR+r}, 0, v2, vcc")
    a(f"s_lshl_b32 s64, s{WV}, 11")
    a("v_add_u32 v14, s64, v21")
    a("v_add_u32 v15, s64, v22")
    a(f"v_add_u32 v15, {LV}, v15")
    a("v_mov_b32 v32, 0x3f803f80")
    for r in (33, 34, 35, 37, 38, 39): a(f"v_mov_b32 v{r}, 0")
    a(f"s_lshl_b32 s66, s{I2}, 2")
    a(f"s_add_u32 s66, s66, s{WV}")
    a(f"s_mul_i32 s67, s66, {O_T}")
    a(f"s_mul_i32 s68, s{HEAD}, 1792")
    a("s_add_u32 s67, s67, s68")
    a(f"s_add_u32 s67, s67, {WS_O}")
    a(f"s_lshl_b32 s68, s{I2}, 4")
    a(f"s_add_u32 s68, s68, s{HEAD}")
    a("s_lshl_b32 s68, s68, 7")
    a(f"s_add_u32 s68, s68, {FLG + 0x18000}")
    a(f"ds_read_b32 v29, v27 offset:{4*RD4}")
    a("s_waitcnt lgkmcnt(0)")
    a("v_readfirstlane_b32 s97, v29")
    a("s_cmp_ge_u32 s97, 4")
    a("s_cbranch_scc1 A_kvok")
    a("s_cmp_lg_u32 s79, 0")
    a("s_cbranch_scc1 A_nof")
    f2 = flag(2, "h2")
    a.extend(f2[0]); a.extend(f2[1])
    a("s_mov_b32 s79, 1")
    a.label("A_nof")
    lds_wait(a, RD4)
    a.label("A_kvok")
    st()
    for f in range(2):
        a(f"ds_read2st64_b64 {vr(QF + 4*f, 4)}, v14 offset0:{LQ//512 + 2*f} offset1:{LQ//512 + 2*f + 1} ; @q")
    def kread(s): return [f"ds_read2st64_b64 {vr(KV[s % 4] + 4*f, 4)}, v14 offset0:{4*s + 2*f} offset1:{4*s + 2*f + 1} ; @k{s}" for f in range(2)]
    def vread(s): return [f"ds_read_b128 {vr(KV[(s+1) % 4] + 4*f, 4)}, v15 offset:{2048*s + 1024*f} ; @v{s}" for f in range(2)]
    def maxes(s):
        b = SR + 16*s; o = []
        for r in range(0, 16, 2):
            acc = 8 + ((r >> 1) & 3)
            if s == 0 and r < 8: o.append(f"v_max_f32 v{acc}, v{b+r}, v{b+r+1}")
            else: o.append(f"v_max3_f32 v{acc}, v{b+r}, v{b+r+1}, v{acc}")
        return o
    for s in range(3): a.extend(kread(s))
    for s in range(9):
        if s + 3 < 9: a.extend(kread(s + 3))
        else: a.extend(vread(s + 3 - 9))
        a(f"WAITL k{s}")
        d = vr(SR + 16*s, 16)
        m = maxes(s - 2) if s >= 2 else []
        a(f"{MF} {d}, {vr(KV[s % 4], 4)}, {vr(QF, 4)}, {d if s in (0, 8) else '0'}")
        a.extend(m[:4])
        a(f"{MF} {d}, {vr(KV[s % 4] + 4, 4)}, {vr(QF+4, 4)}, {d}")
        a.extend(m[4:])
    a.extend(maxes(7))
    a("s_cmp_lg_u32 s79, 0")
    a("s_cbranch_scc1 A_nof2")
    f2 = flag(2, "h2")
    a.extend(f2[0]); a.extend([x.replace("WAITL ag2", "s_waitcnt lgkmcnt(0)") for x in f2[1]])
    a.label("A_nof2")
    a.extend(maxes(8))
    a("""v_max3_f32 v2, v8, v9, v10
    v_max_f32 v2, v2, v11
    v_mov_b32 v3, v2
    v_permlane32_swap_b32 v2, v3
    v_max_f32 v2, v2, v3
    v_sub_f32 v2, 0, v2
    v_cvt_pk_bf16_f32 v3, v2, v2
    v_and_b32 v3, 0xffff0000, v3
    v_sub_f32 v3, v2, v3
    v_cvt_pk_bf16_f32 v36, v2, v3
    v_cmp_eq_u32 vcc, 0, v24
    v_cndmask_b32 v36, 0, v36, vcc""")
    st()
    def shift(s): return f"{MF} {vr(SR+16*s, 16)}, v[32:35], v[36:39], {vr(SR+16*s, 16)}"
    a(shift(0)); a(shift(1))
    def pv(s):
        pb = PB + 8*(s & 1)
        return [f"{MF} {vr(OA, 16)}, {vr(KV[(s+1) % 4] + 4*f, 4)}, {vr(pb + 4*f, 4)}, {'0' if (s == 0 and f == 0) else vr(OA, 16)}" for f in range(2)]
    for s in range(9):
        b = SR + 16*s; pb = PB + 8*(s & 1)
        mm = []
        if s + 2 < 9: mm.append(shift(s + 2))
        if s >= 1: mm = [f"WAITL v{s-1}"] + pv(s - 1)[:1] + mm + pv(s - 1)[1:] + (vread(s + 2) if s + 2 < 9 else [])
        ex = [f"v_exp_f32 v{b+r}, v{b+r}" for r in range(16)]
        cv = [f"v_cvt_pk_bf16_f32 v{pb+r}, v{b+2*r}, v{b+2*r+1}" for r in range(8)]
        body = ex[:4]
        k = 0
        chunks = [ex[4:8], ex[8:12], ex[12:16] + cv]
        for x in mm:
            body.append(x)
            if x.startswith(MF) and k < 3:
                body.extend(chunks[k]); k += 1
        for c in chunks[k:]: body.extend(c)
        a.extend(body)
    a("WAITL v8")
    a.extend(pv(8))
    st()
    a(f"v_mov_b32 v2, v{OA+12}")
    a(f"v_mov_b32 v3, v{OA+12}")
    a("v_permlane32_swap_b32 v2, v3")
    a("v_rcp_f32 v3, v3")
    for r in range(16): a(f"v_mul_f32 v{OA+r}, v{OA+r}, v3")
    for r in range(8): a(f"v_cvt_pk_bf16_f32 v{PB+r}, v{OA+2*r}, v{OA+2*r+1}")
    for q in range(4):
        if q == 3: a("s_mov_b32 exec_hi, 0")
        a(f"buffer_store_dwordx2 {vr(PB+2*q, 2)}, v21, s[24:27], s67 offen offset:{q*512} {LS()} ; @o")
    f3 = flag(3, "o")
    a.extend(f3[0]); a.extend(f3[1])
    st()
    st.dump()
    a("s_endpgm")
    for L, c in stubs:
        a.label(L)
        lds_wait(a, c)
        a(f"s_branch {L}_r")

def gpoll(a, va, sg, pre=False, sl=None):
    L = a.newlabel("GP")
    a("s_mov_b32 s96, 0")
    if pre:
        a("WAITV poll")
        a.extend(fcheck(1, 5))
        a(f"s_cbranch_scc1 {L}_d")
    a.label(L)
    a(f"buffer_load_dword v5, v{va}, s[24:27], s{sg} offen sc1 ; @nocount")
    a("s_waitcnt vmcnt(0)")
    a.extend(fcheck(1, 5))
    a(f"s_cbranch_scc1 {L}_d")
    a(f"s_sleep {sl or OPT.get('gsl', 8)}")
    a("s_add_u32 s96, s96, 1")
    a(f"s_cmp_lt_u32 s96, {SPIN}")
    a(f"s_cbranch_scc1 {L}")
    a.label(f"{L}_d")

def fcheck(nreg, base):
    o = []
    if nreg == 4:
        for r in range(4): o.append(f"v_xor_b32 v{base+r}, s{NON}, v{base+r}")
        o.append(f"v_or3_b32 v{base}, v{base}, v{base+1}, v{base+2}")
        o.append(f"v_or_b32 v{base}, v{base}, v{base+3}")
        o.append(f"v_cmp_ne_u32 vcc, 0, v{base}")
    else:
        o.append(f"v_cmp_ne_u32 vcc, s{NON}, v{base}")
    o.append("s_nop 1")
    o.append("s_cmp_eq_u64 vcc, 0")
    return o

def gen_B(a):
    st = Stamper(a)
    KB = 57
    ACC, NS = 32, 35
    BLK = [96 + 8*k for k in range(20)]
    st()
    a("v_lshrrev_b32 v24, 5, v1")
    a("v_lshlrev_b32 v21, 3, v1")
    a("v_lshlrev_b32 v22, 4, v1")
    a("v_and_b32 v2, 31, v1")
    a("v_mul_u32_u24 v28, 7168, v24")
    a("v_lshl_add_u32 v28, v2, 4, v28")
    a("v_lshrrev_b32 v3, 3, v1")
    a(f"s_min_u32 s65, s{I2}, 2")
    a("v_min_u32 v3, s65, v3")
    a(f"v_sub_u32 v3, s{I2}, v3")
    a("v_and_b32 v4, 7, v1")
    a("v_min_u32 v4, 5, v4")
    a("v_lshrrev_b32 v5, 1, v4")
    a("v_mul_u32_u24 v5, 448, v5")
    a("v_and_b32 v4, 1, v4")
    a("v_mul_u32_u24 v4, 27, v4")
    a(f"s_mul_i32 s65, s{HEAD}, 28")
    a("v_add3_u32 v4, v4, v5, s65")
    a("v_mul_u32_u24 v4, 683, v4")
    a("v_lshrrev_b32 v4, 16, v4")
    a("v_lshl_add_u32 v4, v3, 4, v4")
    a("v_lshlrev_b32 v7, 7, v4")
    a("""v_lshrrev_b32 v2, 3, v1
    v_and_b32 v3, 7, v1
    v_bfe_u32 v4, v2, 1, 1
    v_lshlrev_b32 v4, 2, v4
    v_xor_b32 v5, v3, v4
    v_mul_u32_u24 v6, 2688, v2
    v_lshl_add_u32 v8, v5, 4, v6
    v_mul_u32_u24 v6, 3584, v2
    v_lshl_add_u32 v10, v5, 4, v6
    v_mul_u32_u24 v6, 896, v2
    v_lshl_add_u32 v12, v5, 4, v6""")
    a(f"v_add_u32 v9, {8*2688 - 1024}, v8")
    a(f"v_add_u32 v11, {8*3584 - 1024}, v10")
    a(f"v_add_u32 v13, {8*896 - 1024}, v12")
    a("""v_lshrrev_b32 v2, 2, v1
    v_and_b32 v3, 3, v1
    v_mul_u32_u24 v6, 2688, v2
    v_lshl_add_u32 v14, v3, 4, v6""")
    a(f"""s_mul_i32 s64, s{JJ}, 192
    s_and_b32 s65, s{JJ}, 1
    s_lshl_b32 s66, s65, 6
    s_add_u32 s66, s64, s66
    s_xor_b32 s65, s65, 1
    s_lshl_b32 s65, s65, 7
    s_add_u32 s64, s64, s65""")
    a(f"s_mul_i32 s65, s{WV}, {16*2688}")
    a("s_add_u32 s64, s64, s65")
    a("s_add_u32 s66, s66, s65")
    a(f"s_mul_i32 s67, s{WV}, {16*3584}")
    a(f"s_lshl_b32 s87, s{JJ}, 8")
    a("s_add_u32 s67, s67, s87")
    a("s_add_u32 s68, s67, 128")
    a(f"s_lshl_b32 s69, s{WV}, 10")
    a(f"s_lshl_b32 s70, s{WV}, 11")
    a("""v_and_b32 v2, 15, v1
    v_bfe_u32 v3, v1, 4, 1
    v_lshrrev_b32 v4, 2, v2
    v_bfe_u32 v5, v2, 1, 1
    v_lshl_add_u32 v5, v3, 1, v5
    v_bfe_u32 v6, v2, 3, 1
    v_lshlrev_b32 v6, 2, v6
    v_xor_b32 v5, v5, v6
    v_lshl_add_u32 v4, v24, 2, v4
    v_lshlrev_b32 v4, 7, v4
    v_and_b32 v6, 1, v2
    v_lshl_add_u32 v4, v6, 3, v4
    v_lshl_add_u32 v2, v5, 4, v4
    v_xor_b32 v5, 4, v5
    v_lshl_add_u32 v3, v5, 4, v4""")
    a(f"s_mul_i32 s71, s{WV}, 7168");  a(f"s_add_u32 s71, s71, {P4}")
    a(f"s_lshl_b32 s72, s{WV}, 12");   a(f"s_add_u32 s72, s72, {MSLOT}")
    a(f"s_mul_i32 s73, s{WV}, 14336"); a(f"s_add_u32 s73, s73, {P2}")
    for k, sg in enumerate((71, 72, 73)):
        a(f"v_add_u32 v{17+2*k if k < 2 else 25}, s{sg}, v2")
        a(f"v_add_u32 v{18+2*k if k < 2 else 26}, s{sg}, v3")
    a(f"s_lshl_b32 s74, s{CB}, 7")
    a(f"s_mul_i32 s75, s{WV}, {16*896}")
    a("s_add_u32 s75, s75, s74")
    a(f"s_lshl_b32 s84, s{CB}, 1" if OPT.get('hrot', 1) else "s_mov_b32 s84, 0")
    a(f"s_mul_i32 s65, s84, {128*896}")
    a("s_add_u32 s75, s75, s65")
    a(f"s_sub_u32 s85, s75, {14*128*896}")
    a(f"s_mul_i32 s76, s{WV}, {7*16*896}")
    a("s_add_u32 s76, s76, s74")
    a(f"s_mul_i32 s77, s{RB}, {2*H_T}")
    a("s_add_u32 s77, s77, s69")
    a(f"s_add_u32 s77, s77, {WS_H}")
    a("s_lshl_b32 s65, s84, 13")
    a("s_add_u32 s77, s77, s65")
    a(f"s_sub_u32 s86, s77, {14*8192}")
    a(f"v_add_u32 v23, {H_T}, v22")
    a(f"s_mul_i32 s78, s{RB}, {2*O_T}")
    a(f"s_mul_i32 s65, s{WV}, 7168")
    a("s_add_u32 s78, s78, s65")
    a(f"s_add_u32 s78, s78, {WS_O}")
    a("v_and_b32 v6, 15, v1")
    a("v_min_u32 v4, 13, v6")
    a("v_lshlrev_b32 v4, 7, v4")
    a("v_lshlrev_b32 v6, 7, v6")
    a(f"s_lshr_b32 s79, s{RB}, 1")
    a("s_lshl_b32 s79, s79, 11")
    a(f"s_add_u32 s79, s79, {FLG + 0x8000}")
    a("s_add_u32 s80, s79, 0x8000")
    a("s_add_u32 s81, s79, 0x10000")
    a(f"s_mov_b32 s82, {FLG}")
    a("v_lshlrev_b32 v15, 2, v1")

    def single_dma(n):
        return [f"s_mul_i32 s65, s{KB+n}, {64*2688}", "s_add_u32 s65, s65, s64", f"s_add_u32 m0, s69, {UB[1] + n*4096}",
                "buffer_load_dwordx4 v14, s[12:15], s65 offen lds ; @u1"]
    def pair_dma(n, u):
        rs, sr, vo, sb = {2: (3584, 16, 10, 67), 0: (2688, 12, 8, 66), 3: (3584, 16, 10, 68)}[u]
        o = [f"s_mul_i32 s65, s{KB+n}, {64*rs}", f"s_add_u32 s65, s65, s{sb}", f"s_add_u32 m0, s70, {UB[u] + n*8192}"]
        for p in range(2):
            o.append(f"buffer_load_dwordx4 v{vo+p}, s[{sr}:{sr+3}], s65 offen offset:{p*1024} lds ; @u{u}")
        return o
    SL = [(72, m*2048, 19) for m in range(2)] + [(71, e*2048, 17) for e in range(3)] + [(73, l*2048, 25) for l in range(7)]
    smap, wblk = {}, {}
    def w_dma(s, sl):
        smap[s] = sl
        sg, c, _ = SL[sl]
        if s < 28:
            off = ((s % 14) * 8 + (4 if s >= 14 else 0)) * 16 * 896
            o = [f"s_cmp_ge_u32 s84, {14 - s % 14}", "s_cselect_b32 s65, s85, s75", f"s_add_u32 s65, s65, {off}"]
        else: o = [f"s_add_u32 s65, s76, {(s - 28) * 16 * 896}"]
        o.append(f"s_add_u32 m0, s{sg}, {c}")
        sr = 28 if s < 28 else 32
        for p in range(2):
            o.append(f"buffer_load_dwordx4 v{12+p}, s[{sr}:{sr+3}], s65 offen offset:{p*1024} lds ; @d{s}")
        return o
    def w_read(s, b):
        wblk[s] = b
        _, c, ad = SL[smap[s]]; o = []
        for ct in range(2):
            o.append(f"ds_read_b64_tr_b16 {vr(b+4*ct, 2)}, v{ad+ct} offset:{c} ; @r{s}")
            o.append(f"ds_read_b64_tr_b16 {vr(b+4*ct+2, 2)}, v{ad+ct} offset:{c + 1024} ; @r{s}")
        return o
    pool = list(BLK)
    def regstep(s, nxt):
        a(f"WAITV d{s}")
        a.extend(w_read(s, pool.pop()))
        a("s_waitcnt lgkmcnt(0)")
        if nxt is not None: a.extend(w_dma(nxt, smap[s]))
    def kv_stage(slp):
        a(f"s_lshl_b32 s88, s{I2}, 2")
        a(f"s_mul_i32 s89, s{WV}, 3")
        a("s_add_u32 s89, s89, s88")
        a(f"s_mul_i32 s90, s{WV}, 6144")
        a("v_and_b32 v2, 31, v1")
        a("v_lshl_add_u32 v2, v2, 3, s90")
        a("v_mov_b32 v9, 0")
        for k in range(3):
            a(f"s_add_u32 s65, s89, {k}")
            a("s_cmp_lt_u32 s65, 8")
            a("s_cselect_b32 s65, 0xf149, 0")
            a("v_mov_b32 v8, s65")
            a(f"ds_write_b64 v2, v[8:9] offset:{LK + k*2048 + 1792}")
        a("v_and_b32 v2, 31, v1")
        a("v_lshl_add_u32 v2, v2, 3, s70")
        a("v_mov_b32 v8, 0x3f80")
        a(f"ds_write_b64 v2, v[8:9] offset:{LQ + 1792}")
        a("""v_and_b32 v2, 3, v1
        v_cmp_eq_u32 vcc, 0, v2
        v_mov_b32 v3, 0x3f803f80
        v_cndmask_b32 v8, 0, v3, vcc
        v_mov_b32 v9, v8
        v_mov_b32 v10, v8
        v_mov_b32 v11, v8
        v_lshrrev_b32 v3, 2, v1
        v_lshlrev_b32 v3, 9, v3
        v_lshl_add_u32 v3, v2, 4, v3
        v_add_u32 v3, s90, v3
        s_mov_b32 exec_hi, 0xffff""")
        a(f"ds_write_b128 v3, v[8:11] offset:{LV + 448}")
        a("s_mov_b64 exec, -1")
        gpoll(a, 7, 82, False, slp)
        st()
        a(f"s_mul_i32 s91, s{HEAD}, 1792")
        a(f"s_add_u32 s65, s88, s{WV}")
        a(f"s_mul_i32 s65, s65, {QK_T}")
        a("s_add_u32 s65, s65, s91")
        a(f"s_add_u32 m0, s70, {LQ}")
        a("buffer_load_dwordx4 v22, s[24:27], s65 offen sc1 lds")
        a("s_mov_b32 exec_hi, 0xffff")
        a("buffer_load_dwordx4 v22, s[24:27], s65 offen offset:1024 sc1 lds")
        a("s_mov_b64 exec, -1")
        for k in range(3):
            a(f"s_add_u32 s92, s89, {k}")
            a("s_sub_u32 s93, s92, 8")
            a(f"s_mul_i32 s65, s93, {QK_T}")
            a("s_add_u32 s65, s65, s91")
            a(f"s_add_u32 s65, s65, {112*256}")
            a(f"s_mul_i32 s93, s93, {V_T}")
            a(f"s_mul_i32 s96, s{HEAD}, 448")
            a("s_add_u32 s93, s93, s96")
            a(f"s_add_u32 s93, s93, {WS_V}")
            a("s_cmp_lt_u32 s92, 8")
            a("s_cselect_b32 s65, 0x7fff0000, s65")
            a("s_cselect_b32 s93, 0x7fff0000, s93")
            a(f"s_add_u32 s92, s93, {14336 - 1024}")
            a(f"s_add_u32 m0, s90, {LK + k*2048}")
            a("buffer_load_dwordx4 v22, s[24:27], s65 offen sc1 lds")
            a("s_mov_b32 exec_hi, 0xffff")
            a("buffer_load_dwordx4 v22, s[24:27], s65 offen offset:1024 sc1 lds")
            a("s_mov_b32 exec_lo, 0x0fffffff")
            a("s_mov_b32 exec_hi, 0x0fffffff")
            a(f"s_add_u32 m0, s90, {LV + k*2048}")
            a("buffer_load_dwordx4 v28, s[24:27], s93 offen sc1 lds")
            a("buffer_load_dwordx4 v28, s[24:27], s92 offen offset:1024 sc1 lds ; @kv")
            a("s_mov_b64 exec, -1")
    a("s_cmp_ge_u32 s56, 28")
    a("s_cbranch_scc1 B_helper")
    a.save("bm")
    st()
    if OPT.get('xiss', 3) < 7: lds_wait(a, XISS)
    for n in range(7): a.extend(pair_dma(n, 0))
    a("buffer_load_dword v16, v15, s[20:23], s87 offen ; @bias")
    for n in range(3): a.extend(single_dma(n))
    a("WAITV bias")
    a.extend(signal(RD0))
    for n in range(3, 7): a.extend(single_dma(n))
    a("v_lshlrev_b32 v2, 16, v16")
    a("v_and_b32 v3, 0xffff0000, v16")
    a(f"v_add_u32 v5, {BIAST}, v21")
    a("ds_write_b64 v5, v[2:3]")
    a(f"v_add_u32 v16, {O_T}, v21")
    st()
    lds_wait(a, FXS)
    for n in range(3): a.extend(pair_dma(n, 2))
    a("WAITV u1")
    a.extend(signal(RD1))
    for n in range(3, 7): a.extend(pair_dma(n, 2))
    def touch():
        a(f"s_and_b32 s65, s{RB}, 3")
        a("s_lshl_b32 s65, s65, 2")
        a(f"s_add_u32 s65, s65, s{WV}")
        a(f"s_mul_i32 s88, s65, {112*896}")
        a("s_add_u32 s88, s88, s74")
        a(f"s_add_u32 s89, s88, {56*896}")
        a(f"s_mul_i32 s90, s65, {28*896}")
        a("s_add_u32 s90, s90, s74")
        a("v_mul_u32_u24 v2, 896, v1")
        a("s_mov_b32 exec_hi, 0xffffff")
        a("buffer_load_dword v32, v2, s[28:31], s88 offen")
        if OPT.get('tw', 0): a("s_waitcnt vmcnt(0)")
        a("buffer_load_dword v33, v2, s[28:31], s89 offen")
        a("s_mov_b64 exec, 0xfffffff")
        if OPT.get('tw', 0): a("s_waitcnt vmcnt(0)")
        a("buffer_load_dword v34, v2, s[32:35], s90 offen")
        a("s_mov_b64 exec, -1")
    a("WAITV u2")
    a.extend(signal(RD2))
    if OPT.get('touch', 0) == 1: touch()
    st()
    lds_wait(a, FU0)
    TH = OPT.get('th', 4)
    thr = lambda: a(f"s_waitcnt vmcnt({TH})") if TH < 63 else None
    for n in range(7): a.extend(pair_dma(n, 3)); thr()
    E1, E2 = OPT.get('e1', 0), OPT.get('e2', 10)
    a("WAITV u3")
    a.extend(signal(RD3))
    if OPT.get('touch', 0) == 2: touch()
    if E1:
        lds_wait(a, FU1)
        for k in range(5): a.extend(w_dma(k, k)); thr()
        for s_ in range(E1): regstep(s_, s_ + 5); thr()
    st()
    hb = {}
    def h_load(s):
        b = hb[s] = pool.pop(0)
        if s < 28:
            off = (s % 14) * 8192 + (4096 if s >= 14 else 0)
            return [f"s_cmp_ge_u32 s84, {14 - s % 14}", "s_cselect_b32 s65, s86, s77", f"s_add_u32 s65, s65, {off}",
                    f"buffer_load_dwordx4 {vr(b, 4)}, v22, s[24:27], s65 offen {LL()} ; @h{s}",
                    f"buffer_load_dwordx4 {vr(b+4, 4)}, v23, s[24:27], s65 offen {LL()} ; @h{s}"]
        o = [f"s_add_u32 s65, s78, {(s - 28) * 1024}"]
        for rt in range(2):
            for hf in range(2):
                o.append(f"buffer_load_dwordx2 {vr(b+4*rt+2*hf, 2)}, v{21 if rt == 0 else 16}, s[24:27], s65 offen offset:{hf*512} {LL()} ; @h{s}")
        return o
    def mfmas(s):
        for ct in range(2):
            for rt in range(2):
                d = vr(ACC + 16*(2*ct+rt), 16)
                if OPT.get('nomf', 0) and s > 0 and (ct or rt): continue
                a(f"{MF} {d}, {vr(wblk[s] + 4*ct, 4)}, {vr(hb[s]+4*rt, 4)}, {'0' if s == 0 else d}")
        pool.append(hb[s]); pool.append(wblk[s])
    PD = OPT.get('pd', 8)
    lds_wait(a, FU2)
    kv_stage(None)
    if not E1:
        for k in range(5): a.extend(w_dma(k, k))
    a("v_and_b32 v2, 31, v1")
    a("v_mul_u32_u24 v8, 896, v2")
    a("v_lshl_add_u32 v8, v24, 4, v8")
    a("v_lshlrev_b32 v9, 4, v24")
    a(f"s_lshl_b32 s88, s{RB}, 1")
    a(f"s_and_b32 s89, s{WV}, 1")
    a("s_add_u32 s88, s88, s89")
    a(f"s_mul_i32 s88, s88, {32*896}")
    a(f"s_lshr_b32 s89, s{WV}, 1")
    a("s_lshl_b32 s89, s89, 6")
    a("s_add_u32 s89, s89, s74")
    a("s_add_u32 s88, s88, s89")
    a("WAITV kv")
    a.extend(signal(RD4))
    T2 = OPT.get('th2', 63)
    for s_ in range(E1, E2):
        regstep(s_, s_ + 5)
        if T2 < 63: a(f"s_waitcnt vmcnt({T2})")
    st()
    lds_wait(a, FU3)
    for k in range(7): a.extend(w_dma(E2 + 5 + k, 5 + k))
    HP = OPT.get('hp', 12)
    for s_ in range(E2, 14):
        if s_ == HP:
            lds_wait(a, AG1)
            a("buffer_load_dword v5, v4, s[24:27], s79 offen sc1 ; @poll")
        regstep(s_, s_ + 12)
    st()
    gpoll(a, 4, 79, True)
    if OPT.get('pb', 0): a(f"s_setprio {OPT['pb']}")
    st()
    CK = {OPT.get('ck14', 8): (4, 80, 27), OPT.get('ck28', 22): (6, 81, NS - 1)}
    nxt, limit = 0, 13
    for s in range(NS):
        PE = OPT.get('pe', 6)
        if s + PE in CK: a(f"buffer_load_dword v5, v{CK[s+PE][0]}, s[24:27], s{CK[s+PE][1]} offen sc1 ; @poll")
        if s in CK:
            st()
            gpoll(a, CK[s][0], CK[s][1], True)
            st()
            limit = CK[s][2]
        while nxt <= min(limit, s + PD) and len(pool) > (2 if s >= 12 else 0):
            a.extend(h_load(nxt)); nxt += 1
        assert nxt > s
        if 14 <= s + 1 < NS:
            a(f"WAITV d{s+1}")
            a.extend(w_read(s + 1, pool.pop(0)))
        a(f"WAITV h{s}" + (f" WAITL r{s}" if s >= 14 else ""))
        if s >= 14 and s + 12 < NS: a.extend(w_dma(s + 12, smap[s]))
        if s == 16:
            XR = pool.pop(); XR2 = pool.pop()
            for k in range(2):
                a(f"buffer_load_dwordx4 {vr(XR+4*k, 4)}, v8, s[8:11], s88 offen offset:{32*k}")
                a(f"buffer_load_dwordx4 {vr(XR2+4*k, 4)}, v9, s[36:39], s89 offen offset:{32*k}")
        if s == 30: a(f"ds_read_b32 v29, v27 offset:{4*AG3} ; @ag3")
        mfmas(s)
    st()
    FB = [b for b in BLK if b not in (XR, XR2)]
    XS_ = [FB[8], FB[9]]
    for k in range(2):
        for r in range(8):
            op = (lambda d, x: f"v_and_b32 v{d}, 0xffff0000, v{x}") if r & 1 else (lambda d, x: f"v_lshlrev_b32 v{d}, 16, v{x}")
            a(op(XS_[k] + r, XR + 4*k + r//2))
            a(op(FB[10] + r, XR2 + 4*k + r//2))
        for r in range(0, 8, 2): a(f"v_pk_add_f32 {vr(XS_[k]+r, 2)}, {vr(XS_[k]+r, 2)}, {vr(FB[10]+r, 2)}")
    a("v_readfirstlane_b32 s97, v29")
    a("s_cmp_ge_u32 s97, 4")
    a("s_cbranch_scc1 B_rok")
    lds_wait(a, AG3)
    a.label("B_rok")
    for w in range(4):
        if w < 3:
            a(f"s_cmp_lg_u32 s{WV}, {w}")
            a(f"s_cbranch_scc1 B_w{w+1}")
        for qd in range(4):
            if qd == w: continue
            slot = qd * 3 + (w if w < qd else w - 1)
            for q in range(4):
                a(f"ds_write_b128 v22, {vr(ACC + 16*qd + 4*q, 4)} offset:{slot*4096 + q*1024}")
        for r in range(0, 16, 2): a(f"v_mov_b64 {vr(FB[6 + r//8] + r % 8, 2)}, {vr(ACC + 16*w + r, 2)}")
        if w < 3:
            a("s_branch B_wj")
            a.label(f"B_w{w+1}")
    a.label("B_wj")
    a(f"s_mul_i32 s65, s{WV}, 12288")
    a("v_add_u32 v10, s65, v22")
    a("s_waitcnt lgkmcnt(0)")
    a("s_barrier")
    for q in range(4):
        for p in range(3):
            a(f"ds_read_b128 {vr(FB[2*p + q//2] + 4*(q & 1), 4)}, v10 offset:{p*4096 + q*1024} ; @e{q}")
    for k in range(2):
        o = FB[6 + k]
        a(f"WAITL e{2*k+1}")
        for r in range(0, 8, 2): a(f"v_pk_add_f32 {vr(FB[k]+r, 2)}, {vr(FB[k]+r, 2)}, {vr(FB[2+k]+r, 2)}")
        for r in range(0, 8, 2): a(f"v_pk_add_f32 {vr(o+r, 2)}, {vr(o+r, 2)}, {vr(FB[4+k]+r, 2)}")
        for r in range(0, 8, 2): a(f"v_pk_add_f32 {vr(o+r, 2)}, {vr(o+r, 2)}, {vr(FB[k]+r, 2)}")
        for r in range(4): a(f"v_permlane32_swap_b32 v{o+r}, v{o+4+r}")
        for r in range(0, 8, 2): a(f"v_pk_add_f32 {vr(o+r, 2)}, {vr(o+r, 2)}, {vr(XS_[k]+r, 2)}")
        for r in range(4): a(f"v_cvt_pk_bf16_f32 v{o+r}, v{o+2*r}, v{o+2*r+1}")
        a(f"buffer_store_dwordx4 {vr(o, 4)}, v8, s[40:43], s88 offen offset:{32*k} {'sc1' if OPT.get('osc', 0) else ''}")
    st()
    st.dump()
    a("s_endpgm")
    a.label("B_helper"); a.restore("bm")
    a("s_sub_u32 s64, s56, 28")
    a("s_lshl_b32 s64, s64, 3")
    a("s_and_b32 s65, s2, 7")
    a("s_add_u32 s64, s64, s65")
    a("s_lshl_b32 s64, s64, 2")
    a(f"s_add_u32 s64, s64, s{WV}")
    a("v_lshlrev_b32 v2, 7, v1")
    a("s_lshl_b32 s64, s64, 13")
    a("s_add_u32 s65, s64, 0x100000")
    HS = OPT.get('hs', 1)
    a("buffer_load_dword v44, v2, s[12:15], s64 offen")
    a("buffer_load_dword v45, v2, s[12:15], s65 offen")
    if HS: a("s_waitcnt vmcnt(0)")
    a("buffer_load_dword v42, v2, s[16:19], s64 offen")
    a("buffer_load_dword v43, v2, s[16:19], s65 offen")
    if HS: a("s_waitcnt vmcnt(0)")
    a("buffer_load_dword v46, v2, s[28:31], s64 offen")
    a("buffer_load_dword v47, v2, s[28:31], s65 offen")
    a("buffer_load_dword v48, v2, s[32:35], s64 offen")
    kv_stage(OPT.get('hsl', 32))
    a("WAITV kv")
    a.extend(signal(RD4))
    st.dump()
    a("s_cmp_lg_u32 s2, 255")
    a("s_cbranch_scc1 B_hend")
    a(f"s_cmp_lg_u32 s{WV}, 0")
    a("s_cbranch_scc1 B_hend")
    a("s_mov_b64 exec, -1")
    a("v_lshlrev_b32 v7, 7, v1")
    for k in range(4):
        a(f"s_mov_b32 s82, {FLG + 0x18000 + k*8192}")
        gpoll(a, 7, 82, False, 16)
    a(f"v_mov_b32 v2, s{NON}")
    a("v_mov_b32 v3, 0")
    a(f"s_mov_b32 s65, {WS_FL}")
    a("s_mov_b64 exec, 1")
    a("buffer_store_dword v2, v3, s[24:27], s65 offen sc1")
    a.label("B_hend")
    a("s_endpgm")

def build(path):
    a = Asm()
    a.raw(open("hdr.txt").read().rstrip() if OPT.get('hdr', 0) else "; fused kernel")
    a.raw("; @launch grid=(256,1,1) block=(512,1,1) lds=163840")
    a.raw('.amdgcn_target "amdgcn-amd-amdhsa--gfx950"')
    kernel_header(a, NAME)
    a("s_cmp_ge_u32 s2, 256")
    a("s_cbranch_scc1 K_exit")
    if STAMPS: a("s_memrealtime s[100:101]")
    a("s_load_dwordx16 s[64:79], s[0:1], 0")
    a("s_load_dwordx4 s[80:83], s[0:1], 64")
    a("s_load_dwordx2 s[84:85], s[0:1], 80")
    if OPT.get('cpf', 1):
        a("s_getpc_b64 s[46:47]")
        a.label("K_pc")
        a(f"s_sub_u32 s46, s46, K_pc-{NAME}")
        a("s_subb_u32 s47, s47, 0")
        a("s_bfe_u32 s45, s2, 0x30003")
        a("s_mul_i32 s45, s45, 5120")
        a("v_lshrrev_b32 v2, 6, v0")
        a("v_mul_u32_u24 v2, 5, v2")
        a("v_and_b32 v3, 63, v0")
        a("v_add_lshl_u32 v2, v2, v3, 7")
        a("v_add_u32 v2, s45, v2")
        a(f"v_min_u32 v2, K_end-{NAME}-4, v2")
        a("s_mov_b64 exec, 31")
        a("global_load_dword v95, v2, s[46:47] ; @nocount")
        a("s_mov_b64 exec, -1")
    a("""v_and_b32 v1, 63, v0
    v_lshrrev_b32 v2, 6, v0
    s_and_b32 s3, s2, 7
    v_readfirstlane_b32 s4, v2
    s_lshr_b32 s56, s2, 3
    s_mul_i32 s5, s56, 37
    s_lshr_b32 s5, s5, 8
    s_mul_i32 s6, s5, 7
    s_sub_u32 s6, s56, s6""")
    if OPT.get('loc', 0):
        a(f"""s_lshr_b32 s7, s5, 1
        s_lshl_b32 s{I1}, s3, 1
        s_add_u32 s{I1}, s{I1}, s7
        s_and_b32 s{JJ}, s5, 1
        s_mul_i32 s{JJ}, s{JJ}, 7
        s_add_u32 s{JJ}, s{JJ}, s6
        s_and_b32 s{HEAD}, s56, 15
        s_lshr_b32 s7, s56, 4
        s_lshl_b32 s{I2}, s3, 1
        s_add_u32 s{I2}, s{I2}, s7""")
    else:
        a(f"""s_lshr_b32 s{I1}, s3, 1
        s_lshl_b32 s{I1}, s{I1}, 2
        s_add_u32 s{I1}, s{I1}, s5
        s_and_b32 s{JJ}, s3, 1
        s_mul_i32 s{JJ}, s{JJ}, 7
        s_add_u32 s{JJ}, s{JJ}, s6
        s_and_b32 s{HEAD}, s56, 1
        s_lshl_b32 s7, s3, 1
        s_add_u32 s{HEAD}, s{HEAD}, s7
        s_lshr_b32 s{I2}, s56, 1""")
    a(f"""s_lshl_b32 s{RB}, s3, 2
    s_add_u32 s{RB}, s{RB}, s5
    s_mov_b32 s{CB}, s6
    s_and_b32 s{WV}, s4, 3""")
    a(f"""s_lshl_b32 s57, s{I1}, 1
    s_add_u32 s57, s57, s{JJ}
    s_mul_i32 s7, s57, 37
    s_lshr_b32 s7, s7, 8
    s_mul_i32 s7, s7, 7
    s_sub_u32 s57, s57, s7""")
    for n in range(1, 7):
        a(f"s_add_u32 s{57+n}, s{56+n}, 1")
        a(f"s_cmp_eq_u32 s{57+n}, 7")
        a(f"s_cselect_b32 s{57+n}, 0, s{57+n}")
    a(f"v_mov_b32 v27, {CNT}")
    a("v_mov_b32 v30, 1")
    a("s_waitcnt lgkmcnt(0)")
    srd(a, 8, 64, S * D * 2)
    srd(a, 24, 84, WS_SIZE)
    a(f"s_add_u32 s86, s84, {WS_FL}")
    a("s_addc_u32 s87, s85, 0")
    a("s_load_dword s44, s[86:87], 0")
    a("s_cmp_lt_u32 s4, 4")
    a("s_cbranch_scc1 A_start")
    a("v_mov_b32 v2, 0")
    a("v_lshl_add_u32 v3, v1, 2, v27")
    a("ds_write_b32 v3, v2")
    nonce(a)
    a("s_branch B_start")
    a.label("A_start")
    a.save("role")
    gen_A(a, [])
    a.label("B_start"); a.restore("role")
    srd(a, 12, 66, D * 3 * D * 2)
    srd(a, 16, 72, D * F * 2)
    srd(a, 20, 74, F * 2)
    srd(a, 28, 76, F * D * 2)
    srd(a, 32, 68, D * D * 2)
    srd(a, 36, 78, D * 2)
    srd(a, 40, 80, S * D * 2)
    a("s_barrier")
    gen_B(a)
    a.label("K_exit")
    a("s_endpgm")
    a.label("K_end")
    kernel_desc(a, NAME, 256, 102, 256)
    open(path, "w").write(a.text())
    print("padded nops:", a.padded)

if __name__ == "__main__":
    if len(sys.argv) > 2 and sys.argv[2] == "st": STAMPS = True
    for kv in sys.argv[3:]:
        k, v = kv.split("="); OPT[k] = int(v)
    build(sys.argv[1])
```

```python
import math, struct, sys
from asmlib import *

S, D, F, H, DH = 2048, 448, 1792, 16, 28
WS_QK, WS_V, WS_H, WS_O, WS_FL = 0x0, 0x400000, 0x600000, 0xE00000, 0x1000000
WS_SIZE = 0x1040000
FLG = WS_FL + 0x8000
WS_DBG = 0xF800000
QK_T, V_T, H_T, O_T = 57344, 28672, 114688, 28672
NAME = "parallel_sum__sliding_block__dense_activation_gelu__prompt_kernel"
STAMPS = False
OPT = {}

def f32(x): return "0x%08x" % struct.unpack("<I", struct.pack("<f", x))[0]
LOG2E = 1.4426950408889634
QSCALE = DH ** -0.5 * LOG2E
GC1 = -2.0 * math.sqrt(2.0 / math.pi) * LOG2E
GC2 = GC1 * 0.044715
NEG = -1e30
def vr(b, n): return f"v[{b}:{b+n-1}]"
MF = "v_mfma_f32_32x32x16_bf16"

P0, P1, P2, P3, P4, MISC = 0, 28672, 57344, 86016, 114688, 143360
UB = [P2, P4, P0, P2]
CNT, RRT, BIAST, MSLOT = MISC, MISC + 256, MISC + 1024, MISC + 4096
LK, LV, LQ = 0, 24576, 49152
XISS, FXS, RD0, RD1, RD2, RD3, RD4, FU0, FU1, FU2, FU3, NONCE, AG0, AG1, AG2, AG3, FU1A = range(17)
WV, I1, JJ, HEAD, I2, RB, CB, NON = 48, 49, 50, 51, 52, 53, 54, 55
SPIN = 20000

class Stamper:
    def __init__(self, a): self.a, self.n = a, 0
    def __call__(self, idx=None):
        if idx is not None: self.n = idx
        if STAMPS:
            self.a("s_memtime s[98:99]" if OPT.get('cyc', 0) else "s_memrealtime s[98:99]")
            self.a("s_waitcnt lgkmcnt(0)")
            self.a(f"v_writelane_b32 v31, s98, {self.n}")
        self.n += 1
    def dump(self):
        if not STAMPS: return
        a = self.a
        a("s_memrealtime s[98:99]")
        a("s_waitcnt vmcnt(0) lgkmcnt(0)")
        a("v_writelane_b32 v31, s98, 31")
        a("v_writelane_b32 v31, s100, 30")
        a("s_mov_b32 s26, 0x10000000")
        a("s_lshl_b32 s96, s2, 3")
        a("v_lshrrev_b32 v2, 6, v0")
        a("v_add_u32 v2, s96, v2")
        a("v_lshlrev_b32 v2, 5, v2")
        a("v_add_lshl_u32 v2, v2, v1, 2")
        a(f"s_mov_b32 s96, {WS_DBG}")
        a("s_mov_b32 exec_hi, 0")
        a("buffer_store_dword v31, v2, s[24:27], s96 offen")
        if OPT.get('dd', -1) >= 0:
            L = a.newlabel("DD")
            a(f"s_cmp_lg_u32 s2, {OPT.get('dw', 100)}")
            a(f"s_cbranch_scc1 {L}")
            a(f"s_cmp_lg_u32 s4, {OPT['dd']}")
            a(f"s_cbranch_scc1 {L}")
            a("v_subrev_u32 v3, s100, v31")
            a("v_lshlrev_b32 v2, 2, v1")
            a("buffer_store_dword v3, v2, s[44:47], 0 offen")
            a.label(L)

def LS(): return '' if OPT.get('loc', 0) > 1 else 'sc1'

def LL(): return ['sc1', '', 'nt', 'sc0'][OPT.get('ll', 0)]

def nonce(a):
    a("s_waitcnt lgkmcnt(0)")
    a(f"s_mul_i32 s{NON}, s44, 0x9E3779B1")
    a(f"s_add_u32 s{NON}, s{NON}, 0x7F4A7C15")

def merge(main, fill, skip=0, last=0):
    if OPT.get('noepi', 0): fill = [g for g in fill if any('buffer_store' in x for x in g)]
    if OPT.get('nost', 0): fill = [g for g in fill[:-1] if not g[0].startswith('buffer_store')] + fill[-1:]
    slots = [i for i, m in enumerate(main) if m.startswith('v_mfma')]
    slots = slots[skip:len(slots) - last]
    out, k, n = [], 0, len(fill)
    pos = {s: j for j, s in enumerate(slots)}
    for i, m in enumerate(main):
        out.append(m)
        if i in pos:
            tgt = (n * (pos[i] + 1)) // len(slots)
            while k < tgt:
                out.extend(fill[k]); k += 1
    for g in fill[k:]: out.extend(g)
    return out

def signal(c):
    return ["s_mov_b64 exec, 1", f"ds_add_u32 v27, v30 offset:{4*c}", "s_mov_b64 exec, -1"]

def lds_wait(a, c, n=4):
    L = a.newlabel("LW")
    a("s_mov_b32 s95, 0")
    a.label(L)
    a(f"ds_read_b32 v29, v27 offset:{4*c}")
    a("s_add_u32 s95, s95, 1")
    a("s_lshr_b32 s94, s95, 18")
    a("s_waitcnt lgkmcnt(0)")
    a("v_readfirstlane_b32 s97, v29")
    a("s_add_u32 s97, s97, s94")
    a(f"s_cmp_ge_u32 s97, {n}")
    a(f"s_cbranch_scc1 {L}_d")
    a(f"s_sleep {OPT.get('lsl', 2)}")
    a(f"s_branch {L}")
    a.label(f"{L}_d")

def gen_A(a, stubs):
    st = Stamper(a)
    XF, A0, A1 = 128, 64, 96
    RING = [48, 56, 240, 248]
    KB = 57
    st()
    a(f"s_setprio {OPT.get('pa', 2)}")
    a("v_lshrrev_b32 v24, 5, v1")
    a("v_lshlrev_b32 v21, 3, v1")
    a("v_lshlrev_b32 v22, 4, v1")
    a("v_mov_b32 v5, 0")
    a("s_cmp_ge_u32 s56, 28")
    a("s_cbranch_scc1 A_helper")
    a(f"s_lshl_b32 s86, s{I1}, 2")
    a(f"s_add_u32 s86, s86, s{WV}")
    a("""v_lshrrev_b32 v2, 3, v1
    v_and_b32 v3, 7, v1
    v_lshrrev_b32 v4, 1, v2
    v_xor_b32 v5, v3, v4
    v_mul_u32_u24 v6, 896, v2
    v_lshl_add_u32 v8, v5, 4, v6
    v_xor_b32 v5, 4, v5
    v_lshl_add_u32 v9, v5, 4, v6""")
    a(f"v_add_u32 v9, {8*896 - 1024}, v9")
    a(f"v_add_u32 v10, {16*896 - 2048}, v8")
    a(f"v_add_u32 v11, {16*896 - 2048}, v9")
    a("s_mul_i32 s87, s86, 28672")
    a(f"s_mul_i32 s88, s{WV}, 14336")
    def x_dma(n):
        o = [f"s_lshl_b32 s89, s{KB+n}, 7", "s_add_u32 s89, s89, s87", f"s_add_u32 m0, s88, {(n % 3)*4096}"]
        for rg in range(4):
            o.append(f"buffer_load_dwordx4 v{8+rg}, s[8:11], s89 offen offset:{rg*1024} lds ; @x{n}")
        return o
    for n in range(3): a.extend(x_dma(n))
    a("""v_and_b32 v2, 31, v1
    v_bfe_u32 v3, v2, 1, 3
    v_lshlrev_b32 v4, 7, v2
    v_add_u32 v4, s88, v4""")
    for q in range(4):
        a(f"v_add_u32 v5, {2*q}, v24")
        a("v_xor_b32 v5, v5, v3")
        a(f"v_lshl_add_u32 v{12+q}, v5, 4, v4")
    a("""v_and_b32 v2, 15, v1
    v_bfe_u32 v3, v1, 4, 1
    v_lshrrev_b32 v4, 2, v2
    v_bfe_u32 v5, v2, 1, 1
    v_lshl_add_u32 v5, v3, 1, v5
    v_bfe_u32 v6, v2, 3, 1
    v_lshlrev_b32 v6, 2, v6
    v_xor_b32 v5, v5, v6
    v_lshlrev_b32 v7, 10, v24
    v_lshl_add_u32 v7, v4, 7, v7
    v_and_b32 v6, 1, v2
    v_lshl_add_u32 v7, v6, 3, v7
    v_lshl_add_u32 v16, v5, 4, v7
    v_xor_b32 v5, 4, v5
    v_lshl_add_u32 v17, v5, 4, v7
    v_lshl_add_u32 v7, v24, 3, v4
    v_lshlrev_b32 v7, 6, v7
    v_lshl_add_u32 v7, v3, 5, v7
    v_and_b32 v6, 3, v2
    v_lshl_add_u32 v20, v6, 3, v7""")
    a(f"v_add_u32 v20, {UB[1]}, v20")
    a(f"v_add_u32 v18, {UB[0]}, v16")
    a(f"v_add_u32 v19, {UB[0]}, v17")
    a("""v_and_b32 v2, 31, v1
    v_mul_u32_u24 v23, 7168, v24
    v_lshl_add_u32 v23, v2, 4, v23""")
    a(f"v_lshlrev_b32 v28, 4, v24")
    a(f"v_add_u32 v28, {BIAST}, v28")
    a(f"""s_mul_i32 s64, s{JJ}, 192
    s_and_b32 s65, s{JJ}, 1
    s_lshl_b32 s66, s65, 6
    s_add_u32 s66, s64, s66
    s_xor_b32 s65, s65, 1
    s_lshl_b32 s65, s65, 7
    s_add_u32 s64, s64, s65""")
    a(f"s_mul_i32 s65, s86, {QK_T}")
    a("s_lshl_b32 s67, s64, 5"); a("s_add_u32 s67, s67, s65")
    a("s_lshl_b32 s68, s66, 5"); a("s_add_u32 s68, s68, s65")
    a(f"s_mul_i32 s65, s86, {V_T}")
    a(f"s_add_u32 s65, s65, {WS_V - 2*896*8}")
    a("s_lshl_b32 s69, s64, 3"); a("s_add_u32 s69, s69, s65")
    a("s_add_u32 s70, s69, 14336")
    a("s_lshl_b32 s71, s66, 3"); a("s_add_u32 s71, s71, s65")
    a("s_add_u32 s72, s71, 14336")
    a(f"s_mul_i32 s73, s86, {H_T}")
    a(f"s_lshl_b32 s65, s{JJ}, 13")
    a("s_add_u32 s73, s73, s65")
    a(f"s_add_u32 s73, s73, {WS_H}")
    a("s_add_u32 s74, s73, 4096")
    a(f"s_lshl_b32 s75, s{I1}, 4")
    a(f"s_add_u32 s75, s75, s{JJ}")
    a("s_lshl_b32 s75, s75, 7")
    a(f"s_add_u32 s75, s75, {FLG}")
    a("s_add_u32 s76, s75, 0x8000")
    a("s_add_u32 s77, s75, 0x10000")
    a("s_mov_b32 s78, 0x3f803f80")
    for q in range(4): a(f"v_mov_b32 v{32+q}, 0")
    nonce(a)
    a("s_barrier")
    st()
    for n in range(7):
        a(f"WAITV x{n}")
        for q in range(4):
            a(f"ds_read_b128 {vr(XF + 16*n + 4*q, 4)}, v{12+q} offset:{(n % 3)*4096}")
        if n >= 1:
            for d in range(16*(n-1), 16*n):
                a(f"v_dot2c_f32_bf16 v{32 + (d & 1)}, s78, v{XF+d}")
                a(f"v_dot2c_f32_bf16 v{34 + (d & 1)}, v{XF+d}, v{XF+d}")
        a("s_waitcnt lgkmcnt(0)")
        if n + 3 < 7: a.extend(x_dma(n + 3))
        if n == OPT.get('xiss', 3): a.extend(signal(XISS))
    a.extend(signal(FXS))
    st()
    for d in range(96, 112):
        a(f"v_dot2c_f32_bf16 v{32 + (d & 1)}, s78, v{XF+d}")
        a(f"v_dot2c_f32_bf16 v{34 + (d & 1)}, v{XF+d}, v{XF+d}")
    a("""v_add_f32 v32, v32, v33
    v_add_f32 v34, v34, v35
    v_mov_b32 v33, v32
    v_mov_b32 v35, v34
    v_permlane32_swap_b32 v32, v33
    v_permlane32_swap_b32 v34, v35
    v_add_f32 v32, v32, v33
    v_add_f32 v34, v34, v35""")
    a(f"v_mul_f32 v32, {f32(1.0/448)}, v32")
    a(f"v_mul_f32 v34, {f32(1.0/448)}, v34")
    a("v_fma_f32 v34, -v32, v32, v34")
    a("v_cvt_pk_bf16_f32 v33, v32, v32")
    a("v_and_b32 v33, 0xffff0000, v33")
    a("v_sub_f32 v7, 0, v33")
    a("v_max_f32 v34, 0, v34")
    a("v_cvt_pk_bf16_f32 v34, v34, v34")
    a("v_and_b32 v34, 0xffff0000, v34")
    a(f"v_add_f32 v34, {f32(1e-5)}, v34")
    a("v_cvt_pk_bf16_f32 v34, v34, v34")
    a("v_and_b32 v34, 0xffff0000, v34")
    a("v_sqrt_f32 v34, v34")
    a("v_cvt_pk_bf16_f32 v34, v34, v34")
    a("v_and_b32 v34, 0xffff0000, v34")
    a("v_rcp_f32 v25, v34")
    a("v_and_b32 v2, 31, v1")
    a(f"s_lshl_b32 s65, s{WV}, 7")
    a(f"s_add_u32 s65, s65, {RRT}")
    a("v_lshl_add_u32 v2, v2, 2, s65")
    a("ds_write_b32 v2, v25")
    a("v_lshl_add_u32 v12, v24, 4, s65")
    a(f"v_mov_b32 v6, s{NON}")
    a("s_mov_b32 s78, 0x00003f80")
    a("s_mov_b32 s79, 0x3f800000")
    for d0 in range(0, 112, 4):
        for d in range(d0, d0 + 4):
            a(f"v_dot2_f32_bf16 v{64 + 2*(d & 7)}, v{XF+d}, s78, v7")
            a(f"v_dot2_f32_bf16 v{65 + 2*(d & 7)}, v{XF+d}, s79, v7")
        if d0 >= 4:
            for d in range(d0 - 4, d0):
                a(f"v_cvt_pk_bf16_f32 v{XF+d}, v{64 + 2*(d & 7)}, v{65 + 2*(d & 7)}")
    a(f"v_mul_f32 v4, {f32(QSCALE)}, v25")
    a("s_cmp_lt_u32 s64, 896")
    a("s_cselect_b64 vcc, -1, 0")
    a("v_cndmask_b32 v2, v25, v4, vcc")
    a("s_cmp_lt_u32 s66, 896")
    a("s_cselect_b64 vcc, -1, 0")
    a("v_cndmask_b32 v3, v25, v4, vcc")
    for d in range(108, 112):
        a(f"v_cvt_pk_bf16_f32 v{XF+d}, v{64 + 2*(d & 7)}, v{65 + 2*(d & 7)}")
    a(f"s_mov_b32 s78, {f32(GC2)}")
    a(f"v_mov_b32 v26, {f32(GC1)}")
    a("v_mov_b32 v5, 0")
    st()
    lds_wait(a, RD0)
    st()

    LA = 3
    units = [28, 14, 28, 28]
    seq = [(u, s) for u, n in enumerate(units) for s in range(n)]
    start = [0, 28, 42, 70]
    UACC = [(64, 80), (96, 96), (64, 80), (96, 112)]
    def reads(g):
        u, s = seq[g]; b = RING[g % 4]; o = []
        for T in range(2):
            if u == 1: ad, off, sec = 20, (2*s + T) * 1024, 256
            else: ad, off, sec = (16 if u == 2 else 18) + T, s * 2048, 512
            o.append(f"ds_read_b64_tr_b16 {vr(b + 4*T, 2)}, v{ad} offset:{off} ; @w{g}")
            o.append(f"ds_read_b64_tr_b16 {vr(b + 4*T + 2, 2)}, v{ad} offset:{off + sec} ; @w{g}")
        return o
    def check(c):
        L = a.newlabel("AC")
        stubs.append((L, c))
        return [f"WAITL f{c}", "v_readfirstlane_b32 s97, v29", "s_cmp_lt_u32 s97, 4", f"s_cbranch_scc1 {L}", f"{L}_r:"]
    def unit(u, normal):
        o = []
        n = units[u]
        for s in range(n):
            g = start[u] + s
            if u < 3 and s == n - LA - 4: o.append(f"ds_read_b32 v29, v27 offset:{4*(RD1+u)} ; @f{RD1+u}")
            if u < 3 and s == n - LA: o.extend(check(RD1 + u))
            if g + LA < len(seq): o.extend(reads(g + LA))
            o.append(f"WAITL w{g}")
            if s == n - 1: o.extend(signal(FU0 + u))
            for T in range(2):
                w = vr(RING[g % 4] + 4*T, 4)
                d = vr(UACC[u][T], 16)
                if u == 1: x, first = vr(XF + 4*(2*s + T), 4), (s == 0 and T == 0)
                else: x, first = vr(XF + 4*s, 4), s == 0
                A, B = (x, w) if normal else (w, x)
                o.append(f"{MF} {d}, {A}, {B}, {'0' if first else d}")
        return o
    def rr_read():
        return [[f"ds_read_b128 {vr(32 + 4*q, 4)}, v12 offset:{32*q} ; @rr" for q in range(4)], [], [], [], ["WAITL rr"]]
    def epi_qk(b, T, sc, soff):
        o = []
        for q in range(4):
            for r in range(4*q, 4*q+4): o.append([f"v_mul_f32 v{b+r}, v{b+r}, v{sc}"])
            for r in range(2): o.append([f"v_cvt_pk_bf16_f32 v{b+4*q+r}, v{b+4*q+2*r}, v{b+4*q+2*r+1}"])
            o.append([f"buffer_store_dwordx2 {vr(b+4*q, 2)}, v21, s[24:27], s{soff} offen offset:{T*2048 + q*512} sc1 ; @qkv"])
        return o
    def epi_v(b, T, soff):
        o = []
        for f in range(2):
            for r in range(8*f, 8*f+8): o.append([f"v_mul_f32 v{b+r}, v{b+r}, v{32+r}"])
            for r in range(4): o.append([f"v_cvt_pk_bf16_f32 v{b+8*f+r}, v{b+8*f+2*r}, v{b+8*f+2*r+1}"])
            o.append([f"buffer_store_dwordx4 {vr(b+8*f, 4)}, v23, s[24:27], s{soff+f} offen offset:{T*512} sc1 ; @qkv"])
        return o
    def epi_h(b, T, tl, soff, packed, tag):
        o = []
        for f in range(2):
            R = range(8*f, 8*f+8); t = lambda r: 32 + r
            o.append([f"ds_read_b128 {vr(32+8*f+4*q, 4)}, v28 offset:{tl*128 + (2*f+q)*32} ; @b{tl}{f}" for q in range(2)])
        for f in range(2):
            R = range(8*f, 8*f+8); t = lambda r: 32 + r
            o.append([f"WAITL b{tl}{f}"])
            if packed:
                R2 = range(8*f, 8*f+8, 2); p2 = lambda x: vr(x, 2)
                for r in R2: o.append([f"v_pk_fma_f32 {p2(b+r)}, {p2(b+r)}, v[8:9], {p2(t(r))}"])
                for r in R2: o.append([f"v_pk_mul_f32 {p2(t(r))}, {p2(b+r)}, {p2(b+r)}"])
                for r in R2: o.append([f"v_pk_fma_f32 {p2(t(r))}, {p2(t(r))}, v[10:11], v[12:13]"])
                for r in R2: o.append([f"v_pk_mul_f32 {p2(t(r))}, {p2(t(r))}, {p2(b+r)}"])
                for r in R: o.append([f"v_exp_f32 v{t(r)}, v{t(r)}"])
                for r in R2: o.append([f"v_pk_add_f32 {p2(t(r))}, {p2(t(r))}, v[14:15]"])
                for r in R: o.append([f"v_rcp_f32 v{t(r)}, v{t(r)}"])
                for r in R2: o.append([f"v_pk_mul_f32 {p2(b+r)}, {p2(b+r)}, {p2(t(r))}"])
            else:
                for r in R: o.append([f"v_fma_f32 v{b+r}, v{b+r}, v25, v{t(r)}"])
                for r in R: o.append([f"v_mul_f32 v{t(r)}, v{b+r}, v{b+r}"])
                for r in R: o.append([f"v_fma_f32 v{t(r)}, v{t(r)}, s78, v26"])
                for r in R: o.append([f"v_mul_f32 v{t(r)}, v{t(r)}, v{b+r}"])
                for r in R: o.append([f"v_exp_f32 v{t(r)}, v{t(r)}"])
                for r in R: o.append([f"v_add_f32 v{t(r)}, 1.0, v{t(r)}"])
                for r in R: o.append([f"v_rcp_f32 v{t(r)}, v{t(r)}"])
                for r in R: o.append([f"v_mul_f32 v{b+r}, v{b+r}, v{t(r)}"])
            for r in range(4): o.append([f"v_cvt_pk_bf16_f32 v{b+8*f+r}, v{b+8*f+2*r}, v{b+8*f+2*r+1}"])
            o.append([f"buffer_store_dwordx4 {vr(b+8*f, 4)}, v22, s[24:27], s{soff} offen offset:{(2*T+f)*1024} {LS()} ; @{tag}"])
        return o
    def flag(kind, tag):
        L = a.newlabel("FG")
        o = [f"WAITV {tag}", "s_mov_b64 exec, 1", f"ds_add_rtn_u32 v4, v27, v30 offset:{4*(AG0+kind)} ; @{'nocount' if kind == 2 else 'ag%d' % kind}", "s_mov_b64 exec, -1"]
        st_ = ["s_mov_b64 exec, 1", f"buffer_store_dword v6, v5, s[24:27], s{75 + kind if kind < 3 else 68} offen {LS() if kind in (1, 2) else 'sc1'} ; @nocount"]
        p = [f"WAITL ag{kind}" if kind != 2 else "s_waitcnt lgkmcnt(0)", "v_readfirstlane_b32 s97, v4", "s_cmp_lg_u32 s97, 3", f"s_cbranch_scc1 {L}"] + st_ + ["s_mov_b64 exec, -1", f"{L}:"]
        return o, p
    def at(main, grp, k):
        n = sum(1 for m in main if m.startswith('v_mfma'))
        return merge(main, [grp], skip=k, last=n - k - 1)
    def path(sv, pv):
        for g in range(LA): a.extend(reads(g))
        a.extend(merge(unit(0, pv), rr_read() if pv else [], skip=40))
        st(5)
        e0 = (epi_v(64, 0, 71) + epi_v(80, 1, 71)) if pv else (epi_qk(64, 0, 3, 68) + epi_qk(80, 1, 3, 68))
        a.extend(merge(unit(1, sv), e0, skip=3, last=2))
        st()
        e1 = epi_v(96, 0, 69) if sv else epi_qk(96, 0, 2, 67)
        f0 = flag(0, "qkv")
        u2 = merge(unit(2, False), e1, skip=3, last=46)
        k0 = OPT.get('f0at', 50)
        a.extend(at(at(u2, f0[0], k0), f0[1], k0 + 4))
        st()
    a.save("p")
    a(f"s_cmp_ge_u32 s{JJ}, 10")
    a("s_cbranch_scc1 A_pc")
    a(f"s_cmp_eq_u32 s{JJ}, 9")
    a("s_cbranch_scc1 A_pb")
    path(False, False)
    a("s_branch A_join")
    a.label("A_pb"); a.restore("p")
    path(False, True)
    a("s_branch A_join")
    a.label("A_pc"); a.restore("p")
    path(True, True)
    a.label("A_join")
    e2 = epi_h(64, 0, 0, 73, False, "h1") + epi_h(80, 1, 1, 73, False, "h1")
    if OPT.get('bunch', 0):
        sts = [g for g in e2 if g[0].startswith('buffer_store')]
        e2 = [g for g in e2 if not g[0].startswith('buffer_store')]
        if OPT['bunch'] == 1: e2 += sts
    u3 = merge(unit(3, False), e2, skip=3, last=OPT.get('u3l', 14))
    F1L = OPT.get('f1l', 0)
    if F1L:
        f1 = flag(1, "h1")
        u3 = at(at(u3, f1[0], F1L), f1[1], min(55, F1L + 3))
    a.extend(u3)
    if OPT.get('bunch', 0) == 2:
        for g in sts: a.extend(g)
    st()
    a("v_mov_b32 v8, v25"); a("v_mov_b32 v9, v25")
    a("v_mov_b32 v10, s78"); a("v_mov_b32 v11, s78")
    a("v_mov_b32 v12, v26"); a("v_mov_b32 v13, v26")
    a("v_mov_b32 v14, 1.0"); a("v_mov_b32 v15, 1.0")
    e3 = epi_h(96, 0, 2, 74, True, "h2") + epi_h(112, 1, 3, 74, True, "h2")
    f1 = flag(1, "h1") if not F1L else ([], [])
    hp = len(e3) * OPT.get('f1at', 30) // 100
    for g in e3[:hp]: a.extend(g)
    if OPT.get('sf1', 0): st(14)
    a.extend(f1[0])
    if OPT.get('sf1', 0): st(15); st.n = 9
    for g in e3[hp:hp+10]: a.extend(g)
    a.extend(f1[1])
    for g in e3[hp+10:]: a.extend(g)
    a("s_mov_b32 s79, 0")
    st()
    a("s_branch A_attn")
    a.label("A_helper")
    a("s_mov_b32 s79, 1")
    nonce(a)
    a("s_barrier")
    a(f"v_mov_b32 v6, s{NON}")
    a.label("A_attn")
    SR, QF, OA, PB = 96, 40, 48, 64
    KV = [80, 88, 240, 248]
    a("v_and_b32 v12, 31, v1")
    a(f"v_mov_b32 v2, {f32(NEG)}")
    a("v_lshlrev_b32 v3, 2, v24")
    a("v_sub_u32 v3, v12, v3")
    for r in range(16):
        key = 8 * (r >> 2) + (r & 3)
        a(f"v_cmp_le_i32 vcc, {key}, v3")
        a(f"v_cndmask_b32 v{SR+128+r}, v2, 0, vcc")
        a(f"v_cndmask_b32 v{SR+r}, 0, v2, vcc")
    a(f"s_lshl_b32 s64, s{WV}, 11")
    a("v_add_u32 v14, s64, v21")
    a("v_add_u32 v15, s64, v22")
    a(f"v_add_u32 v15, {LV}, v15")
    a("v_mov_b32 v32, 0x3f803f80")
    for r in (33, 34, 35, 37, 38, 39): a(f"v_mov_b32 v{r}, 0")
    a(f"s_lshl_b32 s66, s{I2}, 2")
    a(f"s_add_u32 s66, s66, s{WV}")
    a(f"s_mul_i32 s67, s66, {O_T}")
    a(f"s_mul_i32 s68, s{HEAD}, 1792")
    a("s_add_u32 s67, s67, s68")
    a(f"s_add_u32 s67, s67, {WS_O}")
    a(f"s_lshl_b32 s68, s{I2}, 4")
    a(f"s_add_u32 s68, s68, s{HEAD}")
    a("s_lshl_b32 s68, s68, 7")
    a(f"s_add_u32 s68, s68, {FLG + 0x18000}")
    a(f"ds_read_b32 v29, v27 offset:{4*RD4}")
    a("s_waitcnt lgkmcnt(0)")
    a("v_readfirstlane_b32 s97, v29")
    a("s_cmp_ge_u32 s97, 4")
    a("s_cbranch_scc1 A_kvok")
    a("s_cmp_lg_u32 s79, 0")
    a("s_cbranch_scc1 A_nof")
    f2 = flag(2, "h2")
    a.extend(f2[0]); a.extend(f2[1])
    a("s_mov_b32 s79, 1")
    a.label("A_nof")
    lds_wait(a, RD4)
    a.label("A_kvok")
    st()
    for f in range(2):
        a(f"ds_read2st64_b64 {vr(QF + 4*f, 4)}, v14 offset0:{LQ//512 + 2*f} offset1:{LQ//512 + 2*f + 1} ; @q")
    def kread(s): return [f"ds_read2st64_b64 {vr(KV[s % 4] + 4*f, 4)}, v14 offset0:{4*s + 2*f} offset1:{4*s + 2*f + 1} ; @k{s}" for f in range(2)]
    def vread(s): return [f"ds_read_b128 {vr(KV[(s+1) % 4] + 4*f, 4)}, v15 offset:{2048*s + 1024*f} ; @v{s}" for f in range(2)]
    def maxes(s):
        b = SR + 16*s; o = []
        for r in range(0, 16, 2):
            acc = 8 + ((r >> 1) & 3)
            if s == 0 and r < 8: o.append(f"v_max_f32 v{acc}, v{b+r}, v{b+r+1}")
            else: o.append(f"v_max3_f32 v{acc}, v{b+r}, v{b+r+1}, v{acc}")
        return o
    for s in range(3): a.extend(kread(s))
    for s in range(9):
        if s + 3 < 9: a.extend(kread(s + 3))
        else: a.extend(vread(s + 3 - 9))
        a(f"WAITL k{s}")
        d = vr(SR + 16*s, 16)
        m = maxes(s - 2) if s >= 2 else []
        a(f"{MF} {d}, {vr(KV[s % 4], 4)}, {vr(QF, 4)}, {d if s in (0, 8) else '0'}")
        a.extend(m[:4])
        a(f"{MF} {d}, {vr(KV[s % 4] + 4, 4)}, {vr(QF+4, 4)}, {d}")
        a.extend(m[4:])
    a.extend(maxes(7))
    a("s_cmp_lg_u32 s79, 0")
    a("s_cbranch_scc1 A_nof2")
    f2 = flag(2, "h2")
    a.extend(f2[0]); a.extend([x.replace("WAITL ag2", "s_waitcnt lgkmcnt(0)") for x in f2[1]])
    a.label("A_nof2")
    a.extend(maxes(8))
    a("""v_max3_f32 v2, v8, v9, v10
    v_max_f32 v2, v2, v11
    v_mov_b32 v3, v2
    v_permlane32_swap_b32 v2, v3
    v_max_f32 v2, v2, v3
    v_sub_f32 v2, 0, v2
    v_cvt_pk_bf16_f32 v3, v2, v2
    v_and_b32 v3, 0xffff0000, v3
    v_sub_f32 v3, v2, v3
    v_cvt_pk_bf16_f32 v36, v2, v3
    v_cmp_eq_u32 vcc, 0, v24
    v_cndmask_b32 v36, 0, v36, vcc""")
    st()
    def shift(s): return f"{MF} {vr(SR+16*s, 16)}, v[32:35], v[36:39], {vr(SR+16*s, 16)}"
    a(shift(0)); a(shift(1))
    def pv(s):
        pb = PB + 8*(s & 1)
        return [f"{MF} {vr(OA, 16)}, {vr(KV[(s+1) % 4] + 4*f, 4)}, {vr(pb + 4*f, 4)}, {'0' if (s == 0 and f == 0) else vr(OA, 16)}" for f in range(2)]
    for s in range(9):
        b = SR + 16*s; pb = PB + 8*(s & 1)
        mm = []
        if s + 2 < 9: mm.append(shift(s + 2))
        if s >= 1: mm = [f"WAITL v{s-1}"] + pv(s - 1)[:1] + mm + pv(s - 1)[1:] + (vread(s + 2) if s + 2 < 9 else [])
        ex = [f"v_exp_f32 v{b+r}, v{b+r}" for r in range(16)]
        cv = [f"v_cvt_pk_bf16_f32 v{pb+r}, v{b+2*r}, v{b+2*r+1}" for r in range(8)]
        body = ex[:4]
        k = 0
        chunks = [ex[4:8], ex[8:12], ex[12:16] + cv]
        for x in mm:
            body.append(x)
            if x.startswith(MF) and k < 3:
                body.extend(chunks[k]); k += 1
        for c in chunks[k:]: body.extend(c)
        a.extend(body)
    a("WAITL v8")
    a.extend(pv(8))
    st()
    a(f"v_mov_b32 v2, v{OA+12}")
    a(f"v_mov_b32 v3, v{OA+12}")
    a("v_permlane32_swap_b32 v2, v3")
    a("v_rcp_f32 v3, v3")
    for r in range(16): a(f"v_mul_f32 v{OA+r}, v{OA+r}, v3")
    for r in range(8): a(f"v_cvt_pk_bf16_f32 v{PB+r}, v{OA+2*r}, v{OA+2*r+1}")
    for q in range(4):
        if q == 3: a("s_mov_b32 exec_hi, 0")
        a(f"buffer_store_dwordx2 {vr(PB+2*q, 2)}, v21, s[24:27], s67 offen offset:{q*512} {LS()} ; @o")
    f3 = flag(3, "o")
    a.extend(f3[0]); a.extend(f3[1])
    st()
    st.dump()
    a("s_endpgm")
    for L, c in stubs:
        a.label(L)
        lds_wait(a, c)
        a(f"s_branch {L}_r")

def gpoll(a, va, sg, pre=False, sl=None):
    L = a.newlabel("GP")
    a("s_mov_b32 s96, 0")
    if pre:
        a("WAITV poll")
        a.extend(fcheck(1, 5))
        a(f"s_cbranch_scc1 {L}_d")
    a.label(L)
    a(f"buffer_load_dword v5, v{va}, s[24:27], s{sg} offen sc1 ; @nocount")
    a("s_waitcnt vmcnt(0)")
    a.extend(fcheck(1, 5))
    a(f"s_cbranch_scc1 {L}_d")
    a(f"s_sleep {sl or OPT.get('gsl', 8)}")
    a("s_add_u32 s96, s96, 1")
    a(f"s_cmp_lt_u32 s96, {SPIN}")
    a(f"s_cbranch_scc1 {L}")
    a.label(f"{L}_d")

def fcheck(nreg, base):
    o = []
    if nreg == 4:
        for r in range(4): o.append(f"v_xor_b32 v{base+r}, s{NON}, v{base+r}")
        o.append(f"v_or3_b32 v{base}, v{base}, v{base+1}, v{base+2}")
        o.append(f"v_or_b32 v{base}, v{base}, v{base+3}")
        o.append(f"v_cmp_ne_u32 vcc, 0, v{base}")
    else:
        o.append(f"v_cmp_ne_u32 vcc, s{NON}, v{base}")
    o.append("s_nop 1")
    o.append("s_cmp_eq_u64 vcc, 0")
    return o

def gen_B(a):
    st = Stamper(a)
    KB = 57
    ACC, NS = 32, 35
    BLK = [96 + 8*k for k in range(20)]
    st()
    a("v_lshrrev_b32 v24, 5, v1")
    a("v_lshlrev_b32 v21, 3, v1")
    a("v_lshlrev_b32 v22, 4, v1")
    a("v_and_b32 v2, 31, v1")
    a("v_mul_u32_u24 v28, 7168, v24")
    a("v_lshl_add_u32 v28, v2, 4, v28")
    a("v_lshrrev_b32 v3, 3, v1")
    a(f"s_min_u32 s65, s{I2}, 2")
    a("v_min_u32 v3, s65, v3")
    a(f"v_sub_u32 v3, s{I2}, v3")
    a("v_and_b32 v4, 7, v1")
    a("v_min_u32 v4, 5, v4")
    a("v_lshrrev_b32 v5, 1, v4")
    a("v_mul_u32_u24 v5, 448, v5")
    a("v_and_b32 v4, 1, v4")
    a("v_mul_u32_u24 v4, 27, v4")
    a(f"s_mul_i32 s65, s{HEAD}, 28")
    a("v_add3_u32 v4, v4, v5, s65")
    a("v_mul_u32_u24 v4, 683, v4")
    a("v_lshrrev_b32 v4, 16, v4")
    a("v_lshl_add_u32 v4, v3, 4, v4")
    a("v_lshlrev_b32 v7, 7, v4")
    a("""v_lshrrev_b32 v2, 3, v1
    v_and_b32 v3, 7, v1
    v_bfe_u32 v4, v2, 1, 1
    v_lshlrev_b32 v4, 2, v4
    v_xor_b32 v5, v3, v4
    v_mul_u32_u24 v6, 2688, v2
    v_lshl_add_u32 v8, v5, 4, v6
    v_mul_u32_u24 v6, 3584, v2
    v_lshl_add_u32 v10, v5, 4, v6
    v_mul_u32_u24 v6, 896, v2
    v_lshl_add_u32 v12, v5, 4, v6""")
    a(f"v_add_u32 v9, {8*2688 - 1024}, v8")
    a(f"v_add_u32 v11, {8*3584 - 1024}, v10")
    a(f"v_add_u32 v13, {8*896 - 1024}, v12")
    a("""v_lshrrev_b32 v2, 2, v1
    v_and_b32 v3, 3, v1
    v_mul_u32_u24 v6, 2688, v2
    v_lshl_add_u32 v14, v3, 4, v6""")
    a(f"""s_mul_i32 s64, s{JJ}, 192
    s_and_b32 s65, s{JJ}, 1
    s_lshl_b32 s66, s65, 6
    s_add_u32 s66, s64, s66
    s_xor_b32 s65, s65, 1
    s_lshl_b32 s65, s65, 7
    s_add_u32 s64, s64, s65""")
    a(f"s_mul_i32 s65, s{WV}, {16*2688}")
    a("s_add_u32 s64, s64, s65")
    a("s_add_u32 s66, s66, s65")
    a(f"s_mul_i32 s67, s{WV}, {16*3584}")
    a(f"s_lshl_b32 s87, s{JJ}, 8")
    a("s_add_u32 s67, s67, s87")
    a("s_add_u32 s68, s67, 128")
    a(f"s_lshl_b32 s69, s{WV}, 10")
    a(f"s_lshl_b32 s70, s{WV}, 11")
    a("""v_and_b32 v2, 15, v1
    v_bfe_u32 v3, v1, 4, 1
    v_lshrrev_b32 v4, 2, v2
    v_bfe_u32 v5, v2, 1, 1
    v_lshl_add_u32 v5, v3, 1, v5
    v_bfe_u32 v6, v2, 3, 1
    v_lshlrev_b32 v6, 2, v6
    v_xor_b32 v5, v5, v6
    v_lshl_add_u32 v4, v24, 2, v4
    v_lshlrev_b32 v4, 7, v4
    v_and_b32 v6, 1, v2
    v_lshl_add_u32 v4, v6, 3, v4
    v_lshl_add_u32 v2, v5, 4, v4
    v_xor_b32 v5, 4, v5
    v_lshl_add_u32 v3, v5, 4, v4""")
    a(f"s_mul_i32 s71, s{WV}, 7168");  a(f"s_add_u32 s71, s71, {P4}")
    a(f"s_lshl_b32 s72, s{WV}, 12");   a(f"s_add_u32 s72, s72, {MSLOT}")
    a(f"s_mul_i32 s73, s{WV}, 14336"); a(f"s_add_u32 s73, s73, {P2}")
    for k, sg in enumerate((71, 72, 73)):
        a(f"v_add_u32 v{17+2*k if k < 2 else 25}, s{sg}, v2")
        a(f"v_add_u32 v{18+2*k if k < 2 else 26}, s{sg}, v3")
    a(f"s_lshl_b32 s74, s{CB}, 7")
    a(f"s_mul_i32 s75, s{WV}, {16*896}")
    a("s_add_u32 s75, s75, s74")
    a(f"s_lshl_b32 s84, s{CB}, 1" if OPT.get('hrot', 1) else "s_mov_b32 s84, 0")
    a(f"s_mul_i32 s65, s84, {128*896}")
    a("s_add_u32 s75, s75, s65")
    a(f"s_sub_u32 s85, s75, {14*128*896}")
    a(f"s_mul_i32 s76, s{WV}, {7*16*896}")
    a("s_add_u32 s76, s76, s74")
    a(f"s_mul_i32 s77, s{RB}, {2*H_T}")
    a("s_add_u32 s77, s77, s69")
    a(f"s_add_u32 s77, s77, {WS_H}")
    a("s_lshl_b32 s65, s84, 13")
    a("s_add_u32 s77, s77, s65")
    a(f"s_sub_u32 s86, s77, {14*8192}")
    a(f"v_add_u32 v23, {H_T}, v22")
    a(f"s_mul_i32 s78, s{RB}, {2*O_T}")
    a(f"s_mul_i32 s65, s{WV}, 7168")
    a("s_add_u32 s78, s78, s65")
    a(f"s_add_u32 s78, s78, {WS_O}")
    a("v_and_b32 v6, 15, v1")
    a("v_min_u32 v4, 13, v6")
    a("v_lshlrev_b32 v4, 7, v4")
    a("v_lshlrev_b32 v6, 7, v6")
    a(f"s_lshr_b32 s79, s{RB}, 1")
    a("s_lshl_b32 s79, s79, 11")
    a(f"s_add_u32 s79, s79, {FLG + 0x8000}")
    a("s_add_u32 s80, s79, 0x8000")
    a("s_add_u32 s81, s79, 0x10000")
    a(f"s_mov_b32 s82, {FLG}")
    a("v_lshlrev_b32 v15, 2, v1")

    def single_dma(n):
        return [f"s_mul_i32 s65, s{KB+n}, {64*2688}", "s_add_u32 s65, s65, s64", f"s_add_u32 m0, s69, {UB[1] + n*4096}",
                "buffer_load_dwordx4 v14, s[12:15], s65 offen lds ; @u1"]
    def pair_dma(n, u):
        rs, sr, vo, sb = {2: (3584, 16, 10, 67), 0: (2688, 12, 8, 66), 3: (3584, 16, 10, 68)}[u]
        o = [f"s_mul_i32 s65, s{KB+n}, {64*rs}", f"s_add_u32 s65, s65, s{sb}", f"s_add_u32 m0, s70, {UB[u] + n*8192}"]
        for p in range(2):
            o.append(f"buffer_load_dwordx4 v{vo+p}, s[{sr}:{sr+3}], s65 offen offset:{p*1024} lds ; @u{u}")
        return o
    SL = [(72, m*2048, 19) for m in range(2)] + [(71, e*2048, 17) for e in range(3)] + [(73, l*2048, 25) for l in range(7)]
    smap, wblk = {}, {}
    def w_dma(s, sl):
        smap[s] = sl
        sg, c, _ = SL[sl]
        if s < 28:
            off = ((s % 14) * 8 + (4 if s >= 14 else 0)) * 16 * 896
            o = [f"s_cmp_ge_u32 s84, {14 - s % 14}", "s_cselect_b32 s65, s85, s75", f"s_add_u32 s65, s65, {off}"]
        else: o = [f"s_add_u32 s65, s76, {(s - 28) * 16 * 896}"]
        o.append(f"s_add_u32 m0, s{sg}, {c}")
        sr = 28 if s < 28 else 32
        for p in range(2):
            o.append(f"buffer_load_dwordx4 v{12+p}, s[{sr}:{sr+3}], s65 offen offset:{p*1024} lds ; @d{s}")
        return o
    def w_read(s, b):
        wblk[s] = b
        _, c, ad = SL[smap[s]]; o = []
        for ct in range(2):
            o.append(f"ds_read_b64_tr_b16 {vr(b+4*ct, 2)}, v{ad+ct} offset:{c} ; @r{s}")
            o.append(f"ds_read_b64_tr_b16 {vr(b+4*ct+2, 2)}, v{ad+ct} offset:{c + 1024} ; @r{s}")
        return o
    pool = list(BLK)
    def regstep(s, nxt):
        a(f"WAITV d{s}")
        a.extend(w_read(s, pool.pop()))
        a("s_waitcnt lgkmcnt(0)")
        if nxt is not None: a.extend(w_dma(nxt, smap[s]))
    def kv_stage(slp):
        a(f"s_lshl_b32 s88, s{I2}, 2")
        a(f"s_mul_i32 s89, s{WV}, 3")
        a("s_add_u32 s89, s89, s88")
        a(f"s_mul_i32 s90, s{WV}, 6144")
        a("v_and_b32 v2, 31, v1")
        a("v_lshl_add_u32 v2, v2, 3, s90")
        a("v_mov_b32 v9, 0")
        for k in range(3):
            a(f"s_add_u32 s65, s89, {k}")
            a("s_cmp_lt_u32 s65, 8")
            a("s_cselect_b32 s65, 0xf149, 0")
            a("v_mov_b32 v8, s65")
            a(f"ds_write_b64 v2, v[8:9] offset:{LK + k*2048 + 1792}")
        a("v_and_b32 v2, 31, v1")
        a("v_lshl_add_u32 v2, v2, 3, s70")
        a("v_mov_b32 v8, 0x3f80")
        a(f"ds_write_b64 v2, v[8:9] offset:{LQ + 1792}")
        a("""v_and_b32 v2, 3, v1
        v_cmp_eq_u32 vcc, 0, v2
        v_mov_b32 v3, 0x3f803f80
        v_cndmask_b32 v8, 0, v3, vcc
        v_mov_b32 v9, v8
        v_mov_b32 v10, v8
        v_mov_b32 v11, v8
        v_lshrrev_b32 v3, 2, v1
        v_lshlrev_b32 v3, 9, v3
        v_lshl_add_u32 v3, v2, 4, v3
        v_add_u32 v3, s90, v3
        s_mov_b32 exec_hi, 0xffff""")
        a(f"ds_write_b128 v3, v[8:11] offset:{LV + 448}")
        a("s_mov_b64 exec, -1")
        gpoll(a, 7, 82, slp is None and OPT.get('qe', 0) > 0, slp)
        st()
        a(f"s_mul_i32 s91, s{HEAD}, 1792")
        a(f"s_add_u32 s65, s88, s{WV}")
        a(f"s_mul_i32 s65, s65, {QK_T}")
        a("s_add_u32 s65, s65, s91")
        a(f"s_add_u32 m0, s70, {LQ}")
        a("buffer_load_dwordx4 v22, s[24:27], s65 offen sc1 lds")
        a("s_mov_b32 exec_hi, 0xffff")
        a("buffer_load_dwordx4 v22, s[24:27], s65 offen offset:1024 sc1 lds")
        a("s_mov_b64 exec, -1")
        for k in range(3):
            a(f"s_add_u32 s92, s89, {k}")
            a("s_sub_u32 s93, s92, 8")
            a(f"s_mul_i32 s65, s93, {QK_T}")
            a("s_add_u32 s65, s65, s91")
            a(f"s_add_u32 s65, s65, {112*256}")
            a(f"s_mul_i32 s93, s93, {V_T}")
            a(f"s_mul_i32 s96, s{HEAD}, 448")
            a("s_add_u32 s93, s93, s96")
            a(f"s_add_u32 s93, s93, {WS_V}")
            a("s_cmp_lt_u32 s92, 8")
            a("s_cselect_b32 s65, 0x7fff0000, s65")
            a("s_cselect_b32 s93, 0x7fff0000, s93")
            a(f"s_add_u32 s92, s93, {14336 - 1024}")
            a(f"s_add_u32 m0, s90, {LK + k*2048}")
            a("buffer_load_dwordx4 v22, s[24:27], s65 offen sc1 lds")
            a("s_mov_b32 exec_hi, 0xffff")
            a("buffer_load_dwordx4 v22, s[24:27], s65 offen offset:1024 sc1 lds")
            a("s_mov_b32 exec_lo, 0x0fffffff")
            a("s_mov_b32 exec_hi, 0x0fffffff")
            a(f"s_add_u32 m0, s90, {LV + k*2048}")
            a("buffer_load_dwordx4 v28, s[24:27], s93 offen sc1 lds")
            a("buffer_load_dwordx4 v28, s[24:27], s92 offen offset:1024 sc1 lds ; @kv")
            a("s_mov_b64 exec, -1")
    a("s_cmp_ge_u32 s56, 28")
    a("s_cbranch_scc1 B_helper")
    a.save("bm")
    st()
    if OPT.get('xiss', 3) < 7: lds_wait(a, XISS)
    for n in range(7): a.extend(pair_dma(n, 0))
    a("buffer_load_dword v16, v15, s[20:23], s87 offen ; @bias")
    for n in range(3): a.extend(single_dma(n))
    a("WAITV bias")
    a.extend(signal(RD0))
    for n in range(3, 7): a.extend(single_dma(n))
    a("v_lshlrev_b32 v2, 16, v16")
    a("v_and_b32 v3, 0xffff0000, v16")
    a(f"v_add_u32 v5, {BIAST}, v21")
    a("ds_write_b64 v5, v[2:3]")
    a(f"v_add_u32 v16, {O_T}, v21")
    st()
    lds_wait(a, FXS)
    for n in range(3): a.extend(pair_dma(n, 2))
    a("WAITV u1")
    a.extend(signal(RD1))
    for n in range(3, 7): a.extend(pair_dma(n, 2))
    def touch():
        a(f"s_and_b32 s65, s{RB}, 3")
        a("s_lshl_b32 s65, s65, 2")
        a(f"s_add_u32 s65, s65, s{WV}")
        a(f"s_mul_i32 s88, s65, {112*896}")
        a("s_add_u32 s88, s88, s74")
        a(f"s_add_u32 s89, s88, {56*896}")
        a(f"s_mul_i32 s90, s65, {28*896}")
        a("s_add_u32 s90, s90, s74")
        a("v_mul_u32_u24 v2, 896, v1")
        a("s_mov_b32 exec_hi, 0xffffff")
        a("buffer_load_dword v32, v2, s[28:31], s88 offen")
        if OPT.get('tw', 0): a("s_waitcnt vmcnt(0)")
        a("buffer_load_dword v33, v2, s[28:31], s89 offen")
        a("s_mov_b64 exec, 0xfffffff")
        if OPT.get('tw', 0): a("s_waitcnt vmcnt(0)")
        a("buffer_load_dword v34, v2, s[32:35], s90 offen")
        a("s_mov_b64 exec, -1")
    a("WAITV u2")
    a.extend(signal(RD2))
    if OPT.get('touch', 0) == 1: touch()
    st()
    TH = OPT.get('th', 4)
    thr = lambda t=None: a(f"s_waitcnt vmcnt({t or TH})") if TH < 63 else None
    E0, E1, E2 = OPT.get('e0', 0), OPT.get('e1', 5), OPT.get('e2', 12)
    if E0:
        a.extend(w_dma(0, 0)); a.extend(w_dma(1, 1))
        regstep(0, 2); regstep(1, 3)
    lds_wait(a, FU0)
    for n in range(7):
        a.extend(pair_dma(n, 3)); thr(TH + (2 if E0 else 0))
        if E0 and n % 2 == 1 and 2 + n // 2 < E0: regstep(2 + n // 2, 4 + n // 2)
    a("WAITV u3")
    a.extend(signal(RD3))
    if OPT.get('touch', 0) == 2: touch()
    if E1:
        lds_wait(a, FU1)
        if E0:
            for k in range(3): a.extend(w_dma(E0 + 2 + k, 2 + k)); thr(OPT.get('th1', 6))
        else:
            for k in range(5): a.extend(w_dma(k, k)); thr(OPT.get('th1', 6))
        for s_ in range(E0, E1):
            if s_ == E1 - OPT.get('qe', 0):
                lds_wait(a, AG0)
                a("buffer_load_dword v5, v7, s[24:27], s82 offen sc1 ; @poll")
            regstep(s_, s_ + 5); thr(OPT.get('th1', 6))
    st()
    hb = {}
    def h_load(s):
        b = hb[s] = pool.pop(0)
        if s < 28:
            off = (s % 14) * 8192 + (4096 if s >= 14 else 0)
            return [f"s_cmp_ge_u32 s84, {14 - s % 14}", "s_cselect_b32 s65, s86, s77", f"s_add_u32 s65, s65, {off}",
                    f"buffer_load_dwordx4 {vr(b, 4)}, v22, s[24:27], s65 offen {LL()} ; @h{s}",
                    f"buffer_load_dwordx4 {vr(b+4, 4)}, v23, s[24:27], s65 offen {LL()} ; @h{s}"]
        o = [f"s_add_u32 s65, s78, {(s - 28) * 1024}"]
        for rt in range(2):
            for hf in range(2):
                o.append(f"buffer_load_dwordx2 {vr(b+4*rt+2*hf, 2)}, v{21 if rt == 0 else 16}, s[24:27], s65 offen offset:{hf*512} {LL()} ; @h{s}")
        return o
    def mfmas(s):
        for ct in range(2):
            for rt in range(2):
                d = vr(ACC + 16*(2*ct+rt), 16)
                if OPT.get('nomf', 0) and s > 0 and (ct or rt): continue
                a(f"{MF} {d}, {vr(wblk[s] + 4*ct, 4)}, {vr(hb[s]+4*rt, 4)}, {'0' if s == 0 else d}")
        pool.append(hb[s]); pool.append(wblk[s])
    PD = OPT.get('pd', 8)
    lds_wait(a, FU2)
    kv_stage(None)
    if not E1:
        for k in range(5): a.extend(w_dma(k, k))
    a("v_and_b32 v2, 31, v1")
    a("v_mul_u32_u24 v8, 896, v2")
    a("v_lshl_add_u32 v8, v24, 4, v8")
    a("v_lshlrev_b32 v9, 4, v24")
    a(f"s_lshl_b32 s88, s{RB}, 1")
    a(f"s_and_b32 s89, s{WV}, 1")
    a("s_add_u32 s88, s88, s89")
    a(f"s_mul_i32 s88, s88, {32*896}")
    a(f"s_lshr_b32 s89, s{WV}, 1")
    a("s_lshl_b32 s89, s89, 6")
    a("s_add_u32 s89, s89, s74")
    a("s_add_u32 s88, s88, s89")
    T2 = OPT.get('th2', 63)
    KD = OPT.get('kd', 0)
    for s_ in range(E1, E2 + 1):
        if s_ == min(E2, E1 + KD):
            a("WAITV kv")
            a.extend(signal(RD4))
        if s_ == E2: break
        regstep(s_, s_ + 5)
        if T2 < 63: a(f"s_waitcnt vmcnt({T2})")
    st()
    lds_wait(a, FU3)
    for k in range(7):
        if E2 >= OPT.get('nreg', 14) and k == OPT.get('hk', 3):
            lds_wait(a, AG1)
            a("buffer_load_dword v5, v4, s[24:27], s79 offen sc1 ; @poll")
        a.extend(w_dma(E2 + 5 + k, 5 + k))
        if OPT.get('th3', 63) < 63: a(f"s_waitcnt vmcnt({OPT['th3']})")
    HP = OPT.get('hp', 12)
    NREG = OPT.get('nreg', 14)
    for s_ in range(E2, NREG):
        if s_ == HP:
            lds_wait(a, AG1)
            a("buffer_load_dword v5, v4, s[24:27], s79 offen sc1 ; @poll")
        regstep(s_, s_ + 12)
    st()
    gpoll(a, 4, 79, True)
    if OPT.get('pb', 0): a(f"s_setprio {OPT['pb']}")
    st()
    CK = {OPT.get('ck14', 8): (4, 80, 27), OPT.get('ck28', 22): (6, 81, NS - 1)}
    nxt, limit = 0, 13
    for s in range(NS):
        PE = OPT.get('pe', 6)
        if s + PE in CK: a(f"buffer_load_dword v5, v{CK[s+PE][0]}, s[24:27], s{CK[s+PE][1]} offen sc1 ; @poll")
        if s in CK:
            st()
            gpoll(a, CK[s][0], CK[s][1], True)
            st()
            limit = CK[s][2]
        while nxt <= min(limit, s + PD) and len(pool) > (2 if s >= NREG - 2 else 0):
            a.extend(h_load(nxt)); nxt += 1
        assert nxt > s
        if NREG <= s + 1 < NS:
            a(f"WAITV d{s+1}")
            a.extend(w_read(s + 1, pool.pop(0)))
        a(f"WAITV h{s}" + (f" WAITL r{s}" if s >= NREG else ""))
        if s >= NREG and s + 12 < NS: a.extend(w_dma(s + 12, smap[s]))
        if s == 16:
            XR = pool.pop(); XR2 = pool.pop()
            for k in range(2):
                a(f"buffer_load_dwordx4 {vr(XR+4*k, 4)}, v8, s[8:11], s88 offen offset:{32*k}")
                a(f"buffer_load_dwordx4 {vr(XR2+4*k, 4)}, v9, s[36:39], s89 offen offset:{32*k}")
        if s == 30: a(f"ds_read_b32 v29, v27 offset:{4*AG3} ; @ag3")
        mfmas(s)
    st()
    FB = [b for b in BLK if b not in (XR, XR2)]
    XS_ = [FB[8], FB[9]]
    for k in range(2):
        for r in range(8):
            op = (lambda d, x: f"v_and_b32 v{d}, 0xffff0000, v{x}") if r & 1 else (lambda d, x: f"v_lshlrev_b32 v{d}, 16, v{x}")
            a(op(XS_[k] + r, XR + 4*k + r//2))
            a(op(FB[10] + r, XR2 + 4*k + r//2))
        for r in range(0, 8, 2): a(f"v_pk_add_f32 {vr(XS_[k]+r, 2)}, {vr(XS_[k]+r, 2)}, {vr(FB[10]+r, 2)}")
    a("v_readfirstlane_b32 s97, v29")
    a("s_cmp_ge_u32 s97, 4")
    a("s_cbranch_scc1 B_rok")
    lds_wait(a, AG3)
    a.label("B_rok")
    for w in range(4):
        if w < 3:
            a(f"s_cmp_lg_u32 s{WV}, {w}")
            a(f"s_cbranch_scc1 B_w{w+1}")
        for qd in range(4):
            if qd == w: continue
            slot = qd * 3 + (w if w < qd else w - 1)
            for q in range(4):
                a(f"ds_write_b128 v22, {vr(ACC + 16*qd + 4*q, 4)} offset:{slot*4096 + q*1024}")
        for r in range(0, 16, 2): a(f"v_mov_b64 {vr(FB[6 + r//8] + r % 8, 2)}, {vr(ACC + 16*w + r, 2)}")
        if w < 3:
            a("s_branch B_wj")
            a.label(f"B_w{w+1}")
    a.label("B_wj")
    a(f"s_mul_i32 s65, s{WV}, 12288")
    a("v_add_u32 v10, s65, v22")
    a("s_waitcnt lgkmcnt(0)")
    a("s_barrier")
    for q in range(4):
        for p in range(3):
            a(f"ds_read_b128 {vr(FB[2*p + q//2] + 4*(q & 1), 4)}, v10 offset:{p*4096 + q*1024} ; @e{q}")
    for k in range(2):
        o = FB[6 + k]
        a(f"WAITL e{2*k+1}")
        for r in range(0, 8, 2): a(f"v_pk_add_f32 {vr(FB[k]+r, 2)}, {vr(FB[k]+r, 2)}, {vr(FB[2+k]+r, 2)}")
        for r in range(0, 8, 2): a(f"v_pk_add_f32 {vr(o+r, 2)}, {vr(o+r, 2)}, {vr(FB[4+k]+r, 2)}")
        for r in range(0, 8, 2): a(f"v_pk_add_f32 {vr(o+r, 2)}, {vr(o+r, 2)}, {vr(FB[k]+r, 2)}")
        for r in range(4): a(f"v_permlane32_swap_b32 v{o+r}, v{o+4+r}")
        for r in range(0, 8, 2): a(f"v_pk_add_f32 {vr(o+r, 2)}, {vr(o+r, 2)}, {vr(XS_[k]+r, 2)}")
        for r in range(4): a(f"v_cvt_pk_bf16_f32 v{o+r}, v{o+2*r}, v{o+2*r+1}")
        a(f"buffer_store_dwordx4 {vr(o, 4)}, v8, s[40:43], s88 offen offset:{32*k} {'sc1' if OPT.get('osc', 0) else ''}")
    st()
    st.dump()
    a("s_endpgm")
    a.label("B_helper"); a.restore("bm")
    a("s_sub_u32 s64, s56, 28")
    a("s_lshl_b32 s64, s64, 3")
    a("s_and_b32 s65, s2, 7")
    a("s_add_u32 s64, s64, s65")
    a("s_lshl_b32 s64, s64, 2")
    a(f"s_add_u32 s64, s64, s{WV}")
    a("v_lshlrev_b32 v2, 7, v1")
    a("s_lshl_b32 s64, s64, 13")
    a("s_add_u32 s65, s64, 0x100000")
    HS = OPT.get('hs', 1)
    a("buffer_load_dword v44, v2, s[12:15], s64 offen")
    a("buffer_load_dword v45, v2, s[12:15], s65 offen")
    if HS: a("s_waitcnt vmcnt(0)")
    a("buffer_load_dword v42, v2, s[16:19], s64 offen")
    a("buffer_load_dword v43, v2, s[16:19], s65 offen")
    if HS: a("s_waitcnt vmcnt(0)")
    a("buffer_load_dword v46, v2, s[28:31], s64 offen")
    a("buffer_load_dword v47, v2, s[28:31], s65 offen")
    a("buffer_load_dword v48, v2, s[32:35], s64 offen")
    kv_stage(OPT.get('hsl', 32))
    a("WAITV kv")
    a.extend(signal(RD4))
    st.dump()
    a("s_cmp_lg_u32 s2, 255")
    a("s_cbranch_scc1 B_hend")
    a(f"s_cmp_lg_u32 s{WV}, 0")
    a("s_cbranch_scc1 B_hend")
    a("s_mov_b64 exec, -1")
    a("v_lshlrev_b32 v7, 7, v1")
    for k in range(4):
        a(f"s_mov_b32 s82, {FLG + 0x18000 + k*8192}")
        gpoll(a, 7, 82, False, 16)
    a(f"v_mov_b32 v2, s{NON}")
    a("v_mov_b32 v3, 0")
    a(f"s_mov_b32 s65, {WS_FL}")
    a("s_mov_b64 exec, 1")
    a("buffer_store_dword v2, v3, s[24:27], s65 offen sc1")
    a.label("B_hend")
    a("s_endpgm")

def build(path):
    a = Asm()
    a.raw(open("hdr.txt").read().rstrip() if OPT.get('hdr', 0) else "; fused kernel")
    a.raw("; @launch grid=(256,1,1) block=(512,1,1) lds=163840")
    a.raw('.amdgcn_target "amdgcn-amd-amdhsa--gfx950"')
    kernel_header(a, NAME)
    a("s_cmp_ge_u32 s2, 256")
    a("s_cbranch_scc1 K_exit")
    if STAMPS: a("s_memrealtime s[100:101]")
    a("s_load_dwordx16 s[64:79], s[0:1], 0")
    a("s_load_dwordx4 s[80:83], s[0:1], 64")
    a("s_load_dwordx2 s[84:85], s[0:1], 80")
    if OPT.get('cpf', 1):
        a("s_getpc_b64 s[46:47]")
        a.label("K_pc")
        a(f"s_sub_u32 s46, s46, K_pc-{NAME}")
        a("s_subb_u32 s47, s47, 0")
        a("s_bfe_u32 s45, s2, 0x30003")
        a("s_mul_i32 s45, s45, 5120")
        a("v_lshrrev_b32 v2, 6, v0")
        a("v_mul_u32_u24 v2, 5, v2")
        a("v_and_b32 v3, 63, v0")
        a("v_add_lshl_u32 v2, v2, v3, 7")
        a("v_add_u32 v2, s45, v2")
        a(f"v_min_u32 v2, K_end-{NAME}-4, v2")
        a("s_mov_b64 exec, 31")
        a("global_load_dword v95, v2, s[46:47] ; @nocount")
        a("s_mov_b64 exec, -1")
    a("""v_and_b32 v1, 63, v0
    v_lshrrev_b32 v2, 6, v0
    s_and_b32 s3, s2, 7
    v_readfirstlane_b32 s4, v2
    s_lshr_b32 s56, s2, 3
    s_mul_i32 s5, s56, 37
    s_lshr_b32 s5, s5, 8
    s_mul_i32 s6, s5, 7
    s_sub_u32 s6, s56, s6""")
    if OPT.get('loc', 0):
        a(f"""s_lshr_b32 s7, s5, 1
        s_lshl_b32 s{I1}, s3, 1
        s_add_u32 s{I1}, s{I1}, s7
        s_and_b32 s{JJ}, s5, 1
        s_mul_i32 s{JJ}, s{JJ}, 7
        s_add_u32 s{JJ}, s{JJ}, s6
        s_and_b32 s{HEAD}, s56, 15
        s_lshr_b32 s7, s56, 4
        s_lshl_b32 s{I2}, s3, 1
        s_add_u32 s{I2}, s{I2}, s7""")
    else:
        a(f"""s_lshr_b32 s{I1}, s3, 1
        s_lshl_b32 s{I1}, s{I1}, 2
        s_add_u32 s{I1}, s{I1}, s5
        s_and_b32 s{JJ}, s3, 1
        s_mul_i32 s{JJ}, s{JJ}, 7
        s_add_u32 s{JJ}, s{JJ}, s6
        s_and_b32 s{HEAD}, s56, 1
        s_lshl_b32 s7, s3, 1
        s_add_u32 s{HEAD}, s{HEAD}, s7
        s_lshr_b32 s{I2}, s56, 1""")
    a(f"""s_lshl_b32 s{RB}, s3, 2
    s_add_u32 s{RB}, s{RB}, s5
    s_mov_b32 s{CB}, s6
    s_and_b32 s{WV}, s4, 3""")
    a(f"""s_lshl_b32 s57, s{I1}, 1
    s_add_u32 s57, s57, s{JJ}
    s_mul_i32 s7, s57, 37
    s_lshr_b32 s7, s7, 8
    s_mul_i32 s7, s7, 7
    s_sub_u32 s57, s57, s7""")
    for n in range(1, 7):
        a(f"s_add_u32 s{57+n}, s{56+n}, 1")
        a(f"s_cmp_eq_u32 s{57+n}, 7")
        a(f"s_cselect_b32 s{57+n}, 0, s{57+n}")
    a(f"v_mov_b32 v27, {CNT}")
    a("v_mov_b32 v30, 1")
    a("s_waitcnt lgkmcnt(0)")
    srd(a, 8, 64, S * D * 2)
    srd(a, 24, 84, WS_SIZE)
    a(f"s_add_u32 s86, s84, {WS_FL}")
    a("s_addc_u32 s87, s85, 0")
    a("s_load_dword s44, s[86:87], 0")
    a("s_cmp_lt_u32 s4, 4")
    a("s_cbranch_scc1 A_start")
    a("v_mov_b32 v2, 0")
    a("v_lshl_add_u32 v3, v1, 2, v27")
    a("ds_write_b32 v3, v2")
    nonce(a)
    a("s_branch B_start")
    a.label("A_start")
    a.save("role")
    gen_A(a, [])
    a.label("B_start"); a.restore("role")
    srd(a, 12, 66, D * 3 * D * 2)
    srd(a, 16, 72, D * F * 2)
    srd(a, 20, 74, F * 2)
    srd(a, 28, 76, F * D * 2)
    srd(a, 32, 68, D * D * 2)
    srd(a, 36, 78, D * 2)
    srd(a, 40, 80, S * D * 2)
    a("s_barrier")
    gen_B(a)
    a.label("K_exit")
    a("s_endpgm")
    a.label("K_end")
    kernel_desc(a, NAME, 256, 102, 256)
    open(path, "w").write(a.text())
    print("padded nops:", a.padded)

if __name__ == "__main__":
    if len(sys.argv) > 2 and sys.argv[2] == "st": STAMPS = True
    for kv in sys.argv[3:]:
        k, v = kv.split("="); OPT[k] = int(v)
    build(sys.argv[1])
```

```python
import math, struct, sys
from asmlib import *

S, D, F, H, DH = 2048, 448, 1792, 16, 28
WS_QK, WS_V, WS_H, WS_O, WS_FL = 0x0, 0x400000, 0x600000, 0xE00000, 0x1000000
WS_SIZE = 0x1040000
FLG = WS_FL + 0x8000
WS_DBG = 0xF800000
QK_T, V_T, H_T, O_T = 57344, 28672, 114688, 28672
NAME = "parallel_sum__sliding_block__dense_activation_gelu__prompt_kernel"
STAMPS = False
OPT = {}

def f32(x): return "0x%08x" % struct.unpack("<I", struct.pack("<f", x))[0]
LOG2E = 1.4426950408889634
QSCALE = DH ** -0.5 * LOG2E
GC1 = -2.0 * math.sqrt(2.0 / math.pi) * LOG2E
GC2 = GC1 * 0.044715
NEG = -1e30
def vr(b, n): return f"v[{b}:{b+n-1}]"
MF = "v_mfma_f32_32x32x16_bf16"

P0, P1, P2, P3, P4, MISC = 0, 28672, 57344, 86016, 114688, 143360
UB = [P2, P4, P0, P2]
CNT, RRT, BIAST, MSLOT = MISC, MISC + 256, MISC + 1024, MISC + 4096
LK, LV, LQ = 0, 24576, 49152
XISS, FXS, RD0, RD1, RD2, RD3, RD4, FU0, FU1, FU2, FU3, NONCE, AG0, AG1, AG2, AG3, FU1A = range(17)
WV, I1, JJ, HEAD, I2, RB, CB, NON = 48, 49, 50, 51, 52, 53, 54, 55
SPIN = 20000

class Stamper:
    def __init__(self, a): self.a, self.n = a, 0
    def __call__(self, idx=None):
        if idx is not None: self.n = idx
        if STAMPS:
            self.a("s_memtime s[98:99]" if OPT.get('cyc', 0) else "s_memrealtime s[98:99]")
            self.a("s_waitcnt lgkmcnt(0)")
            self.a(f"v_writelane_b32 v31, s98, {self.n}")
        self.n += 1
    def dump(self):
        if not STAMPS: return
        a = self.a
        a("s_memrealtime s[98:99]")
        a("s_waitcnt vmcnt(0) lgkmcnt(0)")
        a("v_writelane_b32 v31, s98, 31")
        a("v_writelane_b32 v31, s100, 30")
        a("s_mov_b32 s26, 0x10000000")
        a("s_lshl_b32 s96, s2, 3")
        a("v_lshrrev_b32 v2, 6, v0")
        a("v_add_u32 v2, s96, v2")
        a("v_lshlrev_b32 v2, 5, v2")
        a("v_add_lshl_u32 v2, v2, v1, 2")
        a(f"s_mov_b32 s96, {WS_DBG}")
        a("s_mov_b32 exec_hi, 0")
        a("buffer_store_dword v31, v2, s[24:27], s96 offen")
        if OPT.get('dd', -1) >= 0:
            L = a.newlabel("DD")
            a(f"s_cmp_lg_u32 s2, {OPT.get('dw', 100)}")
            a(f"s_cbranch_scc1 {L}")
            a(f"s_cmp_lg_u32 s4, {OPT['dd']}")
            a(f"s_cbranch_scc1 {L}")
            a("v_subrev_u32 v3, s100, v31")
            a("v_lshlrev_b32 v2, 2, v1")
            a("buffer_store_dword v3, v2, s[44:47], 0 offen")
            a.label(L)

def LS(): return '' if OPT.get('loc', 0) > 1 else 'sc1'

def LL(): return ['sc1', '', 'nt', 'sc0'][OPT.get('ll', 0)]

def nonce(a):
    a("s_waitcnt lgkmcnt(0)")
    a(f"s_mul_i32 s{NON}, s44, 0x9E3779B1")
    a(f"s_add_u32 s{NON}, s{NON}, 0x7F4A7C15")

def merge(main, fill, skip=0, last=0):
    if OPT.get('noepi', 0): fill = [g for g in fill if any('buffer_store' in x for x in g)]
    if OPT.get('nost', 0): fill = [g for g in fill[:-1] if not g[0].startswith('buffer_store')] + fill[-1:]
    slots = [i for i, m in enumerate(main) if m.startswith('v_mfma')]
    slots = slots[skip:len(slots) - last]
    out, k, n = [], 0, len(fill)
    pos = {s: j for j, s in enumerate(slots)}
    for i, m in enumerate(main):
        out.append(m)
        if i in pos:
            tgt = (n * (pos[i] + 1)) // len(slots)
            while k < tgt:
                out.extend(fill[k]); k += 1
    for g in fill[k:]: out.extend(g)
    return out

def signal(c):
    return ["s_mov_b64 exec, 1", f"ds_add_u32 v27, v30 offset:{4*c}", "s_mov_b64 exec, -1"]

def lds_wait(a, c, n=4):
    L = a.newlabel("LW")
    a("s_mov_b32 s95, 0")
    a.label(L)
    a(f"ds_read_b32 v29, v27 offset:{4*c}")
    a("s_add_u32 s95, s95, 1")
    a("s_lshr_b32 s94, s95, 18")
    a("s_waitcnt lgkmcnt(0)")
    a("v_readfirstlane_b32 s97, v29")
    a("s_add_u32 s97, s97, s94")
    a(f"s_cmp_ge_u32 s97, {n}")
    a(f"s_cbranch_scc1 {L}_d")
    a(f"s_sleep {OPT.get('lsl', 2)}")
    a(f"s_branch {L}")
    a.label(f"{L}_d")

def gen_A(a, stubs):
    st = Stamper(a)
    XF, A0, A1 = 128, 64, 96
    RING = [48, 56, 240, 248]
    KB = 57
    st()
    a(f"s_setprio {OPT.get('pa', 2)}")
    a("v_lshrrev_b32 v24, 5, v1")
    a("v_lshlrev_b32 v21, 3, v1")
    a("v_lshlrev_b32 v22, 4, v1")
    a("v_mov_b32 v5, 0")
    a("s_cmp_ge_u32 s56, 28")
    a("s_cbranch_scc1 A_helper")
    a(f"s_lshl_b32 s86, s{I1}, 2")
    a(f"s_add_u32 s86, s86, s{WV}")
    a("""v_lshrrev_b32 v2, 3, v1
    v_and_b32 v3, 7, v1
    v_lshrrev_b32 v4, 1, v2
    v_xor_b32 v5, v3, v4
    v_mul_u32_u24 v6, 896, v2
    v_lshl_add_u32 v8, v5, 4, v6
    v_xor_b32 v5, 4, v5
    v_lshl_add_u32 v9, v5, 4, v6""")
    a(f"v_add_u32 v9, {8*896 - 1024}, v9")
    a(f"v_add_u32 v10, {16*896 - 2048}, v8")
    a(f"v_add_u32 v11, {16*896 - 2048}, v9")
    a("s_mul_i32 s87, s86, 28672")
    a(f"s_mul_i32 s88, s{WV}, 14336")
    def x_dma(n):
        o = [f"s_lshl_b32 s89, s{KB+n}, 7", "s_add_u32 s89, s89, s87", f"s_add_u32 m0, s88, {(n % 3)*4096}"]
        for rg in range(4):
            o.append(f"buffer_load_dwordx4 v{8+rg}, s[8:11], s89 offen offset:{rg*1024} lds ; @x{n}")
        return o
    for n in range(3): a.extend(x_dma(n))
    a("""v_and_b32 v2, 31, v1
    v_bfe_u32 v3, v2, 1, 3
    v_lshlrev_b32 v4, 7, v2
    v_add_u32 v4, s88, v4""")
    for q in range(4):
        a(f"v_add_u32 v5, {2*q}, v24")
        a("v_xor_b32 v5, v5, v3")
        a(f"v_lshl_add_u32 v{12+q}, v5, 4, v4")
    a("""v_and_b32 v2, 15, v1
    v_bfe_u32 v3, v1, 4, 1
    v_lshrrev_b32 v4, 2, v2
    v_bfe_u32 v5, v2, 1, 1
    v_lshl_add_u32 v5, v3, 1, v5
    v_bfe_u32 v6, v2, 3, 1
    v_lshlrev_b32 v6, 2, v6
    v_xor_b32 v5, v5, v6
    v_lshlrev_b32 v7, 10, v24
    v_lshl_add_u32 v7, v4, 7, v7
    v_and_b32 v6, 1, v2
    v_lshl_add_u32 v7, v6, 3, v7
    v_lshl_add_u32 v16, v5, 4, v7
    v_xor_b32 v5, 4, v5
    v_lshl_add_u32 v17, v5, 4, v7
    v_lshl_add_u32 v7, v24, 3, v4
    v_lshlrev_b32 v7, 6, v7
    v_lshl_add_u32 v7, v3, 5, v7
    v_and_b32 v6, 3, v2
    v_lshl_add_u32 v20, v6, 3, v7""")
    a(f"v_add_u32 v20, {UB[1]}, v20")
    a(f"v_add_u32 v18, {UB[0]}, v16")
    a(f"v_add_u32 v19, {UB[0]}, v17")
    a("""v_and_b32 v2, 31, v1
    v_mul_u32_u24 v23, 7168, v24
    v_lshl_add_u32 v23, v2, 4, v23""")
    a(f"v_lshlrev_b32 v28, 4, v24")
    a(f"v_add_u32 v28, {BIAST}, v28")
    a(f"""s_mul_i32 s64, s{JJ}, 192
    s_and_b32 s65, s{JJ}, 1
    s_lshl_b32 s66, s65, 6
    s_add_u32 s66, s64, s66
    s_xor_b32 s65, s65, 1
    s_lshl_b32 s65, s65, 7
    s_add_u32 s64, s64, s65""")
    a(f"s_mul_i32 s65, s86, {QK_T}")
    a("s_lshl_b32 s67, s64, 5"); a("s_add_u32 s67, s67, s65")
    a("s_lshl_b32 s68, s66, 5"); a("s_add_u32 s68, s68, s65")
    a(f"s_mul_i32 s65, s86, {V_T}")
    a(f"s_add_u32 s65, s65, {WS_V - 2*896*8}")
    a("s_lshl_b32 s69, s64, 3"); a("s_add_u32 s69, s69, s65")
    a("s_add_u32 s70, s69, 14336")
    a("s_lshl_b32 s71, s66, 3"); a("s_add_u32 s71, s71, s65")
    a("s_add_u32 s72, s71, 14336")
    a(f"s_mul_i32 s73, s86, {H_T}")
    a(f"s_lshl_b32 s65, s{JJ}, 13")
    a("s_add_u32 s73, s73, s65")
    a(f"s_add_u32 s73, s73, {WS_H}")
    a("s_add_u32 s74, s73, 4096")
    a(f"s_lshl_b32 s75, s{I1}, 4")
    a(f"s_add_u32 s75, s75, s{JJ}")
    a("s_lshl_b32 s75, s75, 7")
    a(f"s_add_u32 s75, s75, {FLG}")
    a("s_add_u32 s76, s75, 0x8000")
    a("s_add_u32 s77, s75, 0x10000")
    a("s_mov_b32 s78, 0x3f803f80")
    for q in range(4): a(f"v_mov_b32 v{32+q}, 0")
    nonce(a)
    a("s_barrier")
    st()
    for n in range(7):
        a(f"WAITV x{n}")
        for q in range(4):
            a(f"ds_read_b128 {vr(XF + 16*n + 4*q, 4)}, v{12+q} offset:{(n % 3)*4096}")
        if n >= 1:
            for d in range(16*(n-1), 16*n):
                a(f"v_dot2c_f32_bf16 v{32 + (d & 1)}, s78, v{XF+d}")
                a(f"v_dot2c_f32_bf16 v{34 + (d & 1)}, v{XF+d}, v{XF+d}")
        a("s_waitcnt lgkmcnt(0)")
        if n + 3 < 7: a.extend(x_dma(n + 3))
        if n == OPT.get('xiss', 2): a.extend(signal(XISS))
    a.extend(signal(FXS))
    st()
    for d in range(96, 112):
        a(f"v_dot2c_f32_bf16 v{32 + (d & 1)}, s78, v{XF+d}")
        a(f"v_dot2c_f32_bf16 v{34 + (d & 1)}, v{XF+d}, v{XF+d}")
    a("""v_add_f32 v32, v32, v33
    v_add_f32 v34, v34, v35
    v_mov_b32 v33, v32
    v_mov_b32 v35, v34
    v_permlane32_swap_b32 v32, v33
    v_permlane32_swap_b32 v34, v35
    v_add_f32 v32, v32, v33
    v_add_f32 v34, v34, v35""")
    a(f"v_mul_f32 v32, {f32(1.0/448)}, v32")
    a(f"v_mul_f32 v34, {f32(1.0/448)}, v34")
    a("v_fma_f32 v34, -v32, v32, v34")
    a("v_cvt_pk_bf16_f32 v33, v32, v32")
    a("v_and_b32 v33, 0xffff0000, v33")
    a("v_sub_f32 v7, 0, v33")
    a("v_max_f32 v34, 0, v34")
    a("v_cvt_pk_bf16_f32 v34, v34, v34")
    a("v_and_b32 v34, 0xffff0000, v34")
    a(f"v_add_f32 v34, {f32(1e-5)}, v34")
    a("v_cvt_pk_bf16_f32 v34, v34, v34")
    a("v_and_b32 v34, 0xffff0000, v34")
    a("v_sqrt_f32 v34, v34")
    a("v_cvt_pk_bf16_f32 v34, v34, v34")
    a("v_and_b32 v34, 0xffff0000, v34")
    a("v_rcp_f32 v25, v34")
    a("v_and_b32 v2, 31, v1")
    a(f"s_lshl_b32 s65, s{WV}, 7")
    a(f"s_add_u32 s65, s65, {RRT}")
    a("v_lshl_add_u32 v2, v2, 2, s65")
    a("ds_write_b32 v2, v25")
    a("v_lshl_add_u32 v12, v24, 4, s65")
    a(f"v_mov_b32 v6, s{NON}")
    a("s_mov_b32 s78, 0x00003f80")
    a("s_mov_b32 s79, 0x3f800000")
    for d0 in range(0, 112, 4):
        for d in range(d0, d0 + 4):
            a(f"v_dot2_f32_bf16 v{64 + 2*(d & 7)}, v{XF+d}, s78, v7")
            a(f"v_dot2_f32_bf16 v{65 + 2*(d & 7)}, v{XF+d}, s79, v7")
        if d0 >= 4:
            for d in range(d0 - 4, d0):
                a(f"v_cvt_pk_bf16_f32 v{XF+d}, v{64 + 2*(d & 7)}, v{65 + 2*(d & 7)}")
    a(f"v_mul_f32 v4, {f32(QSCALE)}, v25")
    a("s_cmp_lt_u32 s64, 896")
    a("s_cselect_b64 vcc, -1, 0")
    a("v_cndmask_b32 v2, v25, v4, vcc")
    a("s_cmp_lt_u32 s66, 896")
    a("s_cselect_b64 vcc, -1, 0")
    a("v_cndmask_b32 v3, v25, v4, vcc")
    for d in range(108, 112):
        a(f"v_cvt_pk_bf16_f32 v{XF+d}, v{64 + 2*(d & 7)}, v{65 + 2*(d & 7)}")
    a(f"s_mov_b32 s78, {f32(GC2)}")
    a(f"v_mov_b32 v26, {f32(GC1)}")
    a("v_mov_b32 v5, 0")
    st()
    lds_wait(a, RD0)
    st()

    LA = 3
    units = [28, 14, 28, 28]
    seq = [(u, s) for u, n in enumerate(units) for s in range(n)]
    start = [0, 28, 42, 70]
    UACC = [(64, 80), (96, 96), (64, 80), (96, 112)]
    def reads(g):
        u, s = seq[g]; b = RING[g % 4]; o = []
        for T in range(2):
            if u == 1: ad, off, sec = 20, (2*s + T) * 1024, 256
            else: ad, off, sec = (16 if u == 2 else 18) + T, s * 2048, 512
            o.append(f"ds_read_b64_tr_b16 {vr(b + 4*T, 2)}, v{ad} offset:{off} ; @w{g}")
            o.append(f"ds_read_b64_tr_b16 {vr(b + 4*T + 2, 2)}, v{ad} offset:{off + sec} ; @w{g}")
        return o
    def check(c):
        L = a.newlabel("AC")
        stubs.append((L, c))
        return [f"WAITL f{c}", "v_readfirstlane_b32 s97, v29", "s_cmp_lt_u32 s97, 4", f"s_cbranch_scc1 {L}", f"{L}_r:"]
    def unit(u, normal):
        o = []
        n = units[u]
        for s in range(n):
            g = start[u] + s
            if u < 3 and s == n - LA - 4: o.append(f"ds_read_b32 v29, v27 offset:{4*(RD1+u)} ; @f{RD1+u}")
            if u < 3 and s == n - LA: o.extend(check(RD1 + u))
            if g + LA < len(seq): o.extend(reads(g + LA))
            o.append(f"WAITL w{g}")
            if s == n - 1: o.extend(signal(FU0 + u))
            for T in range(2):
                w = vr(RING[g % 4] + 4*T, 4)
                d = vr(UACC[u][T], 16)
                if u == 1: x, first = vr(XF + 4*(2*s + T), 4), (s == 0 and T == 0)
                else: x, first = vr(XF + 4*s, 4), s == 0
                A, B = (x, w) if normal else (w, x)
                o.append(f"{MF} {d}, {A}, {B}, {'0' if first else d}")
        return o
    def rr_read():
        return [[f"ds_read_b128 {vr(32 + 4*q, 4)}, v12 offset:{32*q} ; @rr" for q in range(4)], [], [], [], ["WAITL rr"]]
    def epi_qk(b, T, sc, soff):
        o = []
        for q in range(4):
            for r in range(4*q, 4*q+4): o.append([f"v_mul_f32 v{b+r}, v{b+r}, v{sc}"])
            for r in range(2): o.append([f"v_cvt_pk_bf16_f32 v{b+4*q+r}, v{b+4*q+2*r}, v{b+4*q+2*r+1}"])
            o.append([f"buffer_store_dwordx2 {vr(b+4*q, 2)}, v21, s[24:27], s{soff} offen offset:{T*2048 + q*512} sc1 ; @qkv"])
        return o
    def epi_v(b, T, soff):
        o = []
        for f in range(2):
            for r in range(8*f, 8*f+8): o.append([f"v_mul_f32 v{b+r}, v{b+r}, v{32+r}"])
            for r in range(4): o.append([f"v_cvt_pk_bf16_f32 v{b+8*f+r}, v{b+8*f+2*r}, v{b+8*f+2*r+1}"])
            o.append([f"buffer_store_dwordx4 {vr(b+8*f, 4)}, v23, s[24:27], s{soff+f} offen offset:{T*512} sc1 ; @qkv"])
        return o
    def epi_h(b, T, tl, soff, packed, tag):
        o = []
        for f in range(2):
            R = range(8*f, 8*f+8); t = lambda r: 32 + r
            o.append([f"ds_read_b128 {vr(32+8*f+4*q, 4)}, v28 offset:{tl*128 + (2*f+q)*32} ; @b{tl}{f}" for q in range(2)])
        for f in range(2):
            R = range(8*f, 8*f+8); t = lambda r: 32 + r
            o.append([f"WAITL b{tl}{f}"])
            if packed:
                R2 = range(8*f, 8*f+8, 2); p2 = lambda x: vr(x, 2)
                for r in R2: o.append([f"v_pk_fma_f32 {p2(b+r)}, {p2(b+r)}, v[8:9], {p2(t(r))}"])
                for r in R2: o.append([f"v_pk_mul_f32 {p2(t(r))}, {p2(b+r)}, {p2(b+r)}"])
                for r in R2: o.append([f"v_pk_fma_f32 {p2(t(r))}, {p2(t(r))}, v[10:11], v[12:13]"])
                for r in R2: o.append([f"v_pk_mul_f32 {p2(t(r))}, {p2(t(r))}, {p2(b+r)}"])
                for r in R: o.append([f"v_exp_f32 v{t(r)}, v{t(r)}"])
                for r in R2: o.append([f"v_pk_add_f32 {p2(t(r))}, {p2(t(r))}, v[14:15]"])
                for r in R: o.append([f"v_rcp_f32 v{t(r)}, v{t(r)}"])
                for r in R2: o.append([f"v_pk_mul_f32 {p2(b+r)}, {p2(b+r)}, {p2(t(r))}"])
            else:
                for r in R: o.append([f"v_fma_f32 v{b+r}, v{b+r}, v25, v{t(r)}"])
                for r in R: o.append([f"v_mul_f32 v{t(r)}, v{b+r}, v{b+r}"])
                for r in R: o.append([f"v_fma_f32 v{t(r)}, v{t(r)}, s78, v26"])
                for r in R: o.append([f"v_mul_f32 v{t(r)}, v{t(r)}, v{b+r}"])
                for r in R: o.append([f"v_exp_f32 v{t(r)}, v{t(r)}"])
                for r in R: o.append([f"v_add_f32 v{t(r)}, 1.0, v{t(r)}"])
                for r in R: o.append([f"v_rcp_f32 v{t(r)}, v{t(r)}"])
                for r in R: o.append([f"v_mul_f32 v{b+r}, v{b+r}, v{t(r)}"])
            for r in range(4): o.append([f"v_cvt_pk_bf16_f32 v{b+8*f+r}, v{b+8*f+2*r}, v{b+8*f+2*r+1}"])
            o.append([f"buffer_store_dwordx4 {vr(b+8*f, 4)}, v22, s[24:27], s{soff} offen offset:{(2*T+f)*1024} {LS()} ; @{tag}"])
        return o
    def flag(kind, tag):
        L = a.newlabel("FG")
        o = [f"WAITV {tag}", "s_mov_b64 exec, 1", f"ds_add_rtn_u32 v4, v27, v30 offset:{4*(AG0+kind)} ; @{'nocount' if kind == 2 else 'ag%d' % kind}", "s_mov_b64 exec, -1"]
        st_ = ["s_mov_b64 exec, 1", f"buffer_store_dword v6, v5, s[24:27], s{75 + kind if kind < 3 else 68} offen {LS() if kind in (1, 2) else 'sc1'} ; @nocount"]
        p = [f"WAITL ag{kind}" if kind != 2 else "s_waitcnt lgkmcnt(0)", "v_readfirstlane_b32 s97, v4", "s_cmp_lg_u32 s97, 3", f"s_cbranch_scc1 {L}"] + st_ + ["s_mov_b64 exec, -1", f"{L}:"]
        return o, p
    def at(main, grp, k):
        n = sum(1 for m in main if m.startswith('v_mfma'))
        return merge(main, [grp], skip=k, last=n - k - 1)
    def path(sv, pv):
        for g in range(LA): a.extend(reads(g))
        a.extend(merge(unit(0, pv), rr_read() if pv else [], skip=40))
        st(5)
        e0 = (epi_v(64, 0, 71) + epi_v(80, 1, 71)) if pv else (epi_qk(64, 0, 3, 68) + epi_qk(80, 1, 3, 68))
        a.extend(merge(unit(1, sv), e0, skip=3, last=2))
        st()
        e1 = epi_v(96, 0, 69) if sv else epi_qk(96, 0, 2, 67)
        f0 = flag(0, "qkv")
        u2 = merge(unit(2, False), e1, skip=3, last=46)
        k0 = OPT.get('f0at', 50)
        a.extend(at(at(u2, f0[0], k0), f0[1], k0 + 4))
        st()
    a.save("p")
    a(f"s_cmp_ge_u32 s{JJ}, 10")
    a("s_cbranch_scc1 A_pc")
    a(f"s_cmp_eq_u32 s{JJ}, 9")
    a("s_cbranch_scc1 A_pb")
    path(False, False)
    a("s_branch A_join")
    a.label("A_pb"); a.restore("p")
    path(False, True)
    a("s_branch A_join")
    a.label("A_pc"); a.restore("p")
    path(True, True)
    a.label("A_join")
    e2 = epi_h(64, 0, 0, 73, False, "h1") + epi_h(80, 1, 1, 73, False, "h1")
    if OPT.get('bunch', 0):
        sts = [g for g in e2 if g[0].startswith('buffer_store')]
        e2 = [g for g in e2 if not g[0].startswith('buffer_store')]
        if OPT['bunch'] == 1: e2 += sts
    u3 = merge(unit(3, False), e2, skip=3, last=OPT.get('u3l', 14))
    F1L = OPT.get('f1l', 0)
    if F1L:
        f1 = flag(1, "h1")
        u3 = at(at(u3, f1[0], F1L), f1[1], min(55, F1L + 3))
    a.extend(u3)
    if OPT.get('bunch', 0) == 2:
        for g in sts: a.extend(g)
    st()
    a("v_mov_b32 v8, v25"); a("v_mov_b32 v9, v25")
    a("v_mov_b32 v10, s78"); a("v_mov_b32 v11, s78")
    a("v_mov_b32 v12, v26"); a("v_mov_b32 v13, v26")
    a("v_mov_b32 v14, 1.0"); a("v_mov_b32 v15, 1.0")
    e3 = epi_h(96, 0, 2, 74, True, "h2") + epi_h(112, 1, 3, 74, True, "h2")
    f1 = flag(1, "h1") if not F1L else ([], [])
    hp = len(e3) * OPT.get('f1at', 30) // 100
    for g in e3[:hp]: a.extend(g)
    if OPT.get('sf1', 0): st(14)
    a.extend(f1[0])
    if OPT.get('sf1', 0): st(15); st.n = 9
    for g in e3[hp:hp+10]: a.extend(g)
    a.extend(f1[1])
    for g in e3[hp+10:]: a.extend(g)
    a("s_mov_b32 s79, 0")
    st()
    a("s_branch A_attn")
    a.label("A_helper")
    a("s_mov_b32 s79, 1")
    nonce(a)
    a("s_barrier")
    a(f"v_mov_b32 v6, s{NON}")
    a.label("A_attn")
    SR, QF, OA, PB = 96, 40, 48, 64
    KV = [80, 88, 240, 248]
    a("v_and_b32 v12, 31, v1")
    a(f"v_mov_b32 v2, {f32(NEG)}")
    a("v_lshlrev_b32 v3, 2, v24")
    a("v_sub_u32 v3, v12, v3")
    for r in range(16):
        key = 8 * (r >> 2) + (r & 3)
        a(f"v_cmp_le_i32 vcc, {key}, v3")
        a(f"v_cndmask_b32 v{SR+128+r}, v2, 0, vcc")
        a(f"v_cndmask_b32 v{SR+r}, 0, v2, vcc")
    a(f"s_lshl_b32 s64, s{WV}, 11")
    a("v_add_u32 v14, s64, v21")
    a("v_add_u32 v15, s64, v22")
    a(f"v_add_u32 v15, {LV}, v15")
    a("v_mov_b32 v32, 0x3f803f80")
    for r in (33, 34, 35, 37, 38, 39): a(f"v_mov_b32 v{r}, 0")
    a(f"s_lshl_b32 s66, s{I2}, 2")
    a(f"s_add_u32 s66, s66, s{WV}")
    a(f"s_mul_i32 s67, s66, {O_T}")
    a(f"s_mul_i32 s68, s{HEAD}, 1792")
    a("s_add_u32 s67, s67, s68")
    a(f"s_add_u32 s67, s67, {WS_O}")
    a(f"s_lshl_b32 s68, s{I2}, 4")
    a(f"s_add_u32 s68, s68, s{HEAD}")
    a("s_lshl_b32 s68, s68, 7")
    a(f"s_add_u32 s68, s68, {FLG + 0x18000}")
    a(f"ds_read_b32 v29, v27 offset:{4*RD4}")
    a("s_waitcnt lgkmcnt(0)")
    a("v_readfirstlane_b32 s97, v29")
    a("s_cmp_ge_u32 s97, 4")
    a("s_cbranch_scc1 A_kvok")
    a("s_cmp_lg_u32 s79, 0")
    a("s_cbranch_scc1 A_nof")
    f2 = flag(2, "h2")
    a.extend(f2[0]); a.extend(f2[1])
    a("s_mov_b32 s79, 1")
    a.label("A_nof")
    lds_wait(a, RD4)
    a.label("A_kvok")
    st()
    for f in range(2):
        a(f"ds_read2st64_b64 {vr(QF + 4*f, 4)}, v14 offset0:{LQ//512 + 2*f} offset1:{LQ//512 + 2*f + 1} ; @q")
    def kread(s): return [f"ds_read2st64_b64 {vr(KV[s % 4] + 4*f, 4)}, v14 offset0:{4*s + 2*f} offset1:{4*s + 2*f + 1} ; @k{s}" for f in range(2)]
    def vread(s): return [f"ds_read_b128 {vr(KV[(s+1) % 4] + 4*f, 4)}, v15 offset:{2048*s + 1024*f} ; @v{s}" for f in range(2)]
    def maxes(s):
        b = SR + 16*s; o = []
        for r in range(0, 16, 2):
            acc = 8 + ((r >> 1) & 3)
            if s == 0 and r < 8: o.append(f"v_max_f32 v{acc}, v{b+r}, v{b+r+1}")
            else: o.append(f"v_max3_f32 v{acc}, v{b+r}, v{b+r+1}, v{acc}")
        return o
    for s in range(3): a.extend(kread(s))
    for s in range(9):
        if s + 3 < 9: a.extend(kread(s + 3))
        else: a.extend(vread(s + 3 - 9))
        a(f"WAITL k{s}")
        d = vr(SR + 16*s, 16)
        m = maxes(s - 2) if s >= 2 else []
        a(f"{MF} {d}, {vr(KV[s % 4], 4)}, {vr(QF, 4)}, {d if s in (0, 8) else '0'}")
        a.extend(m[:4])
        a(f"{MF} {d}, {vr(KV[s % 4] + 4, 4)}, {vr(QF+4, 4)}, {d}")
        a.extend(m[4:])
    a.extend(maxes(7))
    a("s_cmp_lg_u32 s79, 0")
    a("s_cbranch_scc1 A_nof2")
    f2 = flag(2, "h2")
    a.extend(f2[0]); a.extend([x.replace("WAITL ag2", "s_waitcnt lgkmcnt(0)") for x in f2[1]])
    a.label("A_nof2")
    a.extend(maxes(8))
    a("""v_max3_f32 v2, v8, v9, v10
    v_max_f32 v2, v2, v11
    v_mov_b32 v3, v2
    v_permlane32_swap_b32 v2, v3
    v_max_f32 v2, v2, v3
    v_sub_f32 v2, 0, v2
    v_cvt_pk_bf16_f32 v3, v2, v2
    v_and_b32 v3, 0xffff0000, v3
    v_sub_f32 v3, v2, v3
    v_cvt_pk_bf16_f32 v36, v2, v3
    v_cmp_eq_u32 vcc, 0, v24
    v_cndmask_b32 v36, 0, v36, vcc""")
    st()
    def shift(s): return f"{MF} {vr(SR+16*s, 16)}, v[32:35], v[36:39], {vr(SR+16*s, 16)}"
    a(shift(0)); a(shift(1))
    def pv(s):
        pb = PB + 8*(s & 1)
        return [f"{MF} {vr(OA, 16)}, {vr(KV[(s+1) % 4] + 4*f, 4)}, {vr(pb + 4*f, 4)}, {'0' if (s == 0 and f == 0) else vr(OA, 16)}" for f in range(2)]
    for s in range(9):
        b = SR + 16*s; pb = PB + 8*(s & 1)
        mm = []
        if s + 2 < 9: mm.append(shift(s + 2))
        if s >= 1: mm = [f"WAITL v{s-1}"] + pv(s - 1)[:1] + mm + pv(s - 1)[1:] + (vread(s + 2) if s + 2 < 9 else [])
        ex = [f"v_exp_f32 v{b+r}, v{b+r}" for r in range(16)]
        cv = [f"v_cvt_pk_bf16_f32 v{pb+r}, v{b+2*r}, v{b+2*r+1}" for r in range(8)]
        body = ex[:4]
        k = 0
        chunks = [ex[4:8], ex[8:12], ex[12:16] + cv]
        for x in mm:
            body.append(x)
            if x.startswith(MF) and k < 3:
                body.extend(chunks[k]); k += 1
        for c in chunks[k:]: body.extend(c)
        a.extend(body)
    a("WAITL v8")
    a.extend(pv(8))
    st()
    a(f"v_mov_b32 v2, v{OA+12}")
    a(f"v_mov_b32 v3, v{OA+12}")
    a("v_permlane32_swap_b32 v2, v3")
    a("v_rcp_f32 v3, v3")
    for r in range(16): a(f"v_mul_f32 v{OA+r}, v{OA+r}, v3")
    for r in range(8): a(f"v_cvt_pk_bf16_f32 v{PB+r}, v{OA+2*r}, v{OA+2*r+1}")
    for q in range(4):
        if q == 3: a("s_mov_b32 exec_hi, 0")
        a(f"buffer_store_dwordx2 {vr(PB+2*q, 2)}, v21, s[24:27], s67 offen offset:{q*512} {LS()} ; @o")
    f3 = flag(3, "o")
    a.extend(f3[0]); a.extend(f3[1])
    st()
    st.dump()
    a("s_endpgm")
    for L, c in stubs:
        a.label(L)
        lds_wait(a, c)
        a(f"s_branch {L}_r")

def gpoll(a, va, sg, pre=False, sl=None):
    L = a.newlabel("GP")
    a("s_mov_b32 s96, 0")
    if pre:
        a("WAITV poll")
        a.extend(fcheck(1, 5))
        a(f"s_cbranch_scc1 {L}_d")
    a.label(L)
    a(f"buffer_load_dword v5, v{va}, s[24:27], s{sg} offen sc1 ; @nocount")
    a("s_waitcnt vmcnt(0)")
    a.extend(fcheck(1, 5))
    a(f"s_cbranch_scc1 {L}_d")
    a(f"s_sleep {sl or OPT.get('gsl', 8)}")
    a("s_add_u32 s96, s96, 1")
    a(f"s_cmp_lt_u32 s96, {SPIN}")
    a(f"s_cbranch_scc1 {L}")
    a.label(f"{L}_d")

def fcheck(nreg, base):
    o = []
    if nreg == 4:
        for r in range(4): o.append(f"v_xor_b32 v{base+r}, s{NON}, v{base+r}")
        o.append(f"v_or3_b32 v{base}, v{base}, v{base+1}, v{base+2}")
        o.append(f"v_or_b32 v{base}, v{base}, v{base+3}")
        o.append(f"v_cmp_ne_u32 vcc, 0, v{base}")
    else:
        o.append(f"v_cmp_ne_u32 vcc, s{NON}, v{base}")
    o.append("s_nop 1")
    o.append("s_cmp_eq_u64 vcc, 0")
    return o

def gen_B(a):
    st = Stamper(a)
    KB = 57
    ACC, NS = 32, 35
    BLK = [96 + 8*k for k in range(20)]
    st()
    a("v_lshrrev_b32 v24, 5, v1")
    a("v_lshlrev_b32 v21, 3, v1")
    a("v_lshlrev_b32 v22, 4, v1")
    a("v_and_b32 v2, 31, v1")
    a("v_mul_u32_u24 v28, 7168, v24")
    a("v_lshl_add_u32 v28, v2, 4, v28")
    a("v_lshrrev_b32 v3, 3, v1")
    a(f"s_min_u32 s65, s{I2}, 2")
    a("v_min_u32 v3, s65, v3")
    a(f"v_sub_u32 v3, s{I2}, v3")
    a("v_and_b32 v4, 7, v1")
    a("v_min_u32 v4, 5, v4")
    a("v_lshrrev_b32 v5, 1, v4")
    a("v_mul_u32_u24 v5, 448, v5")
    a("v_and_b32 v4, 1, v4")
    a("v_mul_u32_u24 v4, 27, v4")
    a(f"s_mul_i32 s65, s{HEAD}, 28")
    a("v_add3_u32 v4, v4, v5, s65")
    a("v_mul_u32_u24 v4, 683, v4")
    a("v_lshrrev_b32 v4, 16, v4")
    a("v_lshl_add_u32 v4, v3, 4, v4")
    a("v_lshlrev_b32 v7, 7, v4")
    a("""v_lshrrev_b32 v2, 3, v1
    v_and_b32 v3, 7, v1
    v_bfe_u32 v4, v2, 1, 1
    v_lshlrev_b32 v4, 2, v4
    v_xor_b32 v5, v3, v4
    v_mul_u32_u24 v6, 2688, v2
    v_lshl_add_u32 v8, v5, 4, v6
    v_mul_u32_u24 v6, 3584, v2
    v_lshl_add_u32 v10, v5, 4, v6
    v_mul_u32_u24 v6, 896, v2
    v_lshl_add_u32 v12, v5, 4, v6""")
    a(f"v_add_u32 v9, {8*2688 - 1024}, v8")
    a(f"v_add_u32 v11, {8*3584 - 1024}, v10")
    a(f"v_add_u32 v13, {8*896 - 1024}, v12")
    a("""v_lshrrev_b32 v2, 2, v1
    v_and_b32 v3, 3, v1
    v_mul_u32_u24 v6, 2688, v2
    v_lshl_add_u32 v14, v3, 4, v6""")
    a(f"""s_mul_i32 s64, s{JJ}, 192
    s_and_b32 s65, s{JJ}, 1
    s_lshl_b32 s66, s65, 6
    s_add_u32 s66, s64, s66
    s_xor_b32 s65, s65, 1
    s_lshl_b32 s65, s65, 7
    s_add_u32 s64, s64, s65""")
    a(f"s_mul_i32 s65, s{WV}, {16*2688}")
    a("s_add_u32 s64, s64, s65")
    a("s_add_u32 s66, s66, s65")
    a(f"s_mul_i32 s67, s{WV}, {16*3584}")
    a(f"s_lshl_b32 s87, s{JJ}, 8")
    a("s_add_u32 s67, s67, s87")
    a("s_add_u32 s68, s67, 128")
    a(f"s_lshl_b32 s69, s{WV}, 10")
    a(f"s_lshl_b32 s70, s{WV}, 11")
    a("""v_and_b32 v2, 15, v1
    v_bfe_u32 v3, v1, 4, 1
    v_lshrrev_b32 v4, 2, v2
    v_bfe_u32 v5, v2, 1, 1
    v_lshl_add_u32 v5, v3, 1, v5
    v_bfe_u32 v6, v2, 3, 1
    v_lshlrev_b32 v6, 2, v6
    v_xor_b32 v5, v5, v6
    v_lshl_add_u32 v4, v24, 2, v4
    v_lshlrev_b32 v4, 7, v4
    v_and_b32 v6, 1, v2
    v_lshl_add_u32 v4, v6, 3, v4
    v_lshl_add_u32 v2, v5, 4, v4
    v_xor_b32 v5, 4, v5
    v_lshl_add_u32 v3, v5, 4, v4""")
    a(f"s_mul_i32 s71, s{WV}, 7168");  a(f"s_add_u32 s71, s71, {P4}")
    a(f"s_lshl_b32 s72, s{WV}, 12");   a(f"s_add_u32 s72, s72, {MSLOT}")
    a(f"s_mul_i32 s73, s{WV}, 14336"); a(f"s_add_u32 s73, s73, {P2}")
    for k, sg in enumerate((71, 72, 73)):
        a(f"v_add_u32 v{17+2*k if k < 2 else 25}, s{sg}, v2")
        a(f"v_add_u32 v{18+2*k if k < 2 else 26}, s{sg}, v3")
    a(f"s_lshl_b32 s74, s{CB}, 7")
    a(f"s_mul_i32 s75, s{WV}, {16*896}")
    a("s_add_u32 s75, s75, s74")
    a(f"s_lshl_b32 s84, s{CB}, 1" if OPT.get('hrot', 1) else "s_mov_b32 s84, 0")
    a(f"s_mul_i32 s65, s84, {128*896}")
    a("s_add_u32 s75, s75, s65")
    a(f"s_sub_u32 s85, s75, {14*128*896}")
    a(f"s_mul_i32 s76, s{WV}, {7*16*896}")
    a("s_add_u32 s76, s76, s74")
    a(f"s_mul_i32 s77, s{RB}, {2*H_T}")
    a("s_add_u32 s77, s77, s69")
    a(f"s_add_u32 s77, s77, {WS_H}")
    a("s_lshl_b32 s65, s84, 13")
    a("s_add_u32 s77, s77, s65")
    a(f"s_sub_u32 s86, s77, {14*8192}")
    a(f"v_add_u32 v23, {H_T}, v22")
    a(f"s_mul_i32 s78, s{RB}, {2*O_T}")
    a(f"s_mul_i32 s65, s{WV}, 7168")
    a("s_add_u32 s78, s78, s65")
    a(f"s_add_u32 s78, s78, {WS_O}")
    a("v_and_b32 v6, 15, v1")
    a("v_min_u32 v4, 13, v6")
    a("v_lshlrev_b32 v4, 7, v4")
    a("v_lshlrev_b32 v6, 7, v6")
    a(f"s_lshr_b32 s79, s{RB}, 1")
    a("s_lshl_b32 s79, s79, 11")
    a(f"s_add_u32 s79, s79, {FLG + 0x8000}")
    a("s_add_u32 s80, s79, 0x8000")
    a("s_add_u32 s81, s79, 0x10000")
    a(f"s_mov_b32 s82, {FLG}")
    a("v_lshlrev_b32 v15, 2, v1")

    def single_dma(n):
        return [f"s_mul_i32 s65, s{KB+n}, {64*2688}", "s_add_u32 s65, s65, s64", f"s_add_u32 m0, s69, {UB[1] + n*4096}",
                "buffer_load_dwordx4 v14, s[12:15], s65 offen lds ; @u1"]
    def pair_dma(n, u):
        rs, sr, vo, sb = {2: (3584, 16, 10, 67), 0: (2688, 12, 8, 66), 3: (3584, 16, 10, 68)}[u]
        o = [f"s_mul_i32 s65, s{KB+n}, {64*rs}", f"s_add_u32 s65, s65, s{sb}", f"s_add_u32 m0, s70, {UB[u] + n*8192}"]
        for p in range(2):
            o.append(f"buffer_load_dwordx4 v{vo+p}, s[{sr}:{sr+3}], s65 offen offset:{p*1024} lds ; @u{u}")
        return o
    SL = [(72, m*2048, 19) for m in range(2)] + [(71, e*2048, 17) for e in range(3)] + [(73, l*2048, 25) for l in range(7)]
    smap, wblk = {}, {}
    def w_dma(s, sl):
        smap[s] = sl
        sg, c, _ = SL[sl]
        if s < 28:
            off = ((s % 14) * 8 + (4 if s >= 14 else 0)) * 16 * 896
            o = [f"s_cmp_ge_u32 s84, {14 - s % 14}", "s_cselect_b32 s65, s85, s75", f"s_add_u32 s65, s65, {off}"]
        else: o = [f"s_add_u32 s65, s76, {(s - 28) * 16 * 896}"]
        o.append(f"s_add_u32 m0, s{sg}, {c}")
        sr = 28 if s < 28 else 32
        for p in range(2):
            o.append(f"buffer_load_dwordx4 v{12+p}, s[{sr}:{sr+3}], s65 offen offset:{p*1024} lds ; @d{s}")
        return o
    def w_read(s, b):
        wblk[s] = b
        _, c, ad = SL[smap[s]]; o = []
        for ct in range(2):
            o.append(f"ds_read_b64_tr_b16 {vr(b+4*ct, 2)}, v{ad+ct} offset:{c} ; @r{s}")
            o.append(f"ds_read_b64_tr_b16 {vr(b+4*ct+2, 2)}, v{ad+ct} offset:{c + 1024} ; @r{s}")
        return o
    pool = list(BLK)
    def regstep(s, nxt):
        a(f"WAITV d{s}")
        a.extend(w_read(s, pool.pop()))
        a("s_waitcnt lgkmcnt(0)")
        if nxt is not None: a.extend(w_dma(nxt, smap[s]))
    def kv_stage(slp):
        a(f"s_lshl_b32 s88, s{I2}, 2")
        a(f"s_mul_i32 s89, s{WV}, 3")
        a("s_add_u32 s89, s89, s88")
        a(f"s_mul_i32 s90, s{WV}, 6144")
        a("v_and_b32 v2, 31, v1")
        a("v_lshl_add_u32 v2, v2, 3, s90")
        a("v_mov_b32 v9, 0")
        for k in range(3):
            a(f"s_add_u32 s65, s89, {k}")
            a("s_cmp_lt_u32 s65, 8")
            a("s_cselect_b32 s65, 0xf149, 0")
            a("v_mov_b32 v8, s65")
            a(f"ds_write_b64 v2, v[8:9] offset:{LK + k*2048 + 1792}")
        a("v_and_b32 v2, 31, v1")
        a("v_lshl_add_u32 v2, v2, 3, s70")
        a("v_mov_b32 v8, 0x3f80")
        a(f"ds_write_b64 v2, v[8:9] offset:{LQ + 1792}")
        a("""v_and_b32 v2, 3, v1
        v_cmp_eq_u32 vcc, 0, v2
        v_mov_b32 v3, 0x3f803f80
        v_cndmask_b32 v8, 0, v3, vcc
        v_mov_b32 v9, v8
        v_mov_b32 v10, v8
        v_mov_b32 v11, v8
        v_lshrrev_b32 v3, 2, v1
        v_lshlrev_b32 v3, 9, v3
        v_lshl_add_u32 v3, v2, 4, v3
        v_add_u32 v3, s90, v3
        s_mov_b32 exec_hi, 0xffff""")
        a(f"ds_write_b128 v3, v[8:11] offset:{LV + 448}")
        a("s_mov_b64 exec, -1")
        gpoll(a, 7, 82, slp is None and OPT.get('qe', 0) > 0, slp)
        st()
        a(f"s_mul_i32 s91, s{HEAD}, 1792")
        a(f"s_add_u32 s65, s88, s{WV}")
        a(f"s_mul_i32 s65, s65, {QK_T}")
        a("s_add_u32 s65, s65, s91")
        a(f"s_add_u32 m0, s70, {LQ}")
        a("buffer_load_dwordx4 v22, s[24:27], s65 offen sc1 lds")
        a("s_mov_b32 exec_hi, 0xffff")
        a("buffer_load_dwordx4 v22, s[24:27], s65 offen offset:1024 sc1 lds")
        a("s_mov_b64 exec, -1")
        for k in range(3):
            a(f"s_add_u32 s92, s89, {k}")
            a("s_sub_u32 s93, s92, 8")
            a(f"s_mul_i32 s65, s93, {QK_T}")
            a("s_add_u32 s65, s65, s91")
            a(f"s_add_u32 s65, s65, {112*256}")
            a(f"s_mul_i32 s93, s93, {V_T}")
            a(f"s_mul_i32 s96, s{HEAD}, 448")
            a("s_add_u32 s93, s93, s96")
            a(f"s_add_u32 s93, s93, {WS_V}")
            a("s_cmp_lt_u32 s92, 8")
            a("s_cselect_b32 s65, 0x7fff0000, s65")
            a("s_cselect_b32 s93, 0x7fff0000, s93")
            a(f"s_add_u32 s92, s93, {14336 - 1024}")
            a(f"s_add_u32 m0, s90, {LK + k*2048}")
            a("buffer_load_dwordx4 v22, s[24:27], s65 offen sc1 lds")
            a("s_mov_b32 exec_hi, 0xffff")
            a("buffer_load_dwordx4 v22, s[24:27], s65 offen offset:1024 sc1 lds")
            a("s_mov_b32 exec_lo, 0x0fffffff")
            a("s_mov_b32 exec_hi, 0x0fffffff")
            a(f"s_add_u32 m0, s90, {LV + k*2048}")
            a("buffer_load_dwordx4 v28, s[24:27], s93 offen sc1 lds")
            a("buffer_load_dwordx4 v28, s[24:27], s92 offen offset:1024 sc1 lds ; @kv")
            a("s_mov_b64 exec, -1")
    if OPT.get('tlb', 0):
        a(f"s_cmp_lg_u32 s{WV}, 1")
        a("s_cbranch_scc1 B_notlb")
        sh = OPT['tlb']
        a(f"v_lshlrev_b32 v2, {sh}, v1")
        a("v_mov_b32 v3, 0")
        for k in range(max(1, (17 << 20) >> (sh + 6))):
            a(f"s_mov_b32 s65, {k << (sh + 6)}")
            a(f"buffer_load_dword v40, v2, s[24:27], s65 offen sc1 ; @nocount")
        a("v_lshlrev_b32 v2, 15, v1")
        a("buffer_load_dword v41, v2, s[40:43], 0 offen sc1 ; @nocount")
        a("buffer_load_dword v42, v2, s[28:31], 0 offen ; @nocount")
        a("buffer_load_dword v43, v2, s[32:35], 0 offen ; @nocount")
        a("buffer_load_dword v44, v3, s[36:39], 0 offen ; @nocount")
        a.label("B_notlb")
    a("s_cmp_ge_u32 s56, 28")
    a("s_cbranch_scc1 B_helper")
    a.save("bm")
    st()
    if OPT.get('xiss', 2) < 7: lds_wait(a, XISS)
    for n in range(7): a.extend(pair_dma(n, 0))
    a("buffer_load_dword v16, v15, s[20:23], s87 offen ; @bias")
    for n in range(3): a.extend(single_dma(n))
    a("WAITV bias")
    a.extend(signal(RD0))
    for n in range(3, 7): a.extend(single_dma(n))
    a("v_lshlrev_b32 v2, 16, v16")
    a("v_and_b32 v3, 0xffff0000, v16")
    a(f"v_add_u32 v5, {BIAST}, v21")
    a("ds_write_b64 v5, v[2:3]")
    a(f"v_add_u32 v16, {O_T}, v21")
    st()
    lds_wait(a, FXS)
    for n in range(3): a.extend(pair_dma(n, 2))
    a("WAITV u1")
    a.extend(signal(RD1))
    for n in range(3, 7): a.extend(pair_dma(n, 2))
    def touch():
        a(f"s_and_b32 s65, s{RB}, 3")
        a("s_lshl_b32 s65, s65, 2")
        a(f"s_add_u32 s65, s65, s{WV}")
        a(f"s_mul_i32 s88, s65, {112*896}")
        a("s_add_u32 s88, s88, s74")
        a(f"s_add_u32 s89, s88, {56*896}")
        a(f"s_mul_i32 s90, s65, {28*896}")
        a("s_add_u32 s90, s90, s74")
        a("v_mul_u32_u24 v2, 896, v1")
        a("s_mov_b32 exec_hi, 0xffffff")
        a("buffer_load_dword v32, v2, s[28:31], s88 offen")
        if OPT.get('tw', 0): a("s_waitcnt vmcnt(0)")
        a("buffer_load_dword v33, v2, s[28:31], s89 offen")
        a("s_mov_b64 exec, 0xfffffff")
        if OPT.get('tw', 0): a("s_waitcnt vmcnt(0)")
        a("buffer_load_dword v34, v2, s[32:35], s90 offen")
        a("s_mov_b64 exec, -1")
    a("WAITV u2")
    a.extend(signal(RD2))
    if OPT.get('touch', 0) == 1: touch()
    st()
    TH = OPT.get('th', 4)
    thr = lambda t=None: a(f"s_waitcnt vmcnt({t or TH})") if TH < 63 else None
    E0, E1, E2 = OPT.get('e0', 0), OPT.get('e1', 5), OPT.get('e2', 12)
    if E0:
        a.extend(w_dma(0, 0)); a.extend(w_dma(1, 1))
        regstep(0, 2); regstep(1, 3)
    lds_wait(a, FU0)
    for n in range(7):
        a.extend(pair_dma(n, 3)); thr(TH + (2 if E0 else 0))
        if E0 and n % 2 == 1 and 2 + n // 2 < E0: regstep(2 + n // 2, 4 + n // 2)
    a("WAITV u3")
    a.extend(signal(RD3))
    if OPT.get('touch', 0) == 2: touch()
    if E1:
        lds_wait(a, FU1)
        if E0:
            for k in range(3): a.extend(w_dma(E0 + 2 + k, 2 + k)); thr(OPT.get('th1', 6))
        else:
            for k in range(5): a.extend(w_dma(k, k)); thr(OPT.get('th1', 6))
        for s_ in range(E0, E1):
            if s_ == E1 - OPT.get('qe', 0):
                lds_wait(a, AG0)
                a("buffer_load_dword v5, v7, s[24:27], s82 offen sc1 ; @poll")
            regstep(s_, s_ + 5); thr(OPT.get('th1', 6))
    st()
    hb = {}
    def h_load(s):
        b = hb[s] = pool.pop(0)
        if s < 28:
            off = (s % 14) * 8192 + (4096 if s >= 14 else 0)
            return [f"s_cmp_ge_u32 s84, {14 - s % 14}", "s_cselect_b32 s65, s86, s77", f"s_add_u32 s65, s65, {off}",
                    f"buffer_load_dwordx4 {vr(b, 4)}, v22, s[24:27], s65 offen {LL()} ; @h{s}",
                    f"buffer_load_dwordx4 {vr(b+4, 4)}, v23, s[24:27], s65 offen {LL()} ; @h{s}"]
        o = [f"s_add_u32 s65, s78, {(s - 28) * 1024}"]
        for rt in range(2):
            for hf in range(2):
                o.append(f"buffer_load_dwordx2 {vr(b+4*rt+2*hf, 2)}, v{21 if rt == 0 else 16}, s[24:27], s65 offen offset:{hf*512} {LL()} ; @h{s}")
        return o
    def mfmas(s):
        for ct in range(2):
            for rt in range(2):
                d = vr(ACC + 16*(2*ct+rt), 16)
                if OPT.get('nomf', 0) and s > 0 and (ct or rt): continue
                a(f"{MF} {d}, {vr(wblk[s] + 4*ct, 4)}, {vr(hb[s]+4*rt, 4)}, {'0' if s == 0 else d}")
        pool.append(hb[s]); pool.append(wblk[s])
    PD = OPT.get('pd', 8)
    lds_wait(a, FU2)
    kv_stage(None)
    if not E1:
        for k in range(5): a.extend(w_dma(k, k))
    a("v_and_b32 v2, 31, v1")
    a("v_mul_u32_u24 v8, 896, v2")
    a("v_lshl_add_u32 v8, v24, 4, v8")
    a("v_lshlrev_b32 v9, 4, v24")
    a(f"s_lshl_b32 s88, s{RB}, 1")
    a(f"s_and_b32 s89, s{WV}, 1")
    a("s_add_u32 s88, s88, s89")
    a(f"s_mul_i32 s88, s88, {32*896}")
    a(f"s_lshr_b32 s89, s{WV}, 1")
    a("s_lshl_b32 s89, s89, 6")
    a("s_add_u32 s89, s89, s74")
    a("s_add_u32 s88, s88, s89")
    T2 = OPT.get('th2', 63)
    KD = OPT.get('kd', 5)
    for s_ in range(E1, E2 + 1):
        if s_ == min(E2, E1 + KD):
            a("WAITV kv")
            a.extend(signal(RD4))
        if s_ == E2: break
        regstep(s_, s_ + 5)
        if T2 < 63: a(f"s_waitcnt vmcnt({T2})")
    st()
    lds_wait(a, FU3)
    for k in range(7):
        if E2 >= OPT.get('nreg', 14) and k == OPT.get('hk', 3):
            lds_wait(a, AG1)
            a("buffer_load_dword v5, v4, s[24:27], s79 offen sc1 ; @poll")
        a.extend(w_dma(E2 + 5 + k, 5 + k))
        if OPT.get('th3', 63) < 63: a(f"s_waitcnt vmcnt({OPT['th3']})")
    HP = OPT.get('hp', 12)
    NREG = OPT.get('nreg', 14)
    for s_ in range(E2, NREG):
        if s_ == HP:
            lds_wait(a, AG1)
            a("buffer_load_dword v5, v4, s[24:27], s79 offen sc1 ; @poll")
        regstep(s_, s_ + 12)
    st()
    gpoll(a, 4, 79, True)
    if OPT.get('pb', 0): a(f"s_setprio {OPT['pb']}")
    st()
    CK = {OPT.get('ck14', 8): (4, 80, 27), OPT.get('ck28', 25): (6, 81, NS - 1)}
    nxt, limit = 0, 13
    for s in range(NS):
        PE = OPT.get('pe', 6)
        if s + PE in CK: a(f"buffer_load_dword v5, v{CK[s+PE][0]}, s[24:27], s{CK[s+PE][1]} offen sc1 ; @poll")
        if s in CK:
            st()
            gpoll(a, CK[s][0], CK[s][1], True)
            st()
            limit = CK[s][2]
        while nxt <= min(limit, s + PD) and len(pool) > (2 if s >= NREG - 2 else 0):
            a.extend(h_load(nxt)); nxt += 1
        assert nxt > s
        if NREG <= s + 1 < NS:
            a(f"WAITV d{s+1}")
            a.extend(w_read(s + 1, pool.pop(0)))
        a(f"WAITV h{s}" + (f" WAITL r{s}" if s >= NREG else ""))
        if s >= NREG and s + 12 < NS: a.extend(w_dma(s + 12, smap[s]))
        if s == 16:
            XR = pool.pop(); XR2 = pool.pop()
            for k in range(2):
                a(f"buffer_load_dwordx4 {vr(XR+4*k, 4)}, v8, s[8:11], s88 offen offset:{32*k}")
                a(f"buffer_load_dwordx4 {vr(XR2+4*k, 4)}, v9, s[36:39], s89 offen offset:{32*k}")
        if s == 30: a(f"ds_read_b32 v29, v27 offset:{4*AG3} ; @ag3")
        mfmas(s)
    st()
    FB = [b for b in BLK if b not in (XR, XR2)]
    XS_ = [FB[8], FB[9]]
    for k in range(2):
        for r in range(8):
            op = (lambda d, x: f"v_and_b32 v{d}, 0xffff0000, v{x}") if r & 1 else (lambda d, x: f"v_lshlrev_b32 v{d}, 16, v{x}")
            a(op(XS_[k] + r, XR + 4*k + r//2))
            a(op(FB[10] + r, XR2 + 4*k + r//2))
        for r in range(0, 8, 2): a(f"v_pk_add_f32 {vr(XS_[k]+r, 2)}, {vr(XS_[k]+r, 2)}, {vr(FB[10]+r, 2)}")
    a("v_readfirstlane_b32 s97, v29")
    a("s_cmp_ge_u32 s97, 4")
    a("s_cbranch_scc1 B_rok")
    lds_wait(a, AG3)
    a.label("B_rok")
    for w in range(4):
        if w < 3:
            a(f"s_cmp_lg_u32 s{WV}, {w}")
            a(f"s_cbranch_scc1 B_w{w+1}")
        for qd in range(4):
            if qd == w: continue
            slot = qd * 3 + (w if w < qd else w - 1)
            for q in range(4):
                a(f"ds_write_b128 v22, {vr(ACC + 16*qd + 4*q, 4)} offset:{slot*4096 + q*1024}")
        for r in range(0, 16, 2): a(f"v_mov_b64 {vr(FB[6 + r//8] + r % 8, 2)}, {vr(ACC + 16*w + r, 2)}")
        if w < 3:
            a("s_branch B_wj")
            a.label(f"B_w{w+1}")
    a.label("B_wj")
    a(f"s_mul_i32 s65, s{WV}, 12288")
    a("v_add_u32 v10, s65, v22")
    a("s_waitcnt lgkmcnt(0)")
    a("s_barrier")
    for q in range(4):
        for p in range(3):
            a(f"ds_read_b128 {vr(FB[2*p + q//2] + 4*(q & 1), 4)}, v10 offset:{p*4096 + q*1024} ; @e{q}")
    for k in range(2):
        o = FB[6 + k]
        a(f"WAITL e{2*k+1}")
        for r in range(0, 8, 2): a(f"v_pk_add_f32 {vr(FB[k]+r, 2)}, {vr(FB[k]+r, 2)}, {vr(FB[2+k]+r, 2)}")
        for r in range(0, 8, 2): a(f"v_pk_add_f32 {vr(o+r, 2)}, {vr(o+r, 2)}, {vr(FB[4+k]+r, 2)}")
        for r in range(0, 8, 2): a(f"v_pk_add_f32 {vr(o+r, 2)}, {vr(o+r, 2)}, {vr(FB[k]+r, 2)}")
        for r in range(4): a(f"v_permlane32_swap_b32 v{o+r}, v{o+4+r}")
        for r in range(0, 8, 2): a(f"v_pk_add_f32 {vr(o+r, 2)}, {vr(o+r, 2)}, {vr(XS_[k]+r, 2)}")
        for r in range(4): a(f"v_cvt_pk_bf16_f32 v{o+r}, v{o+2*r}, v{o+2*r+1}")
        a(f"buffer_store_dwordx4 {vr(o, 4)}, v8, s[40:43], s88 offen offset:{32*k} {'sc1' if OPT.get('osc', 0) else ''}")
    st()
    st.dump()
    a("s_endpgm")
    a.label("B_helper"); a.restore("bm")
    a("s_sub_u32 s64, s56, 28")
    a("s_lshl_b32 s64, s64, 3")
    a("s_and_b32 s65, s2, 7")
    a("s_add_u32 s64, s64, s65")
    a("s_lshl_b32 s64, s64, 2")
    a(f"s_add_u32 s64, s64, s{WV}")
    a("v_lshlrev_b32 v2, 7, v1")
    a("s_lshl_b32 s64, s64, 13")
    a("s_add_u32 s65, s64, 0x100000")
    HS = OPT.get('hs', 1)
    a("buffer_load_dword v44, v2, s[12:15], s64 offen")
    a("buffer_load_dword v45, v2, s[12:15], s65 offen")
    if HS: a("s_waitcnt vmcnt(0)")
    a("buffer_load_dword v42, v2, s[16:19], s64 offen")
    a("buffer_load_dword v43, v2, s[16:19], s65 offen")
    if HS: a("s_waitcnt vmcnt(0)")
    a("buffer_load_dword v46, v2, s[28:31], s64 offen")
    a("buffer_load_dword v47, v2, s[28:31], s65 offen")
    a("buffer_load_dword v48, v2, s[32:35], s64 offen")
    kv_stage(OPT.get('hsl', 32))
    a("WAITV kv")
    a.extend(signal(RD4))
    st.dump()
    a("s_cmp_lg_u32 s2, 255")
    a("s_cbranch_scc1 B_hend")
    a(f"s_cmp_lg_u32 s{WV}, 0")
    a("s_cbranch_scc1 B_hend")
    a("s_mov_b64 exec, -1")
    a("v_lshlrev_b32 v7, 7, v1")
    for k in range(4):
        a(f"s_mov_b32 s82, {FLG + 0x18000 + k*8192}")
        gpoll(a, 7, 82, False, 16)
    a(f"v_mov_b32 v2, s{NON}")
    a("v_mov_b32 v3, 0")
    a(f"s_mov_b32 s65, {WS_FL}")
    a("s_mov_b64 exec, 1")
    a("buffer_store_dword v2, v3, s[24:27], s65 offen sc1")
    a.label("B_hend")
    a("s_endpgm")

def build(path):
    a = Asm()
    a.raw(open("hdr.txt").read().rstrip() if OPT.get('hdr', 0) else "; fused kernel")
    a.raw("; @launch grid=(256,1,1) block=(512,1,1) lds=163840")
    a.raw('.amdgcn_target "amdgcn-amd-amdhsa--gfx950"')
    kernel_header(a, NAME)
    a("s_cmp_ge_u32 s2, 256")
    a("s_cbranch_scc1 K_exit")
    if STAMPS: a("s_memrealtime s[100:101]")
    a("s_load_dwordx16 s[64:79], s[0:1], 0")
    a("s_load_dwordx4 s[80:83], s[0:1], 64")
    a("s_load_dwordx2 s[84:85], s[0:1], 80")
    if OPT.get('cpf', 1):
        a("s_getpc_b64 s[46:47]")
        a.label("K_pc")
        a(f"s_sub_u32 s46, s46, K_pc-{NAME}")
        a("s_subb_u32 s47, s47, 0")
        a("s_bfe_u32 s45, s2, 0x30003")
        a("s_mul_i32 s45, s45, 5120")
        a("v_lshrrev_b32 v2, 6, v0")
        a("v_mul_u32_u24 v2, 5, v2")
        a("v_and_b32 v3, 63, v0")
        a("v_add_lshl_u32 v2, v2, v3, 7")
        a("v_add_u32 v2, s45, v2")
        a(f"v_min_u32 v2, K_end-{NAME}-4, v2")
        a("s_mov_b64 exec, 31")
        a("global_load_dword v95, v2, s[46:47] ; @nocount")
        a("s_mov_b64 exec, -1")
    a("""v_and_b32 v1, 63, v0
    v_lshrrev_b32 v2, 6, v0
    s_and_b32 s3, s2, 7
    v_readfirstlane_b32 s4, v2
    s_lshr_b32 s56, s2, 3
    s_mul_i32 s5, s56, 37
    s_lshr_b32 s5, s5, 8
    s_mul_i32 s6, s5, 7
    s_sub_u32 s6, s56, s6""")
    if OPT.get('loc', 0):
        a(f"""s_lshr_b32 s7, s5, 1
        s_lshl_b32 s{I1}, s3, 1
        s_add_u32 s{I1}, s{I1}, s7
        s_and_b32 s{JJ}, s5, 1
        s_mul_i32 s{JJ}, s{JJ}, 7
        s_add_u32 s{JJ}, s{JJ}, s6
        s_and_b32 s{HEAD}, s56, 15
        s_lshr_b32 s7, s56, 4
        s_lshl_b32 s{I2}, s3, 1
        s_add_u32 s{I2}, s{I2}, s7""")
    else:
        a(f"""s_lshr_b32 s{I1}, s3, 1
        s_lshl_b32 s{I1}, s{I1}, 2
        s_add_u32 s{I1}, s{I1}, s5
        s_and_b32 s{JJ}, s3, 1
        s_mul_i32 s{JJ}, s{JJ}, 7
        s_add_u32 s{JJ}, s{JJ}, s6
        s_and_b32 s{HEAD}, s56, 1
        s_lshl_b32 s7, s3, 1
        s_add_u32 s{HEAD}, s{HEAD}, s7
        s_lshr_b32 s{I2}, s56, 1""")
    a(f"""s_lshl_b32 s{RB}, s3, 2
    s_add_u32 s{RB}, s{RB}, s5
    s_mov_b32 s{CB}, s6
    s_and_b32 s{WV}, s4, 3""")
    a(f"""s_lshl_b32 s57, s{I1}, 1
    s_add_u32 s57, s57, s{JJ}
    s_mul_i32 s7, s57, 37
    s_lshr_b32 s7, s7, 8
    s_mul_i32 s7, s7, 7
    s_sub_u32 s57, s57, s7""")
    for n in range(1, 7):
        a(f"s_add_u32 s{57+n}, s{56+n}, 1")
        a(f"s_cmp_eq_u32 s{57+n}, 7")
        a(f"s_cselect_b32 s{57+n}, 0, s{57+n}")
    a(f"v_mov_b32 v27, {CNT}")
    a("v_mov_b32 v30, 1")
    a("s_waitcnt lgkmcnt(0)")
    srd(a, 8, 64, S * D * 2)
    srd(a, 24, 84, WS_SIZE)
    a(f"s_add_u32 s86, s84, {WS_FL}")
    a("s_addc_u32 s87, s85, 0")
    a("s_load_dword s44, s[86:87], 0")
    a("s_cmp_lt_u32 s4, 4")
    a("s_cbranch_scc1 A_start")
    a("v_mov_b32 v2, 0")
    a("v_lshl_add_u32 v3, v1, 2, v27")
    a("ds_write_b32 v3, v2")
    nonce(a)
    a("s_branch B_start")
    a.label("A_start")
    a.save("role")
    gen_A(a, [])
    a.label("B_start"); a.restore("role")
    srd(a, 12, 66, D * 3 * D * 2)
    srd(a, 16, 72, D * F * 2)
    srd(a, 20, 74, F * 2)
    srd(a, 28, 76, F * D * 2)
    srd(a, 32, 68, D * D * 2)
    srd(a, 36, 78, D * 2)
    srd(a, 40, 80, S * D * 2)
    a("s_barrier")
    gen_B(a)
    a.label("K_exit")
    a("s_endpgm")
    a.label("K_end")
    kernel_desc(a, NAME, 256, 102, 256)
    open(path, "w").write(a.text())
    print("padded nops:", a.padded)

if __name__ == "__main__":
    if len(sys.argv) > 2 and sys.argv[2] == "st": STAMPS = True
    for kv in sys.argv[3:]:
        k, v = kv.split("="); OPT[k] = int(v)
    build(sys.argv[1])
```

```python
import re

REG_RE = re.compile(r'\b([vas])(\d+)\b|\b([vas])\[(\d+):(\d+)\]|\b(vcc|exec|m0|scc)\b|\b(vcc_lo|vcc_hi|exec_lo|exec_hi)\b')

def regs_of(op):
    out = set()
    for m in REG_RE.finditer(op):
        if m.group(1):
            out.add((m.group(1), int(m.group(2))))
        elif m.group(3):
            for i in range(int(m.group(4)), int(m.group(5)) + 1):
                out.add((m.group(3), i))
        elif m.group(6):
            out.add((m.group(6), 0))
        elif m.group(7):
            out.add((m.group(7)[:-3], 0))
    return out

TRANS = ('v_exp_f32', 'v_log_f32', 'v_rcp_f32', 'v_rsq_f32', 'v_sqrt_f32', 'v_sin_f32', 'v_cos_f32')

class Ins:
    __slots__ = ('text', 'op', 'rd', 'wr', 'cls', 'ops', 'passes', 'srcc', 'ab', 'states', 'wide', 'data')
    def __init__(self, text):
        self.text = text
        t = text.split(';')[0].strip()
        parts = t.split(None, 1)
        self.op = op = parts[0]
        rest = parts[1] if len(parts) > 1 else ''
        ops = [o.strip() for o in re.split(r',(?![^\[]*\])', rest)] if rest else []
        self.ops = ops
        self.rd, self.wr = set(), set()
        self.passes = 0; self.srcc = set(); self.ab = set(); self.states = 1; self.wide = False; self.data = set()
        base = op.replace('_e32', '').replace('_e64', '')
        def R(i): return regs_of(ops[i]) if i < len(ops) else set()
        allr = [regs_of(o) for o in ops]
        if op.startswith('v_mfma'):
            self.cls = 'mfma'
            self.wr = R(0); self.ab = R(1) | R(2); self.srcc = R(3); self.rd = self.ab | self.srcc
            self.passes = 8 if '32x32' in op else 4
        elif op.startswith('v_cmp'):
            self.cls = 'valu'
            self.wr = R(0); self.rd = set().union(*allr[1:])
            if op.startswith('v_cmpx'): self.wr = self.wr | {('exec', 0)}
        elif op.startswith('v_'):
            self.cls = 'valu'
            self.wr = R(0); self.rd = set().union(*allr[1:]) if len(allr) > 1 else set()
            if base in ('v_add_co_u32', 'v_sub_co_u32', 'v_addc_co_u32', 'v_subb_co_u32', 'v_mad_u64_u32'):
                self.wr = R(0) | R(1); self.rd = set().union(*allr[2:])
            if base.startswith('v_permlane') and 'swap' in base:
                self.wr = R(0) | R(1); self.rd = R(0) | R(1)
            if base in ('v_fmac_f32', 'v_dot2c_f32_bf16', 'v_writelane_b32', 'v_pk_fmac_f16') or 'dpp' in op or 'sdwa' in op:
                self.rd = self.rd | R(0)
            if base == 'v_cndmask_b32' and len(ops) == 3: self.rd.add(('vcc', 0))
        elif op.startswith('ds_'):
            self.cls = 'ds'
            if op.startswith('ds_write') or (op.startswith('ds_add') and 'rtn' not in op):
                self.rd = set().union(*allr)
            else:
                self.wr = R(0); self.rd = set().union(*allr[1:])
        elif op.startswith('buffer_') or op.startswith('global_'):
            self.cls = 'vmem'
            if op in ('buffer_wbl2', 'buffer_inv'):
                pass
            elif ' lds' in t + ' ' and re.search(r'\blds\b', t):
                self.cls = 'dma'; self.rd = set().union(*allr) | {('m0', 0)}
            elif 'store' in op:
                self.rd = set().union(*allr)
                self.data = R(0) if op.startswith('buffer_') else R(1)
                self.wide = op.endswith('x3') or op.endswith('x4')
            elif 'atomic' in op:
                self.rd = set().union(*allr)
                if re.search(r'\bsc0\b', t): self.wr = R(0)
            else:
                self.wr = R(0); self.rd = set().union(*allr[1:])
        elif op == 's_nop':
            self.cls = 'nop'; self.states = int(ops[0], 0) + 1
        elif op.startswith('s_load') or op.startswith('s_buffer_load') or op in ('s_memtime', 's_memrealtime'):
            self.cls = 'smem'; self.wr = R(0); self.rd = set().union(*allr[1:]) if len(allr) > 1 else set()
        elif op.startswith('s_cbranch') or op == 's_branch':
            self.cls = 'branch'
        elif op in ('s_waitcnt', 's_barrier', 's_endpgm', 's_sleep', 's_setprio'):
            self.cls = 'misc'
        elif op.startswith('s_cmp') or op.startswith('s_bitcmp'):
            self.cls = 'salu'; self.rd = set().union(*allr); self.wr = {('scc', 0)}
        elif op.startswith('s_'):
            self.cls = 'salu'; self.wr = R(0); self.rd = set().union(*allr[1:]) if len(allr) > 1 else set()
            if 'saveexec' in op: self.wr = self.wr | {('exec', 0)}
        else:
            raise ValueError("unknown instr " + text)
        self.op = base

def isv(r): return r[0] in ('v', 'a')
def iss(r): return r[0] in ('s', 'vcc')

def need(p, c):
    n = 0
    pv = {r for r in p.wr if isv(r)}
    if p.cls == 'valu':
        dl = p.op.startswith('v_dot')
        if c.cls == 'mfma' and pv & c.rd: n = max(n, 3 if dl else 2)
        ps = {r for r in p.wr if iss(r)}
        if ps:
            if c.cls in ('vmem', 'dma') and ps & c.rd: n = max(n, 5)
            if c.cls == 'valu' and ps & c.rd:
                n = max(n, 4 if c.op in ('v_readlane_b32', 'v_writelane_b32') else 2)
            if c.cls in ('salu', 'branch', 'smem') and ps & c.rd: n = max(n, 1)
        if c.cls == 'valu' and pv & c.rd:
            if c.op in ('v_readfirstlane_b32', 'v_readlane_b32'): n = max(n, 1)
            if c.op.startswith('v_permlane') or 'dpp' in c.op: n = max(n, 2)
            if p.op in TRANS and c.op not in TRANS: n = max(n, 1)
            if 'sdwa' in p.op or 'op_sel' in p.text: n = max(n, 1)
        if dl and (pv & (c.rd | c.wr)) and c.cls in ('valu', 'vmem', 'ds', 'dma'):
            same_acc = c.op == p.op and ((c.op == 'v_dot2c_f32_bf16' and not (pv & (regs_of(c.ops[1]) | regs_of(c.ops[2])))) or
                                         (c.op == 'v_dot2_f32_bf16' and not (pv & (regs_of(c.ops[1]) | regs_of(c.ops[2])))))
            if not same_acc: n = max(n, 3)
        if ('exec', 0) in p.wr:
            if c.cls == 'mfma': n = max(n, 4)
            if c.cls == 'valu' and (c.op.startswith('v_permlane') or c.op.startswith('v_read') or c.op.startswith('v_write')): n = max(n, 4)
            if c.cls == 'valu' and 'dpp' in c.op: n = max(n, 5)
    if p.cls == 'mfma':
        big = {8: 12, 4: 8}[p.passes]
        if c.cls == 'mfma':
            if pv & c.ab: n = max(n, big)
            if pv & c.srcc:
                if not (c.srcc == p.wr and c.passes == p.passes): n = max(n, big - 2)
            elif pv & c.wr: n = max(n, big - 2)
        elif c.cls in ('valu', 'vmem', 'ds', 'dma'):
            if pv & (c.rd | c.wr): n = max(n, big)
            if c.cls == 'valu' and p.srcc & c.wr: n = max(n, p.passes - 1)
            if c.cls in ('vmem', 'ds') and p.srcc & c.wr: n = max(n, p.passes - 1)
    if p.cls == 'salu' and ('m0', 0) in p.wr and (c.cls == 'dma' or c.op in ('v_writelane_b32', 'v_readlane_b32')) and ('m0', 0) in c.rd: n = max(n, 1)
    if p.cls == 'vmem' and p.wide and p.data & c.wr:
        n = max(n, 2)
    return n

class Asm:
    def __init__(self):
        self.items = []
        self.nlabel = 0
    def __call__(self, s):
        for l in s.strip("\n").split("\n"):
            l = l.strip()
            if not l: continue
            if l.startswith(';'):
                self.items.append(('raw', "    " + l)); continue
            if l.startswith('WAIT'):
                toks = l.split()
                self.items.append(('wait', [(toks[i][4], toks[i+1]) for i in range(0, len(toks), 2)])); continue
            if l.endswith(':'):
                self.items.append(('label', l[:-1])); continue
            self.items.append(Ins(l))
    def label(self, name): self.items.append(('label', name))
    def newlabel(self, p="L"):
        self.nlabel += 1
        return f"{p}_{self.nlabel}"
    def raw(self, s): self.items.append(('raw', s))
    def save(self, n): self.items.append(('save', n))
    def restore(self, n): self.items.append(('restore', n))
    def extend(self, lst):
        for x in lst: self(x)

    def _resolve(self):
        res = []
        vm, lg = [], []
        saved = {}
        lo = 0
        for it in self.items:
            if isinstance(it, tuple) and it[0] == 'save':
                saved[it[1]] = (list(vm), list(lg), lo); continue
            if isinstance(it, tuple) and it[0] == 'restore':
                vm, lg, lo = list(saved[it[1]][0]), list(saved[it[1]][1]), saved[it[1]][2]; continue
            if isinstance(it, tuple) and it[0] == 'wait':
                parts = []
                for kind, tag in it[1]:
                    lst, mx, nm = (vm, 62, 'vmcnt') if kind == 'V' else (lg, 14, 'lgkmcnt')
                    idx = max((i for i, t in enumerate(lst) if t == tag), default=None)
                    if idx is None: raise RuntimeError("wait on unknown tag " + tag)
                    n = len(lst) - 1 - idx
                    n = min(n, mx)
                    parts.append(f"{nm}({n})")
                    if kind == 'L': lo = min(lo, n)
                res.append(Ins("s_waitcnt " + " ".join(parts)))
                continue
            if isinstance(it, Ins):
                m = re.search(r';\s*@(\S+)', it.text)
                tag = m.group(1) if m else None
                if it.op == 's_waitcnt':
                    mm = re.search(r'lgkmcnt\((\d+)\)', it.text)
                    if mm: lo = min(lo, int(mm.group(1)))
                if it.op in ('s_endpgm', 's_branch'): lo = min(lo, 2)
                if it.cls == 'ds':
                    if lo >= 15:
                        res.append(Ins("s_waitcnt lgkmcnt(12)")); lo = 12
                    lo += 1
                if tag == 'nocount': pass
                elif it.cls in ('vmem', 'dma'): vm.append(tag)
                elif it.cls == 'ds': lg.append(tag)
            res.append(it)
        return res
    def _pad(self):
        out = []
        win = []
        def req(win, c):
            dist = 0; r = 0
            for p in reversed(win):
                n = need(p, c)
                if n > dist: r = max(r, n - dist)
                dist += p.states
                if dist >= 20: break
            return r
        self.padded = 0
        for it in self._resolve():
            if isinstance(it, Ins):
                r = req(win, it)
                while r > 0:
                    k = min(r, 16)
                    nop = Ins(f"s_nop {k-1}")
                    out.append(nop); win.append(nop); r -= k; self.padded += k
                out.append(it); win.append(it)
                if it.op in ('s_endpgm', 's_branch'): win = []
                win = win[-24:]
            else:
                out.append(it)
        labels = {it[1]: i for i, it in enumerate(out) if not isinstance(it, Ins) and it[0] == 'label'}
        for i, it in enumerate(out):
            if isinstance(it, Ins) and it.cls == 'branch':
                tgt = labels.get(it.ops[0])
                if tgt is None: continue
                w = [x for x in out[max(0, i - 40):i + 1] if isinstance(x, Ins)]
                for k in range(len(w) - 2, -1, -1):
                    if w[k].op in ('s_endpgm', 's_branch'):
                        w = w[k + 1:]; break
                cnt = 0
                for x in out[tgt:]:
                    if not isinstance(x, Ins): continue
                    r = req(w, x)
                    if r > 0:
                        raise RuntimeError(f"hazard across branch {it.text} -> {x.text}: short {r}")
                    w.append(x); cnt += x.states
                    if cnt > 20 or x.op in ('s_endpgm', 's_branch'): break
        return out
    def text(self):
        ls = []
        for it in self._pad():
            if isinstance(it, Ins): ls.append("    " + it.text)
            elif it[0] == 'label': ls.append(it[1] + ":")
            else: ls.append(it[1])
        return "\n".join(ls) + "\n"

def kernel_header(a, name):
    a.raw(".text")
    a.raw(f".globl {name}")
    a.raw(".p2align 8")
    a.raw(f".type {name},@function")
    a.label(name)

def kernel_desc(a, name, vgpr, sgpr=102, accum=None):
    if accum is None:
        accum = min(256, (vgpr + 3) // 4 * 4)
    a.raw('.section .rodata,"a"')
    a.raw(".p2align 6")
    a.raw(f".amdhsa_kernel {name}")
    a.raw(f"  .amdhsa_next_free_vgpr {vgpr}")
    a.raw(f"  .amdhsa_next_free_sgpr {sgpr}")
    a.raw(f"  .amdhsa_accum_offset {accum}")
    a.raw("  .amdhsa_group_segment_fixed_size 0")
    a.raw("  .amdhsa_kernarg_size 88")
    a.raw("  .amdhsa_user_sgpr_count 2")
    a.raw("  .amdhsa_user_sgpr_kernarg_segment_ptr 1")
    a.raw("  .amdhsa_system_sgpr_workgroup_id_x 1")
    a.raw("  .amdhsa_float_denorm_mode_32 3")
    a.raw("  .amdhsa_float_denorm_mode_16_64 3")
    a.raw(".end_amdhsa_kernel")

def srd(a, d, base, nbytes):
    a(f"s_mov_b32 s{d}, s{base}")
    a(f"s_and_b32 s{d+1}, s{base+1}, 0xffff")
    a(f"s_mov_b32 s{d+2}, {nbytes}")
    a(f"s_mov_b32 s{d+3}, 0x00020000")

def interleave(main, fill, start=0, per=None):
    slots = [i for i, m in enumerate(main) if m.startswith('v_mfma')]
    slots = slots[start:]
    out = []
    n = len(fill)
    if not slots:
        return list(main) + list(fill)
    k = 0
    pos = {s: j for j, s in enumerate(slots)}
    for i, m in enumerate(main):
        out.append(m)
        if i in pos:
            j = pos[i]
            tgt = (n * (j + 1) + len(slots) - 1) // len(slots) if per is None else min(n, per * (j + 1))
            while k < tgt:
                out.append(fill[k]); k += 1
    out.extend(fill[k:])
    return out
```

```python
import math, struct, sys
from asmlib import *

S, D, F, H, DH = 2048, 448, 1792, 16, 28
WS_QK, WS_V, WS_H, WS_O, WS_FL = 0x0, 0x400000, 0x600000, 0xE00000, 0x1000000
WS_SIZE = 0x1040000
FLG = WS_FL + 0x8000
WS_DBG = 0xF800000
QK_T, V_T, H_T, O_T = 57344, 28672, 114688, 32768
NAME = "parallel_sum__sliding_block__dense_activation_gelu__prompt_kernel"
STAMPS = False
OPT = {}

def f32(x): return "0x%08x" % struct.unpack("<I", struct.pack("<f", x))[0]
LOG2E = 1.4426950408889634
QSCALE = DH ** -0.5 * LOG2E
GC1 = -2.0 * math.sqrt(2.0 / math.pi) * LOG2E
GC2 = GC1 * 0.044715
NEG = -1e30
def vr(b, n): return f"v[{b}:{b+n-1}]"
MF = "v_mfma_f32_32x32x16_bf16"

P0, P1, P2, P3, P4, MISC = 0, 28672, 57344, 86016, 114688, 143360
UB = [P2, P4, P0, P2]
CNT, RRT, BIAST, MSLOT = MISC, MISC + 256, MISC + 1024, MISC + 4096
LK, LV, LQ = 0, 24576, 49152
XISS, FXS, RD0, RD1, RD2, RD3, RD4, FU0, FU1, FU2, FU3, NONCE, AG0, AG1, AG2, AG3, FU1A = range(17)
WV, I1, JJ, HEAD, I2, RB, CB, NON = 48, 49, 50, 51, 52, 53, 54, 55
SPIN = 20000

class Stamper:
    def __init__(self, a): self.a, self.n = a, 0
    def __call__(self, idx=None):
        if idx is not None: self.n = idx
        if STAMPS:
            self.a("s_memtime s[98:99]" if OPT.get('cyc', 0) else "s_memrealtime s[98:99]")
            self.a("s_waitcnt lgkmcnt(0)")
            self.a(f"v_writelane_b32 v31, s98, {self.n}")
        self.n += 1
    def dump(self):
        if not STAMPS: return
        a = self.a
        a("s_memrealtime s[98:99]")
        a("s_waitcnt vmcnt(0) lgkmcnt(0)")
        a("v_writelane_b32 v31, s98, 31")
        a("v_writelane_b32 v31, s100, 30")
        a("s_mov_b32 s26, 0x10000000")
        a("s_lshl_b32 s96, s2, 3")
        a("v_lshrrev_b32 v2, 6, v0")
        a("v_add_u32 v2, s96, v2")
        a("v_lshlrev_b32 v2, 5, v2")
        a("v_add_lshl_u32 v2, v2, v1, 2")
        a(f"s_mov_b32 s96, {WS_DBG}")
        a("s_mov_b32 exec_hi, 0")
        a("buffer_store_dword v31, v2, s[24:27], s96 offen")
        if OPT.get('dd', -1) >= 0:
            L = a.newlabel("DD")
            a(f"s_cmp_lg_u32 s2, {OPT.get('dw', 100)}")
            a(f"s_cbranch_scc1 {L}")
            a(f"s_cmp_lg_u32 s4, {OPT['dd']}")
            a(f"s_cbranch_scc1 {L}")
            a("v_subrev_u32 v3, s100, v31")
            a("v_lshlrev_b32 v2, 2, v1")
            a("buffer_store_dword v3, v2, s[44:47], 0 offen")
            a.label(L)

def LS(): return '' if OPT.get('loc', 0) > 1 else 'sc1'

def LL(): return ['sc1', '', 'nt', 'sc0'][OPT.get('ll', 0)]

def FS(): return OPT.get('fs', 7)

def nonce(a):
    a("s_waitcnt lgkmcnt(0)")
    a(f"s_mul_i32 s{NON}, s44, 0x9E3779B1")
    a(f"s_add_u32 s{NON}, s{NON}, 0x7F4A7C15")

def merge(main, fill, skip=0, last=0):
    if OPT.get('noepi', 0): fill = [g for g in fill if any('buffer_store' in x for x in g)]
    if OPT.get('nost', 0): fill = [g for g in fill[:-1] if not g[0].startswith('buffer_store')] + fill[-1:]
    slots = [i for i, m in enumerate(main) if m.startswith('v_mfma')]
    slots = slots[skip:len(slots) - last]
    out, k, n = [], 0, len(fill)
    pos = {s: j for j, s in enumerate(slots)}
    for i, m in enumerate(main):
        out.append(m)
        if i in pos:
            tgt = (n * (pos[i] + 1)) // len(slots)
            while k < tgt:
                out.extend(fill[k]); k += 1
    for g in fill[k:]: out.extend(g)
    return out

def signal(c):
    return ["s_mov_b64 exec, 1", f"ds_add_u32 v27, v30 offset:{4*c}", "s_mov_b64 exec, -1"]

def lds_wait(a, c, n=4):
    L = a.newlabel("LW")
    a("s_mov_b32 s95, 0")
    a.label(L)
    a(f"ds_read_b32 v29, v27 offset:{4*c}")
    a("s_add_u32 s95, s95, 1")
    a("s_lshr_b32 s94, s95, 18")
    a("s_waitcnt lgkmcnt(0)")
    a("v_readfirstlane_b32 s97, v29")
    a("s_add_u32 s97, s97, s94")
    a(f"s_cmp_ge_u32 s97, {n}")
    a(f"s_cbranch_scc1 {L}_d")
    a(f"s_sleep {OPT.get('lsl', 2)}")
    a(f"s_branch {L}")
    a.label(f"{L}_d")

def gen_A(a, stubs):
    st = Stamper(a)
    XF, A0, A1 = 128, 64, 96
    RING = [48, 56, 240, 248]
    KB = 57
    st()
    a(f"s_setprio {OPT.get('pa', 2)}")
    a("v_lshrrev_b32 v24, 5, v1")
    a("v_lshlrev_b32 v21, 3, v1")
    a("v_lshlrev_b32 v22, 4, v1")
    a("v_mov_b32 v5, 0")
    a("s_cmp_ge_u32 s56, 28")
    a("s_cbranch_scc1 A_helper")
    a(f"s_lshl_b32 s86, s{I1}, 2")
    a(f"s_add_u32 s86, s86, s{WV}")
    a("""v_lshrrev_b32 v2, 3, v1
    v_and_b32 v3, 7, v1
    v_lshrrev_b32 v4, 1, v2
    v_xor_b32 v5, v3, v4
    v_mul_u32_u24 v6, 896, v2
    v_lshl_add_u32 v8, v5, 4, v6
    v_xor_b32 v5, 4, v5
    v_lshl_add_u32 v9, v5, 4, v6""")
    a(f"v_add_u32 v9, {8*896 - 1024}, v9")
    a(f"v_add_u32 v10, {16*896 - 2048}, v8")
    a(f"v_add_u32 v11, {16*896 - 2048}, v9")
    a("s_mul_i32 s87, s86, 28672")
    a(f"s_mul_i32 s88, s{WV}, 14336")
    def x_dma(n):
        o = [f"s_lshl_b32 s89, s{KB+n}, 7", "s_add_u32 s89, s89, s87", f"s_add_u32 m0, s88, {(n % 3)*4096}"]
        for rg in range(4):
            o.append(f"buffer_load_dwordx4 v{8+rg}, s[8:11], s89 offen offset:{rg*1024} lds ; @x{n}")
        return o
    for n in range(3): a.extend(x_dma(n))
    a("""v_and_b32 v2, 31, v1
    v_bfe_u32 v3, v2, 1, 3
    v_lshlrev_b32 v4, 7, v2
    v_add_u32 v4, s88, v4""")
    for q in range(4):
        a(f"v_add_u32 v5, {2*q}, v24")
        a("v_xor_b32 v5, v5, v3")
        a(f"v_lshl_add_u32 v{12+q}, v5, 4, v4")
    a("""v_and_b32 v2, 15, v1
    v_bfe_u32 v3, v1, 4, 1
    v_lshrrev_b32 v4, 2, v2
    v_bfe_u32 v5, v2, 1, 1
    v_lshl_add_u32 v5, v3, 1, v5
    v_bfe_u32 v6, v2, 3, 1
    v_lshlrev_b32 v6, 2, v6
    v_xor_b32 v5, v5, v6
    v_lshlrev_b32 v7, 10, v24
    v_lshl_add_u32 v7, v4, 7, v7
    v_and_b32 v6, 1, v2
    v_lshl_add_u32 v7, v6, 3, v7
    v_lshl_add_u32 v16, v5, 4, v7
    v_xor_b32 v5, 4, v5
    v_lshl_add_u32 v17, v5, 4, v7
    v_lshl_add_u32 v7, v24, 3, v4
    v_lshlrev_b32 v7, 6, v7
    v_lshl_add_u32 v7, v3, 5, v7
    v_and_b32 v6, 3, v2
    v_lshl_add_u32 v20, v6, 3, v7""")
    a(f"v_add_u32 v20, {UB[1]}, v20")
    a(f"v_add_u32 v18, {UB[0]}, v16")
    a(f"v_add_u32 v19, {UB[0]}, v17")
    a("""v_and_b32 v2, 31, v1
    v_mul_u32_u24 v23, 7168, v24
    v_lshl_add_u32 v23, v2, 4, v23""")
    a(f"v_lshlrev_b32 v28, 4, v24")
    a(f"v_add_u32 v28, {BIAST}, v28")
    a(f"""s_mul_i32 s64, s{JJ}, 192
    s_and_b32 s65, s{JJ}, 1
    s_lshl_b32 s66, s65, 6
    s_add_u32 s66, s64, s66
    s_xor_b32 s65, s65, 1
    s_lshl_b32 s65, s65, 7
    s_add_u32 s64, s64, s65""")
    a(f"s_mul_i32 s65, s86, {QK_T}")
    a("s_lshl_b32 s67, s64, 5"); a("s_add_u32 s67, s67, s65")
    a("s_lshl_b32 s68, s66, 5"); a("s_add_u32 s68, s68, s65")
    a(f"s_mul_i32 s65, s86, {V_T}")
    a(f"s_add_u32 s65, s65, {WS_V - 2*896*8}")
    a("s_lshl_b32 s69, s64, 3"); a("s_add_u32 s69, s69, s65")
    a("s_add_u32 s70, s69, 14336")
    a("s_lshl_b32 s71, s66, 3"); a("s_add_u32 s71, s71, s65")
    a("s_add_u32 s72, s71, 14336")
    a(f"s_mul_i32 s73, s86, {H_T}")
    a(f"s_lshl_b32 s65, s{JJ}, 13")
    a("s_add_u32 s73, s73, s65")
    a(f"s_add_u32 s73, s73, {WS_H}")
    a("s_add_u32 s74, s73, 4096")
    a(f"s_lshl_b32 s75, s{I1}, 4")
    a(f"s_add_u32 s75, s75, s{JJ}")
    a(f"s_lshl_b32 s75, s75, {FS()}")
    a(f"s_add_u32 s75, s75, {FLG}")
    a("s_add_u32 s76, s75, 0x8000")
    a("s_add_u32 s77, s75, 0x10000")
    a("s_mov_b32 s78, 0x3f803f80")
    for q in range(4): a(f"v_mov_b32 v{32+q}, 0")
    nonce(a)
    a("s_barrier")
    st()
    for n in range(7):
        a(f"WAITV x{n}")
        for q in range(4):
            a(f"ds_read_b128 {vr(XF + 16*n + 4*q, 4)}, v{12+q} offset:{(n % 3)*4096}")
        if n >= 1:
            for d in range(16*(n-1), 16*n):
                a(f"v_dot2c_f32_bf16 v{32 + (d & 1)}, s78, v{XF+d}")
                a(f"v_dot2c_f32_bf16 v{34 + (d & 1)}, v{XF+d}, v{XF+d}")
        a("s_waitcnt lgkmcnt(0)")
        if n + 3 < 7: a.extend(x_dma(n + 3))
        if n == OPT.get('xiss', 2): a.extend(signal(XISS))
    a.extend(signal(FXS))
    st()
    for d in range(96, 112):
        a(f"v_dot2c_f32_bf16 v{32 + (d & 1)}, s78, v{XF+d}")
        a(f"v_dot2c_f32_bf16 v{34 + (d & 1)}, v{XF+d}, v{XF+d}")
    a("""v_add_f32 v32, v32, v33
    v_add_f32 v34, v34, v35
    v_mov_b32 v33, v32
    v_mov_b32 v35, v34
    v_permlane32_swap_b32 v32, v33
    v_permlane32_swap_b32 v34, v35
    v_add_f32 v32, v32, v33
    v_add_f32 v34, v34, v35""")
    a(f"v_mul_f32 v32, {f32(1.0/448)}, v32")
    a(f"v_mul_f32 v34, {f32(1.0/448)}, v34")
    a("v_fma_f32 v34, -v32, v32, v34")
    a("v_cvt_pk_bf16_f32 v33, v32, v32")
    a("v_and_b32 v33, 0xffff0000, v33")
    a("v_sub_f32 v7, 0, v33")
    a("v_max_f32 v34, 0, v34")
    a("v_cvt_pk_bf16_f32 v34, v34, v34")
    a("v_and_b32 v34, 0xffff0000, v34")
    a(f"v_add_f32 v34, {f32(1e-5)}, v34")
    a("v_cvt_pk_bf16_f32 v34, v34, v34")
    a("v_and_b32 v34, 0xffff0000, v34")
    a("v_sqrt_f32 v34, v34")
    a("v_cvt_pk_bf16_f32 v34, v34, v34")
    a("v_and_b32 v34, 0xffff0000, v34")
    a("v_rcp_f32 v25, v34")
    a("v_and_b32 v2, 31, v1")
    a(f"s_lshl_b32 s65, s{WV}, 7")
    a(f"s_add_u32 s65, s65, {RRT}")
    a("v_lshl_add_u32 v2, v2, 2, s65")
    a("ds_write_b32 v2, v25")
    a("v_lshl_add_u32 v12, v24, 4, s65")
    a(f"v_mov_b32 v6, s{NON}")
    a("s_mov_b32 s78, 0x00003f80")
    a("s_mov_b32 s79, 0x3f800000")
    for d0 in range(0, 112, 4):
        for d in range(d0, d0 + 4):
            a(f"v_dot2_f32_bf16 v{64 + 2*(d & 7)}, v{XF+d}, s78, v7")
            a(f"v_dot2_f32_bf16 v{65 + 2*(d & 7)}, v{XF+d}, s79, v7")
        if d0 >= 4:
            for d in range(d0 - 4, d0):
                a(f"v_cvt_pk_bf16_f32 v{XF+d}, v{64 + 2*(d & 7)}, v{65 + 2*(d & 7)}")
    a(f"v_mul_f32 v4, {f32(QSCALE)}, v25")
    a("s_cmp_lt_u32 s64, 896")
    a("s_cselect_b64 vcc, -1, 0")
    a("v_cndmask_b32 v2, v25, v4, vcc")
    a("s_cmp_lt_u32 s66, 896")
    a("s_cselect_b64 vcc, -1, 0")
    a("v_cndmask_b32 v3, v25, v4, vcc")
    for d in range(108, 112):
        a(f"v_cvt_pk_bf16_f32 v{XF+d}, v{64 + 2*(d & 7)}, v{65 + 2*(d & 7)}")
    a(f"s_mov_b32 s78, {f32(GC2)}")
    a(f"v_mov_b32 v26, {f32(GC1)}")
    a("v_mov_b32 v5, 0")
    st()
    lds_wait(a, RD0)
    st()

    LA = 3
    units = [28, 14, 28, 28]
    seq = [(u, s) for u, n in enumerate(units) for s in range(n)]
    start = [0, 28, 42, 70]
    UACC = [(64, 80), (96, 96), (64, 80), (96, 112)]
    def reads(g):
        u, s = seq[g]; b = RING[g % 4]; o = []
        for T in range(2):
            if u == 1: ad, off, sec = 20, (2*s + T) * 1024, 256
            else: ad, off, sec = (16 if u == 2 else 18) + T, s * 2048, 512
            o.append(f"ds_read_b64_tr_b16 {vr(b + 4*T, 2)}, v{ad} offset:{off} ; @w{g}")
            o.append(f"ds_read_b64_tr_b16 {vr(b + 4*T + 2, 2)}, v{ad} offset:{off + sec} ; @w{g}")
        return o
    def check(c):
        L = a.newlabel("AC")
        stubs.append((L, c))
        return [f"WAITL f{c}", "v_readfirstlane_b32 s97, v29", "s_cmp_lt_u32 s97, 4", f"s_cbranch_scc1 {L}", f"{L}_r:"]
    def unit(u, normal):
        o = []
        n = units[u]
        for s in range(n):
            g = start[u] + s
            if u < 3 and s == n - LA - 4: o.append(f"ds_read_b32 v29, v27 offset:{4*(RD1+u)} ; @f{RD1+u}")
            if u < 3 and s == n - LA: o.extend(check(RD1 + u))
            RO = OPT.get('ro', 1)
            rd = reads(g + LA) if g + LA < len(seq) else []
            if RO == 0: o.extend(rd)
            o.append(f"WAITL w{g}")
            if RO == 1: o.extend(rd)
            if s == n - 1: o.extend(signal(FU0 + u))
            for T in range(2):
                w = vr(RING[g % 4] + 4*T, 4)
                d = vr(UACC[u][T], 16)
                if u == 1: x, first = vr(XF + 4*(2*s + T), 4), (s == 0 and T == 0)
                else: x, first = vr(XF + 4*s, 4), s == 0
                A, B = (x, w) if normal else (w, x)
                o.append(f"{MF} {d}, {A}, {B}, {'0' if first else d}")
                if RO == 2: o.extend(rd[2*T:2*T+2])
        return o
    def rr_read():
        return [[f"ds_read_b128 {vr(32 + 4*q, 4)}, v12 offset:{32*q} ; @rr" for q in range(4)], [], [], [], ["WAITL rr"]]
    def epi_qk(b, T, sc, soff):
        o = []
        for q in range(4):
            for r in range(4*q, 4*q+4): o.append([f"v_mul_f32 v{b+r}, v{b+r}, v{sc}"])
            for r in range(2): o.append([f"v_cvt_pk_bf16_f32 v{b+4*q+r}, v{b+4*q+2*r}, v{b+4*q+2*r+1}"])
            o.append([f"buffer_store_dwordx2 {vr(b+4*q, 2)}, v21, s[24:27], s{soff} offen offset:{T*2048 + q*512} sc1 ; @qkv"])
        return o
    def epi_v(b, T, soff):
        o = []
        for f in range(2):
            for r in range(8*f, 8*f+8): o.append([f"v_mul_f32 v{b+r}, v{b+r}, v{32+r}"])
            for r in range(4): o.append([f"v_cvt_pk_bf16_f32 v{b+8*f+r}, v{b+8*f+2*r}, v{b+8*f+2*r+1}"])
            o.append([f"buffer_store_dwordx4 {vr(b+8*f, 4)}, v23, s[24:27], s{soff+f} offen offset:{T*512} sc1 ; @qkv"])
        return o
    def epi_h(b, T, tl, soff, packed, tag):
        o = []
        for f in range(2):
            R = range(8*f, 8*f+8); t = lambda r: 32 + r
            o.append([f"ds_read_b128 {vr(32+8*f+4*q, 4)}, v28 offset:{tl*128 + (2*f+q)*32} ; @b{tl}{f}" for q in range(2)])
        for f in range(2):
            R = range(8*f, 8*f+8); t = lambda r: 32 + r
            o.append([f"WAITL b{tl}{f}"])
            if packed:
                R2 = range(8*f, 8*f+8, 2); p2 = lambda x: vr(x, 2)
                for r in R2: o.append([f"v_pk_fma_f32 {p2(b+r)}, {p2(b+r)}, v[8:9], {p2(t(r))}"])
                for r in R2: o.append([f"v_pk_mul_f32 {p2(t(r))}, {p2(b+r)}, {p2(b+r)}"])
                for r in R2: o.append([f"v_pk_fma_f32 {p2(t(r))}, {p2(t(r))}, v[10:11], v[12:13]"])
                for r in R2: o.append([f"v_pk_mul_f32 {p2(t(r))}, {p2(t(r))}, {p2(b+r)}"])
                for r in R: o.append([f"v_exp_f32 v{t(r)}, v{t(r)}"])
                for r in R2: o.append([f"v_pk_add_f32 {p2(t(r))}, {p2(t(r))}, v[14:15]"])
                for r in R: o.append([f"v_rcp_f32 v{t(r)}, v{t(r)}"])
                for r in R2: o.append([f"v_pk_mul_f32 {p2(b+r)}, {p2(b+r)}, {p2(t(r))}"])
            else:
                for r in R: o.append([f"v_fma_f32 v{b+r}, v{b+r}, v25, v{t(r)}"])
                for r in R: o.append([f"v_mul_f32 v{t(r)}, v{b+r}, v{b+r}"])
                for r in R: o.append([f"v_fma_f32 v{t(r)}, v{t(r)}, s78, v26"])
                for r in R: o.append([f"v_mul_f32 v{t(r)}, v{t(r)}, v{b+r}"])
                for r in R: o.append([f"v_exp_f32 v{t(r)}, v{t(r)}"])
                for r in R: o.append([f"v_add_f32 v{t(r)}, 1.0, v{t(r)}"])
                for r in R: o.append([f"v_rcp_f32 v{t(r)}, v{t(r)}"])
                for r in R: o.append([f"v_mul_f32 v{b+r}, v{b+r}, v{t(r)}"])
            for r in range(4): o.append([f"v_cvt_pk_bf16_f32 v{b+8*f+r}, v{b+8*f+2*r}, v{b+8*f+2*r+1}"])
            o.append([f"buffer_store_dwordx4 {vr(b+8*f, 4)}, v22, s[24:27], s{soff} offen offset:{(2*T+f)*1024} {LS()} ; @{tag}"])
        return o
    def flag(kind, tag):
        L = a.newlabel("FG")
        o = [f"WAITV {tag}", "s_mov_b64 exec, 1", f"ds_add_rtn_u32 v4, v27, v30 offset:{4*(AG0+kind)} ; @{'nocount' if kind == 2 else 'ag%d' % kind}", "s_mov_b64 exec, -1"]
        st_ = ["s_mov_b64 exec, 1", f"buffer_store_dword v6, v5, s[24:27], s{75 + kind if kind < 3 else 68} offen {LS() if kind in (1, 2) else 'sc1'} ; @nocount"]
        p = [f"WAITL ag{kind}" if kind != 2 else "s_waitcnt lgkmcnt(0)", "v_readfirstlane_b32 s97, v4", "s_cmp_lg_u32 s97, 3", f"s_cbranch_scc1 {L}"] + st_ + ["s_mov_b64 exec, -1", f"{L}:"]
        return o, p
    def at(main, grp, k):
        n = sum(1 for m in main if m.startswith('v_mfma'))
        return merge(main, [grp], skip=k, last=n - k - 1)
    def path(sv, pv):
        for g in range(LA): a.extend(reads(g))
        a.extend(merge(unit(0, pv), rr_read() if pv else [], skip=40))
        st(5)
        e0 = (epi_v(64, 0, 71) + epi_v(80, 1, 71)) if pv else (epi_qk(64, 0, 3, 68) + epi_qk(80, 1, 3, 68))
        a.extend(merge(unit(1, sv), e0, skip=3, last=2))
        st()
        e1 = epi_v(96, 0, 69) if sv else epi_qk(96, 0, 2, 67)
        f0 = flag(0, "qkv")
        u2 = merge(unit(2, False), e1, skip=3, last=46)
        k0 = OPT.get('f0at', 50)
        a.extend(at(at(u2, f0[0], k0), f0[1], k0 + 4))
        st()
    a.save("p")
    a(f"s_cmp_ge_u32 s{JJ}, 10")
    a("s_cbranch_scc1 A_pc")
    a(f"s_cmp_eq_u32 s{JJ}, 9")
    a("s_cbranch_scc1 A_pb")
    path(False, False)
    a("s_branch A_join")
    a.label("A_pb"); a.restore("p")
    path(False, True)
    a("s_branch A_join")
    a.label("A_pc"); a.restore("p")
    path(True, True)
    a.label("A_join")
    e2 = epi_h(64, 0, 0, 73, False, "h1") + epi_h(80, 1, 1, 73, False, "h1")
    if OPT.get('bunch', 0):
        sts = [g for g in e2 if g[0].startswith('buffer_store')]
        e2 = [g for g in e2 if not g[0].startswith('buffer_store')]
        if OPT['bunch'] == 1: e2 += sts
    u3 = merge(unit(3, False), e2, skip=3, last=OPT.get('u3l', 14))
    F1L = OPT.get('f1l', 0)
    if F1L:
        f1 = flag(1, "h1")
        u3 = at(at(u3, f1[0], F1L), f1[1], min(55, F1L + 3))
    a.extend(u3)
    if OPT.get('bunch', 0) == 2:
        for g in sts: a.extend(g)
    st()
    a("v_mov_b32 v8, v25"); a("v_mov_b32 v9, v25")
    a("v_mov_b32 v10, s78"); a("v_mov_b32 v11, s78")
    a("v_mov_b32 v12, v26"); a("v_mov_b32 v13, v26")
    a("v_mov_b32 v14, 1.0"); a("v_mov_b32 v15, 1.0")
    e3 = epi_h(96, 0, 2, 74, True, "h2") + epi_h(112, 1, 3, 74, True, "h2")
    f1 = flag(1, "h1") if not F1L else ([], [])
    hp = len(e3) * OPT.get('f1at', 30) // 100
    for g in e3[:hp]: a.extend(g)
    if OPT.get('sf1', 0): st(14)
    a.extend(f1[0])
    if OPT.get('sf1', 0): st(15); st.n = 9
    for g in e3[hp:hp+10]: a.extend(g)
    a.extend(f1[1])
    for g in e3[hp+10:]: a.extend(g)
    a("s_mov_b32 s79, 0")
    st()
    a("s_branch A_attn")
    a.label("A_helper")
    a("s_mov_b32 s79, 1")
    nonce(a)
    a("s_barrier")
    a(f"v_mov_b32 v6, s{NON}")
    a.label("A_attn")
    SR, QF, OA, PB = 96, 40, 48, 64
    KV = [80, 88, 240, 248]
    a("v_and_b32 v12, 31, v1")
    a(f"v_mov_b32 v2, {f32(NEG)}")
    a("v_lshlrev_b32 v3, 2, v24")
    a("v_sub_u32 v3, v12, v3")
    for r in range(16):
        key = 8 * (r >> 2) + (r & 3)
        a(f"v_cmp_le_i32 vcc, {key}, v3")
        a(f"v_cndmask_b32 v{SR+128+r}, v2, 0, vcc")
        a(f"v_cndmask_b32 v{SR+r}, 0, v2, vcc")
    a(f"s_lshl_b32 s64, s{WV}, 11")
    a("v_add_u32 v14, s64, v21")
    a("v_add_u32 v15, s64, v22")
    a(f"v_add_u32 v15, {LV}, v15")
    a("v_mov_b32 v32, 0x3f803f80")
    for r in (33, 34, 35, 37, 38, 39): a(f"v_mov_b32 v{r}, 0")
    a(f"s_lshl_b32 s66, s{I2}, 2")
    a(f"s_add_u32 s66, s66, s{WV}")
    a(f"s_mul_i32 s67, s66, {O_T}")
    a(f"s_lshl_b32 s68, s{HEAD}, 11")
    a("s_add_u32 s67, s67, s68")
    a(f"s_add_u32 s67, s67, {WS_O}")
    a(f"s_lshl_b32 s68, s{I2}, 4")
    a(f"s_add_u32 s68, s68, s{HEAD}")
    a(f"s_lshl_b32 s68, s68, {FS()}")
    a(f"s_add_u32 s68, s68, {FLG + 0x18000}")
    a(f"ds_read_b32 v29, v27 offset:{4*RD4}")
    a("s_waitcnt lgkmcnt(0)")
    a("v_readfirstlane_b32 s97, v29")
    a("s_cmp_ge_u32 s97, 4")
    a("s_cbranch_scc1 A_kvok")
    a("s_cmp_lg_u32 s79, 0")
    a("s_cbranch_scc1 A_nof")
    f2 = flag(2, "h2")
    a.extend(f2[0]); a.extend(f2[1])
    a("s_mov_b32 s79, 1")
    a.label("A_nof")
    lds_wait(a, RD4)
    a.label("A_kvok")
    st()
    for f in range(2):
        a(f"ds_read2st64_b64 {vr(QF + 4*f, 4)}, v14 offset0:{LQ//512 + 2*f} offset1:{LQ//512 + 2*f + 1} ; @q")
    def kread(s): return [f"ds_read2st64_b64 {vr(KV[s % 4] + 4*f, 4)}, v14 offset0:{4*s + 2*f} offset1:{4*s + 2*f + 1} ; @k{s}" for f in range(2)]
    def vread(s): return [f"ds_read_b128 {vr(KV[(s+1) % 4] + 4*f, 4)}, v15 offset:{2048*s + 1024*f} ; @v{s}" for f in range(2)]
    def maxes(s):
        b = SR + 16*s; o = []
        for r in range(0, 16, 2):
            acc = 8 + ((r >> 1) & 3)
            if s == 0 and r < 8: o.append(f"v_max_f32 v{acc}, v{b+r}, v{b+r+1}")
            else: o.append(f"v_max3_f32 v{acc}, v{b+r}, v{b+r+1}, v{acc}")
        return o
    for s in range(3): a.extend(kread(s))
    for s in range(9):
        if s + 3 < 9: a.extend(kread(s + 3))
        else: a.extend(vread(s + 3 - 9))
        a(f"WAITL k{s}")
        d = vr(SR + 16*s, 16)
        m = maxes(s - 2) if s >= 2 else []
        a(f"{MF} {d}, {vr(KV[s % 4], 4)}, {vr(QF, 4)}, {d if s in (0, 8) else '0'}")
        a.extend(m[:4])
        a(f"{MF} {d}, {vr(KV[s % 4] + 4, 4)}, {vr(QF+4, 4)}, {d}")
        a.extend(m[4:])
    a.extend(maxes(7))
    a("s_cmp_lg_u32 s79, 0")
    a("s_cbranch_scc1 A_nof2")
    f2 = flag(2, "h2")
    a.extend(f2[0]); a.extend([x.replace("WAITL ag2", "s_waitcnt lgkmcnt(0)") for x in f2[1]])
    a.label("A_nof2")
    a.extend(maxes(8))
    a("""v_max3_f32 v2, v8, v9, v10
    v_max_f32 v2, v2, v11
    v_mov_b32 v3, v2
    v_permlane32_swap_b32 v2, v3
    v_max_f32 v2, v2, v3
    v_sub_f32 v2, 0, v2
    v_cvt_pk_bf16_f32 v3, v2, v2
    v_and_b32 v3, 0xffff0000, v3
    v_sub_f32 v3, v2, v3
    v_cvt_pk_bf16_f32 v36, v2, v3
    v_cmp_eq_u32 vcc, 0, v24
    v_cndmask_b32 v36, 0, v36, vcc""")
    st()
    def shift(s): return f"{MF} {vr(SR+16*s, 16)}, v[32:35], v[36:39], {vr(SR+16*s, 16)}"
    a(shift(0)); a(shift(1))
    def pv(s):
        pb = PB + 8*(s & 1)
        return [f"{MF} {vr(OA, 16)}, {vr(KV[(s+1) % 4] + 4*f, 4)}, {vr(pb + 4*f, 4)}, {'0' if (s == 0 and f == 0) else vr(OA, 16)}" for f in range(2)]
    for s in range(9):
        b = SR + 16*s; pb = PB + 8*(s & 1)
        mm = []
        if s + 2 < 9: mm.append(shift(s + 2))
        if s >= 1: mm = [f"WAITL v{s-1}"] + pv(s - 1)[:1] + mm + pv(s - 1)[1:] + (vread(s + 2) if s + 2 < 9 else [])
        ex = [f"v_exp_f32 v{b+r}, v{b+r}" for r in range(16)]
        cv = [f"v_cvt_pk_bf16_f32 v{pb+r}, v{b+2*r}, v{b+2*r+1}" for r in range(8)]
        body = ex[:4]
        k = 0
        chunks = [ex[4:8], ex[8:12], ex[12:16] + cv]
        for x in mm:
            body.append(x)
            if x.startswith(MF) and k < 3:
                body.extend(chunks[k]); k += 1
        for c in chunks[k:]: body.extend(c)
        a.extend(body)
    a("WAITL v8")
    a.extend(pv(8))
    st()
    a(f"v_mov_b32 v2, v{OA+12}")
    a(f"v_mov_b32 v3, v{OA+12}")
    a("v_permlane32_swap_b32 v2, v3")
    a("v_rcp_f32 v3, v3")
    for r in range(16): a(f"v_mul_f32 v{OA+r}, v{OA+r}, v3")
    for r in range(8): a(f"v_cvt_pk_bf16_f32 v{PB+r}, v{OA+2*r}, v{OA+2*r+1}")
    a(f"buffer_store_dwordx4 {vr(PB, 4)}, v22, s[24:27], s67 offen sc1 ; @o")
    a("v_cmp_eq_u32 vcc, 0, v24")
    a(f"v_cndmask_b32 v{PB+6}, 0, v{PB+6}, vcc")
    a(f"v_cndmask_b32 v{PB+7}, 0, v{PB+7}, vcc")
    a(f"buffer_store_dwordx4 {vr(PB+4, 4)}, v22, s[24:27], s67 offen offset:1024 sc1 ; @o")
    f3 = flag(3, "o")
    a.extend(f3[0]); a.extend(f3[1])
    st()
    st.dump()
    a("s_endpgm")
    for L, c in stubs:
        a.label(L)
        lds_wait(a, c)
        a(f"s_branch {L}_r")

def gpoll(a, va, sg, pre=False, sl=None):
    L = a.newlabel("GP")
    a("s_mov_b32 s96, 0")
    if pre:
        a("WAITV poll")
        a.extend(fcheck(1, 5))
        a(f"s_cbranch_scc1 {L}_d")
    a.label(L)
    a(f"buffer_load_dword v5, v{va}, s[24:27], s{sg} offen sc1 ; @nocount")
    a("s_waitcnt vmcnt(0)")
    a.extend(fcheck(1, 5))
    a(f"s_cbranch_scc1 {L}_d")
    a(f"s_sleep {sl or OPT.get('gsl', 8)}")
    a("s_add_u32 s96, s96, 1")
    a(f"s_cmp_lt_u32 s96, {SPIN}")
    a(f"s_cbranch_scc1 {L}")
    a.label(f"{L}_d")

def fcheck(nreg, base):
    o = []
    if nreg == 4:
        for r in range(4): o.append(f"v_xor_b32 v{base+r}, s{NON}, v{base+r}")
        o.append(f"v_or3_b32 v{base}, v{base}, v{base+1}, v{base+2}")
        o.append(f"v_or_b32 v{base}, v{base}, v{base+3}")
        o.append(f"v_cmp_ne_u32 vcc, 0, v{base}")
    else:
        o.append(f"v_cmp_ne_u32 vcc, s{NON}, v{base}")
    o.append("s_nop 1")
    o.append("s_cmp_eq_u64 vcc, 0")
    return o

def gen_B(a):
    st = Stamper(a)
    KB = 57
    ACC, NS = 32, 36
    BLK = [96 + 8*k for k in range(20)]
    st()
    a("v_lshrrev_b32 v24, 5, v1")
    a("v_lshlrev_b32 v21, 3, v1")
    a("v_lshlrev_b32 v22, 4, v1")
    a("v_and_b32 v2, 31, v1")
    a("v_mul_u32_u24 v28, 7168, v24")
    a("v_lshl_add_u32 v28, v2, 4, v28")
    a("v_lshrrev_b32 v3, 3, v1")
    a(f"s_min_u32 s65, s{I2}, 2")
    a("v_min_u32 v3, s65, v3")
    a(f"v_sub_u32 v3, s{I2}, v3")
    a("v_and_b32 v4, 7, v1")
    a("v_min_u32 v4, 5, v4")
    a("v_lshrrev_b32 v5, 1, v4")
    a("v_mul_u32_u24 v5, 448, v5")
    a("v_and_b32 v4, 1, v4")
    a("v_mul_u32_u24 v4, 27, v4")
    a(f"s_mul_i32 s65, s{HEAD}, 28")
    a("v_add3_u32 v4, v4, v5, s65")
    a("v_mul_u32_u24 v4, 683, v4")
    a("v_lshrrev_b32 v4, 16, v4")
    a("v_lshl_add_u32 v4, v3, 4, v4")
    a(f"v_lshlrev_b32 v7, {FS()}, v4")
    a("""v_lshrrev_b32 v2, 3, v1
    v_and_b32 v3, 7, v1
    v_bfe_u32 v4, v2, 1, 1
    v_lshlrev_b32 v4, 2, v4
    v_xor_b32 v5, v3, v4
    v_mul_u32_u24 v6, 2688, v2
    v_lshl_add_u32 v8, v5, 4, v6
    v_mul_u32_u24 v6, 3584, v2
    v_lshl_add_u32 v10, v5, 4, v6
    v_mul_u32_u24 v6, 896, v2
    v_lshl_add_u32 v12, v5, 4, v6""")
    a(f"v_add_u32 v9, {8*2688 - 1024}, v8")
    a(f"v_add_u32 v11, {8*3584 - 1024}, v10")
    a(f"v_add_u32 v13, {8*896 - 1024}, v12")
    a("""v_lshrrev_b32 v2, 2, v1
    v_and_b32 v3, 3, v1
    v_mul_u32_u24 v6, 2688, v2
    v_lshl_add_u32 v14, v3, 4, v6""")
    a(f"""s_mul_i32 s64, s{JJ}, 192
    s_and_b32 s65, s{JJ}, 1
    s_lshl_b32 s66, s65, 6
    s_add_u32 s66, s64, s66
    s_xor_b32 s65, s65, 1
    s_lshl_b32 s65, s65, 7
    s_add_u32 s64, s64, s65""")
    a(f"s_mul_i32 s65, s{WV}, {16*2688}")
    a("s_add_u32 s64, s64, s65")
    a("s_add_u32 s66, s66, s65")
    a(f"s_mul_i32 s67, s{WV}, {16*3584}")
    a(f"s_lshl_b32 s87, s{JJ}, 8")
    a("s_add_u32 s67, s67, s87")
    a("s_add_u32 s68, s67, 128")
    a(f"s_lshl_b32 s69, s{WV}, 10")
    a(f"s_lshl_b32 s70, s{WV}, 11")
    a("""v_and_b32 v2, 15, v1
    v_bfe_u32 v3, v1, 4, 1
    v_lshrrev_b32 v4, 2, v2
    v_bfe_u32 v5, v2, 1, 1
    v_lshl_add_u32 v5, v3, 1, v5
    v_bfe_u32 v6, v2, 3, 1
    v_lshlrev_b32 v6, 2, v6
    v_xor_b32 v5, v5, v6
    v_lshl_add_u32 v4, v24, 2, v4
    v_lshlrev_b32 v4, 7, v4
    v_and_b32 v6, 1, v2
    v_lshl_add_u32 v4, v6, 3, v4
    v_lshl_add_u32 v2, v5, 4, v4
    v_xor_b32 v5, 4, v5
    v_lshl_add_u32 v3, v5, 4, v4""")
    a(f"s_mul_i32 s71, s{WV}, 7168");  a(f"s_add_u32 s71, s71, {P4}")
    a(f"s_lshl_b32 s72, s{WV}, 12");   a(f"s_add_u32 s72, s72, {MSLOT}")
    a(f"s_mul_i32 s73, s{WV}, 14336"); a(f"s_add_u32 s73, s73, {P2}")
    for k, sg in enumerate((71, 72, 73)):
        a(f"v_add_u32 v{17+2*k if k < 2 else 25}, s{sg}, v2")
        a(f"v_add_u32 v{18+2*k if k < 2 else 26}, s{sg}, v3")
    a(f"s_lshl_b32 s74, s{CB}, 7")
    a(f"s_mul_i32 s75, s{WV}, {16*896}")
    a("s_add_u32 s75, s75, s74")
    a(f"s_lshl_b32 s84, s{CB}, 1" if OPT.get('hrot', 1) else "s_mov_b32 s84, 0")
    a(f"s_mul_i32 s65, s84, {128*896}")
    a("s_add_u32 s75, s75, s65")
    a(f"s_sub_u32 s85, s75, {14*128*896}")
    a(f"s_mul_i32 s76, s{WV}, {7*16*896}")
    a("s_add_u32 s76, s76, s74")
    a(f"s_mul_i32 s77, s{RB}, {2*H_T}")
    a("s_add_u32 s77, s77, s69")
    a(f"s_add_u32 s77, s77, {WS_H}")
    a("s_lshl_b32 s65, s84, 13")
    a("s_add_u32 s77, s77, s65")
    a(f"s_sub_u32 s86, s77, {14*8192}")
    a(f"v_add_u32 v23, {H_T}, v22")
    a(f"s_mul_i32 s78, s{RB}, {2*O_T}")
    a(f"s_lshl_b32 s65, s{WV}, 13")
    a("s_add_u32 s78, s78, s65")
    a(f"s_add_u32 s78, s78, {WS_O}")
    a("v_and_b32 v6, 15, v1")
    a("v_min_u32 v4, 13, v6")
    a(f"v_lshlrev_b32 v4, {FS()}, v4")
    a(f"v_lshlrev_b32 v6, {FS()}, v6")
    a(f"s_lshr_b32 s79, s{RB}, 1")
    a(f"s_lshl_b32 s79, s79, {FS() + 4}")
    a(f"s_add_u32 s79, s79, {FLG + 0x8000}")
    a("s_add_u32 s80, s79, 0x8000")
    a("s_add_u32 s81, s79, 0x10000")
    a(f"s_mov_b32 s82, {FLG}")
    a("v_lshlrev_b32 v15, 2, v1")

    def single_dma(n):
        return [f"s_mul_i32 s65, s{KB+n}, {64*2688}", "s_add_u32 s65, s65, s64", f"s_add_u32 m0, s69, {UB[1] + n*4096}",
                "buffer_load_dwordx4 v14, s[12:15], s65 offen lds ; @u1"]
    def pair_dma(n, u):
        rs, sr, vo, sb = {2: (3584, 16, 10, 67), 0: (2688, 12, 8, 66), 3: (3584, 16, 10, 68)}[u]
        o = [f"s_mul_i32 s65, s{KB+n}, {64*rs}", f"s_add_u32 s65, s65, s{sb}", f"s_add_u32 m0, s70, {UB[u] + n*8192}"]
        for p in range(2):
            o.append(f"buffer_load_dwordx4 v{vo+p}, s[{sr}:{sr+3}], s65 offen offset:{p*1024} lds ; @u{u}")
        return o
    SL = [(72, m*2048, 19) for m in range(2)] + [(71, e*2048, 17) for e in range(3)] + [(73, l*2048, 25) for l in range(7)]
    smap, wblk = {}, {}
    def w_dma(s, sl):
        smap[s] = sl
        sg, c, _ = SL[sl]
        if s < 28:
            off = ((s % 14) * 8 + (4 if s >= 14 else 0)) * 16 * 896
            o = [f"s_cmp_ge_u32 s84, {14 - s % 14}", "s_cselect_b32 s65, s85, s75", f"s_add_u32 s65, s65, {off}"]
        else: o = [f"s_add_u32 s65, s76, {(28 * ((s - 28) >> 1) + 16 * ((s - 28) & 1)) * 896}"]
        o.append(f"s_add_u32 m0, s{sg}, {c}")
        sr = 28 if s < 28 else 32
        for p in range(2):
            o.append(f"buffer_load_dwordx4 v{12+p}, s[{sr}:{sr+3}], s65 offen offset:{p*1024} lds ; @d{s}")
        return o
    def w_read(s, b):
        wblk[s] = b
        _, c, ad = SL[smap[s]]; o = []
        for ct in range(2):
            o.append(f"ds_read_b64_tr_b16 {vr(b+4*ct, 2)}, v{ad+ct} offset:{c} ; @r{s}")
            o.append(f"ds_read_b64_tr_b16 {vr(b+4*ct+2, 2)}, v{ad+ct} offset:{c + 1024} ; @r{s}")
        return o
    pool = list(BLK)
    def regstep(s, nxt):
        a(f"WAITV d{s}")
        a.extend(w_read(s, pool.pop()))
        a("s_waitcnt lgkmcnt(0)")
        if nxt is not None: a.extend(w_dma(nxt, smap[s]))
    def kv_stage(slp):
        a(f"s_lshl_b32 s88, s{I2}, 2")
        a(f"s_mul_i32 s89, s{WV}, 3")
        a("s_add_u32 s89, s89, s88")
        a(f"s_mul_i32 s90, s{WV}, 6144")
        a("v_and_b32 v2, 31, v1")
        a("v_lshl_add_u32 v2, v2, 3, s90")
        a("v_mov_b32 v9, 0")
        for k in range(3):
            a(f"s_add_u32 s65, s89, {k}")
            a("s_cmp_lt_u32 s65, 8")
            a("s_cselect_b32 s65, 0xf149, 0")
            a("v_mov_b32 v8, s65")
            a(f"ds_write_b64 v2, v[8:9] offset:{LK + k*2048 + 1792}")
        a("v_and_b32 v2, 31, v1")
        a("v_lshl_add_u32 v2, v2, 3, s70")
        a("v_mov_b32 v8, 0x3f80")
        a(f"ds_write_b64 v2, v[8:9] offset:{LQ + 1792}")
        a("""v_and_b32 v2, 3, v1
        v_cmp_eq_u32 vcc, 0, v2
        v_mov_b32 v3, 0x3f803f80
        v_cndmask_b32 v8, 0, v3, vcc
        v_mov_b32 v9, v8
        v_mov_b32 v10, v8
        v_mov_b32 v11, v8
        v_lshrrev_b32 v3, 2, v1
        v_lshlrev_b32 v3, 9, v3
        v_lshl_add_u32 v3, v2, 4, v3
        v_add_u32 v3, s90, v3
        s_mov_b32 exec_hi, 0xffff""")
        a(f"ds_write_b128 v3, v[8:11] offset:{LV + 448}")
        a("s_mov_b64 exec, -1")
        gpoll(a, 7, 82, slp is None and OPT.get('qe', 0) > 0, slp)
        st()
        a(f"s_mul_i32 s91, s{HEAD}, 1792")
        a(f"s_add_u32 s65, s88, s{WV}")
        a(f"s_mul_i32 s65, s65, {QK_T}")
        a("s_add_u32 s65, s65, s91")
        a(f"s_add_u32 m0, s70, {LQ}")
        a("buffer_load_dwordx4 v22, s[24:27], s65 offen sc1 lds")
        a("s_mov_b32 exec_hi, 0xffff")
        a("buffer_load_dwordx4 v22, s[24:27], s65 offen offset:1024 sc1 lds")
        a("s_mov_b64 exec, -1")
        for k in range(3):
            a(f"s_add_u32 s92, s89, {k}")
            a("s_sub_u32 s93, s92, 8")
            a(f"s_mul_i32 s65, s93, {QK_T}")
            a("s_add_u32 s65, s65, s91")
            a(f"s_add_u32 s65, s65, {112*256}")
            a(f"s_mul_i32 s93, s93, {V_T}")
            a(f"s_mul_i32 s96, s{HEAD}, 448")
            a("s_add_u32 s93, s93, s96")
            a(f"s_add_u32 s93, s93, {WS_V}")
            a("s_cmp_lt_u32 s92, 8")
            a("s_cselect_b32 s65, 0x7fff0000, s65")
            a("s_cselect_b32 s93, 0x7fff0000, s93")
            a(f"s_add_u32 s92, s93, {14336 - 1024}")
            a(f"s_add_u32 m0, s90, {LK + k*2048}")
            a("buffer_load_dwordx4 v22, s[24:27], s65 offen sc1 lds")
            a("s_mov_b32 exec_hi, 0xffff")
            a("buffer_load_dwordx4 v22, s[24:27], s65 offen offset:1024 sc1 lds")
            a("s_mov_b32 exec_lo, 0x0fffffff")
            a("s_mov_b32 exec_hi, 0x0fffffff")
            a(f"s_add_u32 m0, s90, {LV + k*2048}")
            a("buffer_load_dwordx4 v28, s[24:27], s93 offen sc1 lds")
            a("buffer_load_dwordx4 v28, s[24:27], s92 offen offset:1024 sc1 lds ; @kv")
            a("s_mov_b64 exec, -1")
    if OPT.get('tlb', 0):
        a(f"s_cmp_lg_u32 s{WV}, 1")
        a("s_cbranch_scc1 B_notlb")
        sh = OPT['tlb']
        a(f"v_lshlrev_b32 v2, {sh}, v1")
        a("v_mov_b32 v3, 0")
        for k in range(max(1, (17 << 20) >> (sh + 6))):
            a(f"s_mov_b32 s65, {k << (sh + 6)}")
            a(f"buffer_load_dword v40, v2, s[24:27], s65 offen sc1 ; @nocount")
        a("v_lshlrev_b32 v2, 15, v1")
        a("buffer_load_dword v41, v2, s[40:43], 0 offen sc1 ; @nocount")
        a("buffer_load_dword v42, v2, s[28:31], 0 offen ; @nocount")
        a("buffer_load_dword v43, v2, s[32:35], 0 offen ; @nocount")
        a("buffer_load_dword v44, v3, s[36:39], 0 offen ; @nocount")
        a.label("B_notlb")
    a("s_cmp_ge_u32 s56, 28")
    a("s_cbranch_scc1 B_helper")
    a.save("bm")
    st()
    if OPT.get('xiss', 2) < 7: lds_wait(a, XISS)
    for n in range(7): a.extend(pair_dma(n, 0))
    a("buffer_load_dword v16, v15, s[20:23], s87 offen ; @bias")
    for n in range(3): a.extend(single_dma(n))
    a("WAITV bias")
    a.extend(signal(RD0))
    for n in range(3, 7): a.extend(single_dma(n))
    a("v_lshlrev_b32 v2, 16, v16")
    a("v_and_b32 v3, 0xffff0000, v16")
    a(f"v_add_u32 v5, {BIAST}, v21")
    a("ds_write_b64 v5, v[2:3]")
    a(f"v_add_u32 v16, {O_T}, v22")
    st()
    lds_wait(a, FXS)
    for n in range(3): a.extend(pair_dma(n, 2))
    a("WAITV u1")
    a.extend(signal(RD1))
    for n in range(3, 7): a.extend(pair_dma(n, 2))
    def touch():
        a(f"s_and_b32 s65, s{RB}, 3")
        a("s_lshl_b32 s65, s65, 2")
        a(f"s_add_u32 s65, s65, s{WV}")
        a(f"s_mul_i32 s88, s65, {112*896}")
        a("s_add_u32 s88, s88, s74")
        a(f"s_add_u32 s89, s88, {56*896}")
        a(f"s_mul_i32 s90, s65, {28*896}")
        a("s_add_u32 s90, s90, s74")
        a("v_mul_u32_u24 v2, 896, v1")
        a("s_mov_b32 exec_hi, 0xffffff")
        a("buffer_load_dword v32, v2, s[28:31], s88 offen")
        if OPT.get('tw', 0): a("s_waitcnt vmcnt(0)")
        a("buffer_load_dword v33, v2, s[28:31], s89 offen")
        a("s_mov_b64 exec, 0xfffffff")
        if OPT.get('tw', 0): a("s_waitcnt vmcnt(0)")
        a("buffer_load_dword v34, v2, s[32:35], s90 offen")
        a("s_mov_b64 exec, -1")
    a("v_and_b32 v2, 31, v1")
    a("v_mul_u32_u24 v14, 896, v2")
    a("v_lshl_add_u32 v14, v24, 4, v14")
    a("v_lshlrev_b32 v15, 4, v24")
    a(f"s_lshl_b32 s45, s{RB}, 1")
    a(f"s_and_b32 s46, s{WV}, 1")
    a("s_add_u32 s45, s45, s46")
    a(f"s_mul_i32 s45, s45, {32*896}")
    a(f"s_lshr_b32 s46, s{WV}, 1")
    a("s_lshl_b32 s46, s46, 6")
    a("s_add_u32 s46, s46, s74")
    a("s_add_u32 s45, s45, s46")
    T_ = BLK[:4]
    for k in range(2):
        a(f"buffer_load_dwordx4 {vr(T_[0]+4*k, 4)}, v14, s[8:11], s45 offen offset:{32*k}")
        a(f"buffer_load_dwordx4 {vr(T_[1]+4*k, 4)}, v15, s[36:39], s46 offen offset:{32*k} ; @res")
    for r in range(0, 64, 2): a(f"v_mov_b64 {vr(ACC+r, 2)}, 0")
    a("WAITV u2")
    a.extend(signal(RD2))
    if OPT.get('touch', 0) == 1: touch()
    st()
    TH = OPT.get('th', 4)
    thr = lambda t=None: a(f"s_waitcnt vmcnt({t or TH})") if TH < 63 else None
    E0, E1, E2 = OPT.get('e0', 0), OPT.get('e1', 5), OPT.get('e2', 12)
    if E0:
        a.extend(w_dma(0, 0)); a.extend(w_dma(1, 1))
        regstep(0, 2); regstep(1, 3)
    a("WAITV res")
    for k in range(2):
        o_ = T_[2] + 8*k
        for r in range(8):
            op = (lambda d, x: f"v_and_b32 v{d}, 0xffff0000, v{x}") if r & 1 else (lambda d, x: f"v_lshlrev_b32 v{d}, 16, v{x}")
            a(op(o_ + r, T_[0] + 4*k + r//2))
            a(op(2 + (r & 1), T_[1] + 4*k + r//2))
            a(f"v_add_f32 v{o_+r}, v{o_+r}, v{2 + (r & 1)}")
        for r in range(4): a(f"v_permlane32_swap_b32 v{o_+r}, v{o_+4+r}")
    for w in range(4):
        if w < 3:
            a(f"s_cmp_lg_u32 s{WV}, {w}")
            a(f"s_cbranch_scc1 B_i{w+1}")
        for r in range(0, 16, 2): a(f"v_mov_b64 {vr(ACC + 16*w + r, 2)}, {vr(T_[2] + r, 2)}")
        if w < 3:
            a("s_branch B_ij")
            a.label(f"B_i{w+1}")
    a.label("B_ij")
    lds_wait(a, FU0)
    for n in range(7):
        a.extend(pair_dma(n, 3)); thr(TH + (2 if E0 else 0))
        if E0 and n % 2 == 1 and 2 + n // 2 < E0: regstep(2 + n // 2, 4 + n // 2)
    a("WAITV u3")
    a.extend(signal(RD3))
    if OPT.get('touch', 0) == 2: touch()
    if E1:
        lds_wait(a, FU1)
        if E0:
            for k in range(3): a.extend(w_dma(E0 + 2 + k, 2 + k)); thr(OPT.get('th1', 6))
        else:
            for k in range(5): a.extend(w_dma(k, k)); thr(OPT.get('th1', 6))
        for s_ in range(E0, E1):
            if s_ == E1 - OPT.get('qe', 0):
                lds_wait(a, AG0)
                a("buffer_load_dword v5, v7, s[24:27], s82 offen sc1 ; @poll")
            regstep(s_, s_ + 5); thr(OPT.get('th1', 6))
    st()
    hb = {}
    def h_load(s):
        b = hb[s] = pool.pop(0)
        if s < 28:
            off = (s % 14) * 8192 + (4096 if s >= 14 else 0)
            return [f"s_cmp_ge_u32 s84, {14 - s % 14}", "s_cselect_b32 s65, s86, s77", f"s_add_u32 s65, s65, {off}",
                    f"buffer_load_dwordx4 {vr(b, 4)}, v22, s[24:27], s65 offen {LL()} ; @h{s}",
                    f"buffer_load_dwordx4 {vr(b+4, 4)}, v23, s[24:27], s65 offen {LL()} ; @h{s}"]
        return [f"s_add_u32 s65, s78, {(s - 28) * 1024}",
                f"buffer_load_dwordx4 {vr(b, 4)}, v22, s[24:27], s65 offen {LL()} ; @h{s}",
                f"buffer_load_dwordx4 {vr(b+4, 4)}, v16, s[24:27], s65 offen {LL()} ; @h{s}"]
    def mfmas(s, side=()):
        side = list(side); k = 0
        for ct in range(2):
            for rt in range(2):
                d = vr(ACC + 16*(2*ct+rt), 16)
                a(f"{MF} {d}, {vr(wblk[s] + 4*ct, 4)}, {vr(hb[s]+4*rt, 4)}, {d}")
                k += 1
                n = (len(side) + (4 - k)) // (5 - k)
                for g in side[:n]: a.extend(g)
                side = side[n:]
        pool.append(hb[s]); pool.append(wblk[s])
    def split(l):
        out, cur = [], []
        for x in l:
            cur.append(x)
            if x.startswith("buffer_"): out.append(cur); cur = []
        return out + ([cur] if cur else [])
    PD = OPT.get('pd', 8)
    lds_wait(a, FU2)
    kv_stage(None)
    if not E1:
        for k in range(5): a.extend(w_dma(k, k))
    T2 = OPT.get('th2', 63)
    KD = OPT.get('kd', 5)
    for s_ in range(E1, E2 + 1):
        if s_ == min(E2, E1 + KD):
            a("WAITV kv")
            a.extend(signal(RD4))
        if s_ == E2: break
        regstep(s_, s_ + 5)
        if T2 < 63: a(f"s_waitcnt vmcnt({T2})")
    st()
    lds_wait(a, FU3)
    for k in range(7):
        if E2 >= OPT.get('nreg', 14) and k == OPT.get('hk', 3):
            lds_wait(a, AG1)
            a("buffer_load_dword v5, v4, s[24:27], s79 offen sc1 ; @poll")
        a.extend(w_dma(E2 + 5 + k, 5 + k))
        if OPT.get('th3', 63) < 63: a(f"s_waitcnt vmcnt({OPT['th3']})")
    HP = OPT.get('hp', 12)
    NREG = OPT.get('nreg', 14)
    for s_ in range(E2, NREG):
        if s_ == HP:
            lds_wait(a, AG1)
            a("buffer_load_dword v5, v4, s[24:27], s79 offen sc1 ; @poll")
        regstep(s_, s_ + 12)
    st()
    gpoll(a, 4, 79, True)
    if OPT.get('pb', 0): a(f"s_setprio {OPT['pb']}")
    st()
    CK = {OPT.get('ck14', 8): (4, 80, 27), OPT.get('ck28', 25): (6, 81, NS - 1)}
    nxt, limit = 0, 13
    for s in range(NS):
        PE = OPT.get('pe', 6)
        if s + PE in CK: a(f"buffer_load_dword v5, v{CK[s+PE][0]}, s[24:27], s{CK[s+PE][1]} offen sc1 ; @poll")
        if s in CK:
            st()
            gpoll(a, CK[s][0], CK[s][1], True)
            st()
            limit = CK[s][2]
        IL = OPT.get('il', 1)
        side = []
        emit = (lambda l: side.extend(split(l))) if IL else a.extend
        first = True
        while nxt <= min(limit, s + PD) and len(pool) > (2 if s >= NREG - 2 else 0):
            far = nxt >= s + 3
            (emit if far else a.extend)(h_load(nxt)); nxt += 1
        assert nxt > s
        if NREG <= s + 1 < NS:
            a(f"WAITV d{s+1}")
            a.extend(w_read(s + 1, pool.pop(0)))
        if s == 0 or s in CK:
            for g in side: a.extend(g)
            side.clear()
        a(f"WAITV h{s}" + (f" WAITL r{s}" if s >= NREG else ""))
        if s >= NREG and s + 12 < NS: emit(w_dma(s + 12, smap[s]))
        if s == 30: a(f"ds_read_b32 v29, v27 offset:{4*AG3} ; @ag3")
        mfmas(s, side)
    st()
    FB = list(BLK)
    a("s_nop 9")
    a("v_readfirstlane_b32 s97, v29")
    a("s_cmp_ge_u32 s97, 4")
    a("s_cbranch_scc1 B_rok")
    lds_wait(a, AG3)
    a.label("B_rok")
    for w in range(4):
        if w < 3:
            a(f"s_cmp_lg_u32 s{WV}, {w}")
            a(f"s_cbranch_scc1 B_w{w+1}")
        for qd in range(4):
            if qd == w: continue
            slot = qd * 3 + (w if w < qd else w - 1)
            for q in range(4):
                a(f"ds_write_b128 v22, {vr(ACC + 16*qd + 4*q, 4)} offset:{slot*4096 + q*1024}")
        for r in range(0, 16, 2): a(f"v_mov_b64 {vr(FB[6 + r//8] + r % 8, 2)}, {vr(ACC + 16*w + r, 2)}")
        if w < 3:
            a("s_branch B_wj")
            a.label(f"B_w{w+1}")
    a.label("B_wj")
    a(f"s_mul_i32 s65, s{WV}, 12288")
    a("v_add_u32 v10, s65, v22")
    a("s_waitcnt lgkmcnt(0)")
    a("s_barrier")
    for q in range(4):
        for p in range(3):
            a(f"ds_read_b128 {vr(FB[2*p + q//2] + 4*(q & 1), 4)}, v10 offset:{p*4096 + q*1024} ; @e{q}")
    for k in range(2):
        o = FB[6 + k]
        a(f"WAITL e{2*k+1}")
        for r in range(0, 8, 2): a(f"v_pk_add_f32 {vr(FB[k]+r, 2)}, {vr(FB[k]+r, 2)}, {vr(FB[2+k]+r, 2)}")
        for r in range(0, 8, 2): a(f"v_pk_add_f32 {vr(o+r, 2)}, {vr(o+r, 2)}, {vr(FB[4+k]+r, 2)}")
        for r in range(0, 8, 2): a(f"v_pk_add_f32 {vr(o+r, 2)}, {vr(o+r, 2)}, {vr(FB[k]+r, 2)}")
        for r in range(4): a(f"v_permlane32_swap_b32 v{o+r}, v{o+4+r}")
        for r in range(4): a(f"v_cvt_pk_bf16_f32 v{o+r}, v{o+2*r}, v{o+2*r+1}")
        a(f"buffer_store_dwordx4 {vr(o, 4)}, v14, s[40:43], s45 offen offset:{32*k} {'sc1' if OPT.get('osc', 0) else ''}")
    st()
    st.dump()
    a("s_endpgm")
    a.label("B_helper"); a.restore("bm")
    a("s_sub_u32 s64, s56, 28")
    a("s_lshl_b32 s64, s64, 3")
    a("s_and_b32 s65, s2, 7")
    a("s_add_u32 s64, s64, s65")
    a("s_lshl_b32 s64, s64, 2")
    a(f"s_add_u32 s64, s64, s{WV}")
    a("v_lshlrev_b32 v2, 7, v1")
    a("s_lshl_b32 s64, s64, 13")
    a("s_add_u32 s65, s64, 0x100000")
    HS = OPT.get('hs', 1)
    a("buffer_load_dword v44, v2, s[12:15], s64 offen")
    a("buffer_load_dword v45, v2, s[12:15], s65 offen")
    if HS: a("s_waitcnt vmcnt(0)")
    a("buffer_load_dword v42, v2, s[16:19], s64 offen")
    a("buffer_load_dword v43, v2, s[16:19], s65 offen")
    if HS: a("s_waitcnt vmcnt(0)")
    a("buffer_load_dword v46, v2, s[28:31], s64 offen")
    a("buffer_load_dword v47, v2, s[28:31], s65 offen")
    a("buffer_load_dword v48, v2, s[32:35], s64 offen")
    if OPT.get('l2p', 0):
        a("s_waitcnt vmcnt(0)")
        a("s_sub_u32 s64, s56, 28")
        a("s_lshl_b32 s64, s64, 2")
        a(f"s_add_u32 s64, s64, s{WV}")
        a("s_lshl_b32 s64, s64, 13")
        for k in range(13):
            a(f"buffer_load_dword v{50+k}, v2, s[28:31], s64 offen")
            a(f"s_add_u32 s64, s64, {16*8192}")
            if OPT['l2p'] > 1: a(f"s_waitcnt vmcnt({OPT['l2p'] - 2})")
        a(f"s_sub_u32 s64, s64, {13*16*8192}")
        for k in range(4):
            a(f"buffer_load_dword v{64+k}, v2, s[32:35], s64 offen")
            a(f"s_add_u32 s64, s64, {16*8192}")
    kv_stage(OPT.get('hsl', 32))
    a("WAITV kv")
    a.extend(signal(RD4))
    st.dump()
    a("s_cmp_lg_u32 s2, 255")
    a("s_cbranch_scc1 B_hend")
    a(f"s_cmp_lg_u32 s{WV}, 0")
    a("s_cbranch_scc1 B_hend")
    a("s_mov_b64 exec, -1")
    a(f"v_lshlrev_b32 v7, {FS()}, v1")
    for k in range(4):
        a(f"s_mov_b32 s82, {FLG + 0x18000 + (k << (FS() + 6))}")
        gpoll(a, 7, 82, False, 16)
    a(f"v_mov_b32 v2, s{NON}")
    a("v_mov_b32 v3, 0")
    a(f"s_mov_b32 s65, {WS_FL}")
    a("s_mov_b64 exec, 1")
    a("buffer_store_dword v2, v3, s[24:27], s65 offen sc1")
    a.label("B_hend")
    a("s_endpgm")

def build(path):
    a = Asm()
    a.raw(open("hdr.txt").read().rstrip() if OPT.get('hdr', 0) else "; fused kernel")
    a.raw("; @launch grid=(256,1,1) block=(512,1,1) lds=163840")
    a.raw('.amdgcn_target "amdgcn-amd-amdhsa--gfx950"')
    kernel_header(a, NAME)
    a("s_cmp_ge_u32 s2, 256")
    a("s_cbranch_scc1 K_exit")
    if STAMPS: a("s_memrealtime s[100:101]")
    a("s_load_dwordx16 s[64:79], s[0:1], 0")
    a("s_load_dwordx4 s[80:83], s[0:1], 64")
    a("s_load_dwordx2 s[84:85], s[0:1], 80")
    if OPT.get('cpf', 1):
        a("s_getpc_b64 s[46:47]")
        a.label("K_pc")
        a(f"s_sub_u32 s46, s46, K_pc-{NAME}")
        a("s_subb_u32 s47, s47, 0")
        a("s_bfe_u32 s45, s2, 0x30003")
        a("s_mul_i32 s45, s45, 5120")
        a("v_lshrrev_b32 v2, 6, v0")
        a("v_mul_u32_u24 v2, 5, v2")
        a("v_and_b32 v3, 63, v0")
        a("v_add_lshl_u32 v2, v2, v3, 7")
        a("v_add_u32 v2, s45, v2")
        a(f"v_min_u32 v2, K_end-{NAME}-4, v2")
        a("s_mov_b64 exec, 31")
        a("global_load_dword v95, v2, s[46:47] ; @nocount")
        a("s_mov_b64 exec, -1")
    a("""v_and_b32 v1, 63, v0
    v_lshrrev_b32 v2, 6, v0
    s_and_b32 s3, s2, 7
    v_readfirstlane_b32 s4, v2
    s_lshr_b32 s56, s2, 3
    s_mul_i32 s5, s56, 37
    s_lshr_b32 s5, s5, 8
    s_mul_i32 s6, s5, 7
    s_sub_u32 s6, s56, s6""")
    if OPT.get('loc', 0):
        a(f"""s_lshr_b32 s7, s5, 1
        s_lshl_b32 s{I1}, s3, 1
        s_add_u32 s{I1}, s{I1}, s7
        s_and_b32 s{JJ}, s5, 1
        s_mul_i32 s{JJ}, s{JJ}, 7
        s_add_u32 s{JJ}, s{JJ}, s6
        s_and_b32 s{HEAD}, s56, 15
        s_lshr_b32 s7, s56, 4
        s_lshl_b32 s{I2}, s3, 1
        s_add_u32 s{I2}, s{I2}, s7""")
    else:
        a(f"""s_lshr_b32 s{I1}, s3, 1
        s_lshl_b32 s{I1}, s{I1}, 2
        s_add_u32 s{I1}, s{I1}, s5
        s_and_b32 s{JJ}, s3, 1
        s_mul_i32 s{JJ}, s{JJ}, 7
        s_add_u32 s{JJ}, s{JJ}, s6
        s_and_b32 s{HEAD}, s56, 1
        s_lshl_b32 s7, s3, 1
        s_add_u32 s{HEAD}, s{HEAD}, s7
        s_lshr_b32 s{I2}, s56, 1""")
    a(f"""s_lshl_b32 s{RB}, s3, 2
    s_add_u32 s{RB}, s{RB}, s5
    s_mov_b32 s{CB}, s6
    s_and_b32 s{WV}, s4, 3""")
    a(f"""s_lshl_b32 s57, s{I1}, 1
    s_add_u32 s57, s57, s{JJ}
    s_mul_i32 s7, s57, 37
    s_lshr_b32 s7, s7, 8
    s_mul_i32 s7, s7, 7
    s_sub_u32 s57, s57, s7""")
    for n in range(1, 7):
        a(f"s_add_u32 s{57+n}, s{56+n}, 1")
        a(f"s_cmp_eq_u32 s{57+n}, 7")
        a(f"s_cselect_b32 s{57+n}, 0, s{57+n}")
    a(f"v_mov_b32 v27, {CNT}")
    a("v_mov_b32 v30, 1")
    a("s_waitcnt lgkmcnt(0)")
    srd(a, 8, 64, S * D * 2)
    srd(a, 24, 84, WS_SIZE)
    a(f"s_add_u32 s86, s84, {WS_FL}")
    a("s_addc_u32 s87, s85, 0")
    a("s_load_dword s44, s[86:87], 0")
    a("s_cmp_lt_u32 s4, 4")
    a("s_cbranch_scc1 A_start")
    a("v_mov_b32 v2, 0")
    a("v_lshl_add_u32 v3, v1, 2, v27")
    a("ds_write_b32 v3, v2")
    nonce(a)
    a("s_branch B_start")
    a.label("A_start")
    a.save("role")
    gen_A(a, [])
    a.label("B_start"); a.restore("role")
    srd(a, 12, 66, D * 3 * D * 2)
    srd(a, 16, 72, D * F * 2)
    srd(a, 20, 74, F * 2)
    srd(a, 28, 76, F * D * 2)
    srd(a, 32, 68, D * D * 2)
    srd(a, 36, 78, D * 2)
    srd(a, 40, 80, S * D * 2)
    a("s_barrier")
    gen_B(a)
    a.label("K_exit")
    a("s_endpgm")
    a.label("K_end")
    kernel_desc(a, NAME, 256, 102, 256)
    open(path, "w").write(a.text())
    print("padded nops:", a.padded)

if __name__ == "__main__":
    if len(sys.argv) > 2 and sys.argv[2] == "st": STAMPS = True
    for kv in sys.argv[3:]:
        k, v = kv.split("="); OPT[k] = int(v)
    build(sys.argv[1])
```

```python
import math, struct, sys
from asmlib import *

S, D, F, H, DH = 2048, 448, 1792, 16, 28
WS_QK, WS_V, WS_H, WS_O, WS_FL = 0x0, 0x400000, 0x600000, 0xE00000, 0x1000000
WS_SIZE = 0x1040000
FLG = WS_FL + 0x8000
WS_DBG = 0xF800000
QK_T, V_T, H_T, O_T = 57344, 28672, 114688, 32768
NAME = "parallel_sum__sliding_block__dense_activation_gelu__prompt_kernel"
STAMPS = False
OPT = {}

def f32(x): return "0x%08x" % struct.unpack("<I", struct.pack("<f", x))[0]
LOG2E = 1.4426950408889634
QSCALE = DH ** -0.5 * LOG2E
GC1 = -2.0 * math.sqrt(2.0 / math.pi) * LOG2E
GC2 = GC1 * 0.044715
NEG = -1e30
def vr(b, n): return f"v[{b}:{b+n-1}]"
MF = "v_mfma_f32_32x32x16_bf16"

P0, P1, P2, P3, P4, MISC = 0, 28672, 57344, 86016, 114688, 143360
UB = [P2, P4, P0, P2]
CNT, RRT, BIAST, MSLOT = MISC, MISC + 256, MISC + 1024, MISC + 4096
LK, LV, LQ = 0, 24576, 49152
XISS, FXS, RD0, RD1, RD2, RD3, RD4, FU0, FU1, FU2, FU3, NONCE, AG0, AG1, AG2, AG3, FU1A = range(17)
WV, I1, JJ, HEAD, I2, RB, CB, NON = 48, 49, 50, 51, 52, 53, 54, 55
SPIN = 20000

class Stamper:
    def __init__(self, a): self.a, self.n = a, 0
    def __call__(self, idx=None):
        if idx is not None: self.n = idx
        if STAMPS:
            self.a("s_memtime s[98:99]" if OPT.get('cyc', 0) else "s_memrealtime s[98:99]")
            self.a("s_waitcnt lgkmcnt(0)")
            self.a(f"v_writelane_b32 v31, s98, {self.n}")
        self.n += 1
    def dump(self):
        if not STAMPS: return
        a = self.a
        a("s_memrealtime s[98:99]")
        a("s_waitcnt vmcnt(0) lgkmcnt(0)")
        a("v_writelane_b32 v31, s98, 31")
        a("v_writelane_b32 v31, s100, 30")
        a("s_mov_b32 s26, 0x10000000")
        a("s_lshl_b32 s96, s2, 3")
        a("v_lshrrev_b32 v2, 6, v0")
        a("v_add_u32 v2, s96, v2")
        a("v_lshlrev_b32 v2, 5, v2")
        a("v_add_lshl_u32 v2, v2, v1, 2")
        a(f"s_mov_b32 s96, {WS_DBG}")
        a("s_mov_b32 exec_hi, 0")
        a("buffer_store_dword v31, v2, s[24:27], s96 offen")
        if OPT.get('dd', -1) >= 0:
            L = a.newlabel("DD")
            a(f"s_cmp_lg_u32 s2, {OPT.get('dw', 100)}")
            a(f"s_cbranch_scc1 {L}")
            a(f"s_cmp_lg_u32 s4, {OPT['dd']}")
            a(f"s_cbranch_scc1 {L}")
            a("v_subrev_u32 v3, s100, v31")
            a("v_lshlrev_b32 v2, 2, v1")
            a("buffer_store_dword v3, v2, s[44:47], 0 offen")
            a.label(L)

def LS(): return '' if OPT.get('loc', 0) > 1 else 'sc1'

def LL(): return ['sc1', '', 'nt', 'sc0'][OPT.get('ll', 0)]

def FS(): return OPT.get('fs', 7)

def nonce(a):
    a("s_waitcnt lgkmcnt(0)")
    a(f"s_mul_i32 s{NON}, s44, 0x9E3779B1")
    a(f"s_add_u32 s{NON}, s{NON}, 0x7F4A7C15")

def merge(main, fill, skip=0, last=0):
    if OPT.get('noepi', 0): fill = [g for g in fill if any('buffer_store' in x for x in g)]
    if OPT.get('nost', 0): fill = [g for g in fill[:-1] if not g[0].startswith('buffer_store')] + fill[-1:]
    slots = [i for i, m in enumerate(main) if m.startswith('v_mfma')]
    slots = slots[skip:len(slots) - last]
    out, k, n = [], 0, len(fill)
    pos = {s: j for j, s in enumerate(slots)}
    for i, m in enumerate(main):
        out.append(m)
        if i in pos:
            tgt = (n * (pos[i] + 1)) // len(slots)
            while k < tgt:
                out.extend(fill[k]); k += 1
    for g in fill[k:]: out.extend(g)
    return out

def signal(c):
    return ["s_mov_b64 exec, 1", f"ds_add_u32 v27, v30 offset:{4*c}", "s_mov_b64 exec, -1"]

def lds_wait(a, c, n=4):
    L = a.newlabel("LW")
    a("s_mov_b32 s95, 0")
    a.label(L)
    a(f"ds_read_b32 v29, v27 offset:{4*c}")
    a("s_add_u32 s95, s95, 1")
    a("s_lshr_b32 s94, s95, 18")
    a("s_waitcnt lgkmcnt(0)")
    a("v_readfirstlane_b32 s97, v29")
    a("s_add_u32 s97, s97, s94")
    a(f"s_cmp_ge_u32 s97, {n}")
    a(f"s_cbranch_scc1 {L}_d")
    a(f"s_sleep {OPT.get('lsl', 2)}")
    a(f"s_branch {L}")
    a.label(f"{L}_d")

def gen_A(a, stubs):
    st = Stamper(a)
    XF, A0, A1 = 128, 64, 96
    RING = [48, 56, 240, 248]
    KB = 57
    st()
    a(f"s_setprio {OPT.get('pa', 2)}")
    a("v_lshrrev_b32 v24, 5, v1")
    a("v_lshlrev_b32 v21, 3, v1")
    a("v_lshlrev_b32 v22, 4, v1")
    a("v_mov_b32 v5, 0")
    a("s_cmp_ge_u32 s56, 28")
    a("s_cbranch_scc1 A_helper")
    a(f"s_lshl_b32 s86, s{I1}, 2")
    a(f"s_add_u32 s86, s86, s{WV}")
    a("""v_lshrrev_b32 v2, 3, v1
    v_and_b32 v3, 7, v1
    v_lshrrev_b32 v4, 1, v2
    v_xor_b32 v5, v3, v4
    v_mul_u32_u24 v6, 896, v2
    v_lshl_add_u32 v8, v5, 4, v6
    v_xor_b32 v5, 4, v5
    v_lshl_add_u32 v9, v5, 4, v6""")
    a(f"v_add_u32 v9, {8*896 - 1024}, v9")
    a(f"v_add_u32 v10, {16*896 - 2048}, v8")
    a(f"v_add_u32 v11, {16*896 - 2048}, v9")
    a("s_mul_i32 s87, s86, 28672")
    a(f"s_mul_i32 s88, s{WV}, 14336")
    def x_dma(n):
        o = [f"s_lshl_b32 s89, s{KB+n}, 7", "s_add_u32 s89, s89, s87", f"s_add_u32 m0, s88, {(n % 3)*4096}"]
        for rg in range(4):
            o.append(f"buffer_load_dwordx4 v{8+rg}, s[8:11], s89 offen offset:{rg*1024} lds ; @x{n}")
        return o
    for n in range(3): a.extend(x_dma(n))
    a("""v_and_b32 v2, 31, v1
    v_bfe_u32 v3, v2, 1, 3
    v_lshlrev_b32 v4, 7, v2
    v_add_u32 v4, s88, v4""")
    for q in range(4):
        a(f"v_add_u32 v5, {2*q}, v24")
        a("v_xor_b32 v5, v5, v3")
        a(f"v_lshl_add_u32 v{12+q}, v5, 4, v4")
    a("""v_and_b32 v2, 15, v1
    v_bfe_u32 v3, v1, 4, 1
    v_lshrrev_b32 v4, 2, v2
    v_bfe_u32 v5, v2, 1, 1
    v_lshl_add_u32 v5, v3, 1, v5
    v_bfe_u32 v6, v2, 3, 1
    v_lshlrev_b32 v6, 2, v6
    v_xor_b32 v5, v5, v6
    v_lshlrev_b32 v7, 10, v24
    v_lshl_add_u32 v7, v4, 7, v7
    v_and_b32 v6, 1, v2
    v_lshl_add_u32 v7, v6, 3, v7
    v_lshl_add_u32 v16, v5, 4, v7
    v_xor_b32 v5, 4, v5
    v_lshl_add_u32 v17, v5, 4, v7
    v_lshl_add_u32 v7, v24, 3, v4
    v_lshlrev_b32 v7, 6, v7
    v_lshl_add_u32 v7, v3, 5, v7
    v_and_b32 v6, 3, v2
    v_lshl_add_u32 v20, v6, 3, v7""")
    a(f"v_add_u32 v20, {UB[1]}, v20")
    a(f"v_add_u32 v18, {UB[0]}, v16")
    a(f"v_add_u32 v19, {UB[0]}, v17")
    a("""v_and_b32 v2, 31, v1
    v_mul_u32_u24 v23, 7168, v24
    v_lshl_add_u32 v23, v2, 4, v23""")
    a(f"v_lshlrev_b32 v28, 4, v24")
    a(f"v_add_u32 v28, {BIAST}, v28")
    a(f"""s_mul_i32 s64, s{JJ}, 192
    s_and_b32 s65, s{JJ}, 1
    s_lshl_b32 s66, s65, 6
    s_add_u32 s66, s64, s66
    s_xor_b32 s65, s65, 1
    s_lshl_b32 s65, s65, 7
    s_add_u32 s64, s64, s65""")
    a(f"s_mul_i32 s65, s86, {QK_T}")
    a("s_lshl_b32 s67, s64, 5"); a("s_add_u32 s67, s67, s65")
    a("s_lshl_b32 s68, s66, 5"); a("s_add_u32 s68, s68, s65")
    a(f"s_mul_i32 s65, s86, {V_T}")
    a(f"s_add_u32 s65, s65, {WS_V - 2*896*8}")
    a("s_lshl_b32 s69, s64, 3"); a("s_add_u32 s69, s69, s65")
    a("s_add_u32 s70, s69, 14336")
    a("s_lshl_b32 s71, s66, 3"); a("s_add_u32 s71, s71, s65")
    a("s_add_u32 s72, s71, 14336")
    a(f"s_mul_i32 s73, s86, {H_T}")
    a(f"s_lshl_b32 s65, s{JJ}, 13")
    a("s_add_u32 s73, s73, s65")
    a(f"s_add_u32 s73, s73, {WS_H}")
    a("s_add_u32 s74, s73, 4096")
    a(f"s_lshl_b32 s75, s{I1}, 4")
    a(f"s_add_u32 s75, s75, s{JJ}")
    a(f"s_lshl_b32 s75, s75, {FS()}")
    a(f"s_add_u32 s75, s75, {FLG}")
    a("s_add_u32 s76, s75, 0x8000")
    a("s_add_u32 s77, s75, 0x10000")
    a("s_mov_b32 s78, 0x3f803f80")
    for q in range(4): a(f"v_mov_b32 v{32+q}, 0")
    nonce(a)
    a("s_barrier")
    st()
    for n in range(7):
        a(f"WAITV x{n}")
        for q in range(4):
            a(f"ds_read_b128 {vr(XF + 16*n + 4*q, 4)}, v{12+q} offset:{(n % 3)*4096}")
        if n >= 1:
            for d in range(16*(n-1), 16*n):
                a(f"v_dot2c_f32_bf16 v{32 + (d & 1)}, s78, v{XF+d}")
                a(f"v_dot2c_f32_bf16 v{34 + (d & 1)}, v{XF+d}, v{XF+d}")
        a("s_waitcnt lgkmcnt(0)")
        if n + 3 < 7: a.extend(x_dma(n + 3))
        if n == OPT.get('xiss', 2): a.extend(signal(XISS))
    a.extend(signal(FXS))
    st()
    for d in range(96, 112):
        a(f"v_dot2c_f32_bf16 v{32 + (d & 1)}, s78, v{XF+d}")
        a(f"v_dot2c_f32_bf16 v{34 + (d & 1)}, v{XF+d}, v{XF+d}")
    a("""v_add_f32 v32, v32, v33
    v_add_f32 v34, v34, v35
    v_mov_b32 v33, v32
    v_mov_b32 v35, v34
    v_permlane32_swap_b32 v32, v33
    v_permlane32_swap_b32 v34, v35
    v_add_f32 v32, v32, v33
    v_add_f32 v34, v34, v35""")
    a(f"v_mul_f32 v32, {f32(1.0/448)}, v32")
    a(f"v_mul_f32 v34, {f32(1.0/448)}, v34")
    a("v_fma_f32 v34, -v32, v32, v34")
    a("v_cvt_pk_bf16_f32 v33, v32, v32")
    a("v_and_b32 v33, 0xffff0000, v33")
    a("v_sub_f32 v7, 0, v33")
    a("v_max_f32 v34, 0, v34")
    a("v_cvt_pk_bf16_f32 v34, v34, v34")
    a("v_and_b32 v34, 0xffff0000, v34")
    a(f"v_add_f32 v34, {f32(1e-5)}, v34")
    a("v_cvt_pk_bf16_f32 v34, v34, v34")
    a("v_and_b32 v34, 0xffff0000, v34")
    a("v_sqrt_f32 v34, v34")
    a("v_cvt_pk_bf16_f32 v34, v34, v34")
    a("v_and_b32 v34, 0xffff0000, v34")
    a("v_rcp_f32 v25, v34")
    a("v_and_b32 v2, 31, v1")
    a(f"s_lshl_b32 s65, s{WV}, 7")
    a(f"s_add_u32 s65, s65, {RRT}")
    a("v_lshl_add_u32 v2, v2, 2, s65")
    a("ds_write_b32 v2, v25")
    a("v_lshl_add_u32 v12, v24, 4, s65")
    a(f"v_mov_b32 v6, s{NON}")
    a("s_mov_b32 s78, 0x00003f80")
    a("s_mov_b32 s79, 0x3f800000")
    for d0 in range(0, 112, 4):
        for d in range(d0, d0 + 4):
            a(f"v_dot2_f32_bf16 v{64 + 2*(d & 7)}, v{XF+d}, s78, v7")
            a(f"v_dot2_f32_bf16 v{65 + 2*(d & 7)}, v{XF+d}, s79, v7")
        if d0 >= 4:
            for d in range(d0 - 4, d0):
                a(f"v_cvt_pk_bf16_f32 v{XF+d}, v{64 + 2*(d & 7)}, v{65 + 2*(d & 7)}")
    a(f"v_mul_f32 v4, {f32(QSCALE)}, v25")
    a("s_cmp_lt_u32 s64, 896")
    a("s_cselect_b64 vcc, -1, 0")
    a("v_cndmask_b32 v2, v25, v4, vcc")
    a("s_cmp_lt_u32 s66, 896")
    a("s_cselect_b64 vcc, -1, 0")
    a("v_cndmask_b32 v3, v25, v4, vcc")
    for d in range(108, 112):
        a(f"v_cvt_pk_bf16_f32 v{XF+d}, v{64 + 2*(d & 7)}, v{65 + 2*(d & 7)}")
    a(f"s_mov_b32 s78, {f32(GC2)}")
    a(f"v_mov_b32 v26, {f32(GC1)}")
    a("v_mov_b32 v5, 0")
    st()
    lds_wait(a, RD0)
    st()

    LA = 3
    units = [28, 14, 28, 28]
    seq = [(u, s) for u, n in enumerate(units) for s in range(n)]
    start = [0, 28, 42, 70]
    UACC = [(64, 80), (96, 96), (64, 80), (96, 112)]
    def reads(g):
        u, s = seq[g]; b = RING[g % 4]; o = []
        for T in range(2):
            if u == 1: ad, off, sec = 20, (2*s + T) * 1024, 256
            else: ad, off, sec = (16 if u == 2 else 18) + T, s * 2048, 512
            o.append(f"ds_read_b64_tr_b16 {vr(b + 4*T, 2)}, v{ad} offset:{off} ; @w{g}")
            o.append(f"ds_read_b64_tr_b16 {vr(b + 4*T + 2, 2)}, v{ad} offset:{off + sec} ; @w{g}")
        return o
    def check(c):
        L = a.newlabel("AC")
        stubs.append((L, c))
        return [f"WAITL f{c}", "v_readfirstlane_b32 s97, v29", "s_cmp_lt_u32 s97, 4", f"s_cbranch_scc1 {L}", f"{L}_r:"]
    def unit(u, normal):
        o = []
        n = units[u]
        for s in range(n):
            g = start[u] + s
            if u < 3 and s == n - LA - 4: o.append(f"ds_read_b32 v29, v27 offset:{4*(RD1+u)} ; @f{RD1+u}")
            if u < 3 and s == n - LA: o.extend(check(RD1 + u))
            RO = OPT.get('ro', 1)
            rd = reads(g + LA) if g + LA < len(seq) else []
            if RO == 0: o.extend(rd)
            o.append(f"WAITL w{g}")
            if RO == 1: o.extend(rd)
            if s == n - 1: o.extend(signal(FU0 + u))
            for T in range(2):
                w = vr(RING[g % 4] + 4*T, 4)
                d = vr(UACC[u][T], 16)
                if u == 1: x, first = vr(XF + 4*(2*s + T), 4), (s == 0 and T == 0)
                else: x, first = vr(XF + 4*s, 4), s == 0
                A, B = (x, w) if normal else (w, x)
                o.append(f"{MF} {d}, {A}, {B}, {'0' if first else d}")
                if RO == 2: o.extend(rd[2*T:2*T+2])
        return o
    def rr_read():
        return [[f"ds_read_b128 {vr(32 + 4*q, 4)}, v12 offset:{32*q} ; @rr" for q in range(4)], [], [], [], ["WAITL rr"]]
    def epi_qk(b, T, sc, soff):
        o = []
        for q in range(4):
            for r in range(4*q, 4*q+4): o.append([f"v_mul_f32 v{b+r}, v{b+r}, v{sc}"])
            for r in range(2): o.append([f"v_cvt_pk_bf16_f32 v{b+4*q+r}, v{b+4*q+2*r}, v{b+4*q+2*r+1}"])
            o.append([f"buffer_store_dwordx2 {vr(b+4*q, 2)}, v21, s[24:27], s{soff} offen offset:{T*2048 + q*512} sc1 ; @qkv"])
        return o
    def epi_v(b, T, soff):
        o = []
        for f in range(2):
            for r in range(8*f, 8*f+8): o.append([f"v_mul_f32 v{b+r}, v{b+r}, v{32+r}"])
            for r in range(4): o.append([f"v_cvt_pk_bf16_f32 v{b+8*f+r}, v{b+8*f+2*r}, v{b+8*f+2*r+1}"])
            o.append([f"buffer_store_dwordx4 {vr(b+8*f, 4)}, v23, s[24:27], s{soff+f} offen offset:{T*512} sc1 ; @qkv"])
        return o
    def epi_h(b, T, tl, soff, packed, tag):
        o = []
        for f in range(2):
            R = range(8*f, 8*f+8); t = lambda r: 32 + r
            o.append([f"ds_read_b128 {vr(32+8*f+4*q, 4)}, v28 offset:{tl*128 + (2*f+q)*32} ; @b{tl}{f}" for q in range(2)])
        for f in range(2):
            R = range(8*f, 8*f+8); t = lambda r: 32 + r
            o.append([f"WAITL b{tl}{f}"])
            if packed:
                R2 = range(8*f, 8*f+8, 2); p2 = lambda x: vr(x, 2)
                for r in R2: o.append([f"v_pk_fma_f32 {p2(b+r)}, {p2(b+r)}, v[8:9], {p2(t(r))}"])
                for r in R2: o.append([f"v_pk_mul_f32 {p2(t(r))}, {p2(b+r)}, {p2(b+r)}"])
                for r in R2: o.append([f"v_pk_fma_f32 {p2(t(r))}, {p2(t(r))}, v[10:11], v[12:13]"])
                for r in R2: o.append([f"v_pk_mul_f32 {p2(t(r))}, {p2(t(r))}, {p2(b+r)}"])
                for r in R: o.append([f"v_exp_f32 v{t(r)}, v{t(r)}"])
                for r in R2: o.append([f"v_pk_add_f32 {p2(t(r))}, {p2(t(r))}, v[14:15]"])
                for r in R: o.append([f"v_rcp_f32 v{t(r)}, v{t(r)}"])
                for r in R2: o.append([f"v_pk_mul_f32 {p2(b+r)}, {p2(b+r)}, {p2(t(r))}"])
            else:
                for r in R: o.append([f"v_fma_f32 v{b+r}, v{b+r}, v25, v{t(r)}"])
                for r in R: o.append([f"v_mul_f32 v{t(r)}, v{b+r}, v{b+r}"])
                for r in R: o.append([f"v_fma_f32 v{t(r)}, v{t(r)}, s78, v26"])
                for r in R: o.append([f"v_mul_f32 v{t(r)}, v{t(r)}, v{b+r}"])
                for r in R: o.append([f"v_exp_f32 v{t(r)}, v{t(r)}"])
                for r in R: o.append([f"v_add_f32 v{t(r)}, 1.0, v{t(r)}"])
                for r in R: o.append([f"v_rcp_f32 v{t(r)}, v{t(r)}"])
                for r in R: o.append([f"v_mul_f32 v{b+r}, v{b+r}, v{t(r)}"])
            for r in range(4): o.append([f"v_cvt_pk_bf16_f32 v{b+8*f+r}, v{b+8*f+2*r}, v{b+8*f+2*r+1}"])
            o.append([f"buffer_store_dwordx4 {vr(b+8*f, 4)}, v22, s[24:27], s{soff} offen offset:{(2*T+f)*1024} {LS()} ; @{tag}"])
        return o
    def flag(kind, tag):
        L = a.newlabel("FG")
        o = [f"WAITV {tag}", "s_mov_b64 exec, 1", f"ds_add_rtn_u32 v4, v27, v30 offset:{4*(AG0+kind)} ; @{'nocount' if kind == 2 else 'ag%d' % kind}", "s_mov_b64 exec, -1"]
        st_ = ["s_mov_b64 exec, 1", f"buffer_store_dword v6, v5, s[24:27], s{75 + kind if kind < 3 else 68} offen {LS() if kind in (1, 2) else 'sc1'} ; @nocount"]
        p = [f"WAITL ag{kind}" if kind != 2 else "s_waitcnt lgkmcnt(0)", "v_readfirstlane_b32 s97, v4", "s_cmp_lg_u32 s97, 3", f"s_cbranch_scc1 {L}"] + st_ + ["s_mov_b64 exec, -1", f"{L}:"]
        return o, p
    def at(main, grp, k):
        n = sum(1 for m in main if m.startswith('v_mfma'))
        return merge(main, [grp], skip=k, last=n - k - 1)
    def path(sv, pv):
        for g in range(LA): a.extend(reads(g))
        a.extend(merge(unit(0, pv), rr_read() if pv else [], skip=40))
        st(5)
        e0 = (epi_v(64, 0, 71) + epi_v(80, 1, 71)) if pv else (epi_qk(64, 0, 3, 68) + epi_qk(80, 1, 3, 68))
        a.extend(merge(unit(1, sv), e0, skip=3, last=2))
        st()
        e1 = epi_v(96, 0, 69) if sv else epi_qk(96, 0, 2, 67)
        f0 = flag(0, "qkv")
        u2 = merge(unit(2, False), e1, skip=3, last=46)
        k0 = OPT.get('f0at', 50)
        a.extend(at(at(u2, f0[0], k0), f0[1], k0 + 4))
        st()
    a.save("p")
    a(f"s_cmp_ge_u32 s{JJ}, 10")
    a("s_cbranch_scc1 A_pc")
    a(f"s_cmp_eq_u32 s{JJ}, 9")
    a("s_cbranch_scc1 A_pb")
    path(False, False)
    a("s_branch A_join")
    a.label("A_pb"); a.restore("p")
    path(False, True)
    a("s_branch A_join")
    a.label("A_pc"); a.restore("p")
    path(True, True)
    a.label("A_join")
    e2 = epi_h(64, 0, 0, 73, False, "h1") + epi_h(80, 1, 1, 73, False, "h1")
    if OPT.get('bunch', 0):
        sts = [g for g in e2 if g[0].startswith('buffer_store')]
        e2 = [g for g in e2 if not g[0].startswith('buffer_store')]
        if OPT['bunch'] == 1: e2 += sts
    u3 = merge(unit(3, False), e2, skip=3, last=OPT.get('u3l', 14))
    F1L = OPT.get('f1l', 0)
    if F1L:
        f1 = flag(1, "h1")
        u3 = at(at(u3, f1[0], F1L), f1[1], min(55, F1L + 3))
    a.extend(u3)
    if OPT.get('bunch', 0) == 2:
        for g in sts: a.extend(g)
    st()
    a("v_mov_b32 v8, v25"); a("v_mov_b32 v9, v25")
    a("v_mov_b32 v10, s78"); a("v_mov_b32 v11, s78")
    a("v_mov_b32 v12, v26"); a("v_mov_b32 v13, v26")
    a("v_mov_b32 v14, 1.0"); a("v_mov_b32 v15, 1.0")
    e3 = epi_h(96, 0, 2, 74, True, "h2") + epi_h(112, 1, 3, 74, True, "h2")
    f1 = flag(1, "h1") if not F1L else ([], [])
    hp = len(e3) * OPT.get('f1at', 30) // 100
    for g in e3[:hp]: a.extend(g)
    if OPT.get('sf1', 0): st(14)
    a.extend(f1[0])
    if OPT.get('sf1', 0): st(15); st.n = 9
    for g in e3[hp:hp+10]: a.extend(g)
    a.extend(f1[1])
    for g in e3[hp+10:]: a.extend(g)
    a("s_mov_b32 s79, 0")
    st()
    a("s_branch A_attn")
    a.label("A_helper")
    a("s_mov_b32 s79, 1")
    nonce(a)
    a("s_barrier")
    a(f"v_mov_b32 v6, s{NON}")
    a.label("A_attn")
    SR, QF, OA, PB = 96, 40, 48, 64
    KV = [80, 88, 240, 248]
    a("v_and_b32 v12, 31, v1")
    a(f"v_mov_b32 v2, {f32(NEG)}")
    a("v_lshlrev_b32 v3, 2, v24")
    a("v_sub_u32 v3, v12, v3")
    for r in range(16):
        key = 8 * (r >> 2) + (r & 3)
        a(f"v_cmp_le_i32 vcc, {key}, v3")
        a(f"v_cndmask_b32 v{SR+128+r}, v2, 0, vcc")
        a(f"v_cndmask_b32 v{SR+r}, 0, v2, vcc")
    a(f"s_lshl_b32 s64, s{WV}, 11")
    a("v_add_u32 v14, s64, v21")
    a("v_add_u32 v15, s64, v22")
    a(f"v_add_u32 v15, {LV}, v15")
    a("v_mov_b32 v32, 0x3f803f80")
    for r in (33, 34, 35, 37, 38, 39): a(f"v_mov_b32 v{r}, 0")
    a(f"s_lshl_b32 s66, s{I2}, 2")
    a(f"s_add_u32 s66, s66, s{WV}")
    a(f"s_mul_i32 s67, s66, {O_T}")
    a(f"s_lshl_b32 s68, s{HEAD}, 11")
    a("s_add_u32 s67, s67, s68")
    a(f"s_add_u32 s67, s67, {WS_O}")
    a(f"s_lshl_b32 s68, s{I2}, 4")
    a(f"s_add_u32 s68, s68, s{HEAD}")
    a(f"s_lshl_b32 s68, s68, {FS()}")
    a(f"s_add_u32 s68, s68, {FLG + 0x18000}")
    a(f"ds_read_b32 v29, v27 offset:{4*RD4}")
    a("s_waitcnt lgkmcnt(0)")
    a("v_readfirstlane_b32 s97, v29")
    a("s_cmp_ge_u32 s97, 4")
    a("s_cbranch_scc1 A_kvok")
    a("s_cmp_lg_u32 s79, 0")
    a("s_cbranch_scc1 A_nof")
    f2 = flag(2, "h2")
    a.extend(f2[0]); a.extend(f2[1])
    a("s_mov_b32 s79, 1")
    a.label("A_nof")
    lds_wait(a, RD4)
    a.label("A_kvok")
    st()
    for f in range(2):
        a(f"ds_read2st64_b64 {vr(QF + 4*f, 4)}, v14 offset0:{LQ//512 + 2*f} offset1:{LQ//512 + 2*f + 1} ; @q")
    def kread(s): return [f"ds_read2st64_b64 {vr(KV[s % 4] + 4*f, 4)}, v14 offset0:{4*s + 2*f} offset1:{4*s + 2*f + 1} ; @k{s}" for f in range(2)]
    def vread(s): return [f"ds_read_b128 {vr(KV[(s+1) % 4] + 4*f, 4)}, v15 offset:{2048*s + 1024*f} ; @v{s}" for f in range(2)]
    def maxes(s):
        b = SR + 16*s; o = []
        for r in range(0, 16, 2):
            acc = 8 + ((r >> 1) & 3)
            if s == 0 and r < 8: o.append(f"v_max_f32 v{acc}, v{b+r}, v{b+r+1}")
            else: o.append(f"v_max3_f32 v{acc}, v{b+r}, v{b+r+1}, v{acc}")
        return o
    for s in range(3): a.extend(kread(s))
    for s in range(9):
        if s + 3 < 9: a.extend(kread(s + 3))
        else: a.extend(vread(s + 3 - 9))
        a(f"WAITL k{s}")
        d = vr(SR + 16*s, 16)
        m = maxes(s - 2) if s >= 2 else []
        a(f"{MF} {d}, {vr(KV[s % 4], 4)}, {vr(QF, 4)}, {d if s in (0, 8) else '0'}")
        a.extend(m[:4])
        a(f"{MF} {d}, {vr(KV[s % 4] + 4, 4)}, {vr(QF+4, 4)}, {d}")
        a.extend(m[4:])
    a.extend(maxes(7))
    a("s_cmp_lg_u32 s79, 0")
    a("s_cbranch_scc1 A_nof2")
    f2 = flag(2, "h2")
    a.extend(f2[0]); a.extend([x.replace("WAITL ag2", "s_waitcnt lgkmcnt(0)") for x in f2[1]])
    a.label("A_nof2")
    a.extend(maxes(8))
    a("""v_max3_f32 v2, v8, v9, v10
    v_max_f32 v2, v2, v11
    v_mov_b32 v3, v2
    v_permlane32_swap_b32 v2, v3
    v_max_f32 v2, v2, v3
    v_sub_f32 v2, 0, v2
    v_cvt_pk_bf16_f32 v3, v2, v2
    v_and_b32 v3, 0xffff0000, v3
    v_sub_f32 v3, v2, v3
    v_cvt_pk_bf16_f32 v36, v2, v3
    v_cmp_eq_u32 vcc, 0, v24
    v_cndmask_b32 v36, 0, v36, vcc""")
    st()
    def shift(s): return f"{MF} {vr(SR+16*s, 16)}, v[32:35], v[36:39], {vr(SR+16*s, 16)}"
    a(shift(0)); a(shift(1))
    def pv(s):
        pb = PB + 8*(s & 1)
        return [f"{MF} {vr(OA, 16)}, {vr(KV[(s+1) % 4] + 4*f, 4)}, {vr(pb + 4*f, 4)}, {'0' if (s == 0 and f == 0) else vr(OA, 16)}" for f in range(2)]
    for s in range(9):
        b = SR + 16*s; pb = PB + 8*(s & 1)
        mm = []
        if s + 2 < 9: mm.append(shift(s + 2))
        if s >= 1: mm = [f"WAITL v{s-1}"] + pv(s - 1)[:1] + mm + pv(s - 1)[1:] + (vread(s + 2) if s + 2 < 9 else [])
        ex = [f"v_exp_f32 v{b+r}, v{b+r}" for r in range(16)]
        cv = [f"v_cvt_pk_bf16_f32 v{pb+r}, v{b+2*r}, v{b+2*r+1}" for r in range(8)]
        body = ex[:4]
        k = 0
        chunks = [ex[4:8], ex[8:12], ex[12:16] + cv]
        for x in mm:
            body.append(x)
            if x.startswith(MF) and k < 3:
                body.extend(chunks[k]); k += 1
        for c in chunks[k:]: body.extend(c)
        a.extend(body)
    a("WAITL v8")
    a.extend(pv(8))
    st()
    a(f"v_mov_b32 v2, v{OA+12}")
    a(f"v_mov_b32 v3, v{OA+12}")
    a("v_permlane32_swap_b32 v2, v3")
    a("v_rcp_f32 v3, v3")
    for r in range(16): a(f"v_mul_f32 v{OA+r}, v{OA+r}, v3")
    for r in range(8): a(f"v_cvt_pk_bf16_f32 v{PB+r}, v{OA+2*r}, v{OA+2*r+1}")
    a(f"buffer_store_dwordx4 {vr(PB, 4)}, v22, s[24:27], s67 offen sc1 ; @o")
    a("v_cmp_eq_u32 vcc, 0, v24")
    a(f"v_cndmask_b32 v{PB+6}, 0, v{PB+6}, vcc")
    a(f"v_cndmask_b32 v{PB+7}, 0, v{PB+7}, vcc")
    a(f"buffer_store_dwordx4 {vr(PB+4, 4)}, v22, s[24:27], s67 offen offset:1024 sc1 ; @o")
    f3 = flag(3, "o")
    a.extend(f3[0]); a.extend(f3[1])
    st()
    st.dump()
    a("s_endpgm")
    for L, c in stubs:
        a.label(L)
        lds_wait(a, c)
        a(f"s_branch {L}_r")

def gpoll(a, va, sg, pre=False, sl=None):
    L = a.newlabel("GP")
    a("s_mov_b32 s96, 0")
    if pre:
        a("WAITV poll")
        a.extend(fcheck(1, 5))
        a(f"s_cbranch_scc1 {L}_d")
    a.label(L)
    a(f"buffer_load_dword v5, v{va}, s[24:27], s{sg} offen sc1 ; @nocount")
    a("s_waitcnt vmcnt(0)")
    a.extend(fcheck(1, 5))
    a(f"s_cbranch_scc1 {L}_d")
    a(f"s_sleep {sl or OPT.get('gsl', 8)}")
    a("s_add_u32 s96, s96, 1")
    a(f"s_cmp_lt_u32 s96, {SPIN}")
    a(f"s_cbranch_scc1 {L}")
    a.label(f"{L}_d")

def fcheck(nreg, base):
    o = []
    if nreg == 4:
        for r in range(4): o.append(f"v_xor_b32 v{base+r}, s{NON}, v{base+r}")
        o.append(f"v_or3_b32 v{base}, v{base}, v{base+1}, v{base+2}")
        o.append(f"v_or_b32 v{base}, v{base}, v{base+3}")
        o.append(f"v_cmp_ne_u32 vcc, 0, v{base}")
    else:
        o.append(f"v_cmp_ne_u32 vcc, s{NON}, v{base}")
    o.append("s_nop 1")
    o.append("s_cmp_eq_u64 vcc, 0")
    return o

def gen_B(a):
    st = Stamper(a)
    KB = 57
    ACC, NS = 32, 36
    BLK = [96 + 8*k for k in range(20)]
    st()
    a("v_lshrrev_b32 v24, 5, v1")
    a("v_lshlrev_b32 v21, 3, v1")
    a("v_lshlrev_b32 v22, 4, v1")
    a("v_and_b32 v2, 31, v1")
    a("v_mul_u32_u24 v28, 7168, v24")
    a("v_lshl_add_u32 v28, v2, 4, v28")
    a("v_lshrrev_b32 v3, 3, v1")
    a(f"s_min_u32 s65, s{I2}, 2")
    a("v_min_u32 v3, s65, v3")
    a(f"v_sub_u32 v3, s{I2}, v3")
    a("v_and_b32 v4, 7, v1")
    a("v_min_u32 v4, 5, v4")
    a("v_lshrrev_b32 v5, 1, v4")
    a("v_mul_u32_u24 v5, 448, v5")
    a("v_and_b32 v4, 1, v4")
    a("v_mul_u32_u24 v4, 27, v4")
    a(f"s_mul_i32 s65, s{HEAD}, 28")
    a("v_add3_u32 v4, v4, v5, s65")
    a("v_mul_u32_u24 v4, 683, v4")
    a("v_lshrrev_b32 v4, 16, v4")
    a("v_lshl_add_u32 v4, v3, 4, v4")
    a(f"v_lshlrev_b32 v7, {FS()}, v4")
    a("""v_lshrrev_b32 v2, 3, v1
    v_and_b32 v3, 7, v1
    v_bfe_u32 v4, v2, 1, 1
    v_lshlrev_b32 v4, 2, v4
    v_xor_b32 v5, v3, v4
    v_mul_u32_u24 v6, 2688, v2
    v_lshl_add_u32 v8, v5, 4, v6
    v_mul_u32_u24 v6, 3584, v2
    v_lshl_add_u32 v10, v5, 4, v6
    v_mul_u32_u24 v6, 896, v2
    v_lshl_add_u32 v12, v5, 4, v6""")
    a(f"v_add_u32 v9, {8*2688 - 1024}, v8")
    a(f"v_add_u32 v11, {8*3584 - 1024}, v10")
    a(f"v_add_u32 v13, {8*896 - 1024}, v12")
    a("""v_lshrrev_b32 v2, 2, v1
    v_and_b32 v3, 3, v1
    v_mul_u32_u24 v6, 2688, v2
    v_lshl_add_u32 v14, v3, 4, v6""")
    a(f"""s_mul_i32 s64, s{JJ}, 192
    s_and_b32 s65, s{JJ}, 1
    s_lshl_b32 s66, s65, 6
    s_add_u32 s66, s64, s66
    s_xor_b32 s65, s65, 1
    s_lshl_b32 s65, s65, 7
    s_add_u32 s64, s64, s65""")
    a(f"s_mul_i32 s65, s{WV}, {16*2688}")
    a("s_add_u32 s64, s64, s65")
    a("s_add_u32 s66, s66, s65")
    a(f"s_mul_i32 s67, s{WV}, {16*3584}")
    a(f"s_lshl_b32 s87, s{JJ}, 8")
    a("s_add_u32 s67, s67, s87")
    a("s_add_u32 s68, s67, 128")
    a(f"s_lshl_b32 s69, s{WV}, 10")
    a(f"s_lshl_b32 s70, s{WV}, 11")
    a("""v_and_b32 v2, 15, v1
    v_bfe_u32 v3, v1, 4, 1
    v_lshrrev_b32 v4, 2, v2
    v_bfe_u32 v5, v2, 1, 1
    v_lshl_add_u32 v5, v3, 1, v5
    v_bfe_u32 v6, v2, 3, 1
    v_lshlrev_b32 v6, 2, v6
    v_xor_b32 v5, v5, v6
    v_lshl_add_u32 v4, v24, 2, v4
    v_lshlrev_b32 v4, 7, v4
    v_and_b32 v6, 1, v2
    v_lshl_add_u32 v4, v6, 3, v4
    v_lshl_add_u32 v2, v5, 4, v4
    v_xor_b32 v5, 4, v5
    v_lshl_add_u32 v3, v5, 4, v4""")
    a(f"s_mul_i32 s71, s{WV}, 7168");  a(f"s_add_u32 s71, s71, {P4}")
    a(f"s_lshl_b32 s72, s{WV}, 12");   a(f"s_add_u32 s72, s72, {MSLOT}")
    a(f"s_mul_i32 s73, s{WV}, 14336"); a(f"s_add_u32 s73, s73, {P2}")
    for k, sg in enumerate((71, 72, 73)):
        a(f"v_add_u32 v{17+2*k if k < 2 else 25}, s{sg}, v2")
        a(f"v_add_u32 v{18+2*k if k < 2 else 26}, s{sg}, v3")
    a(f"s_lshl_b32 s74, s{CB}, 7")
    a(f"s_mul_i32 s75, s{WV}, {16*896}")
    a("s_add_u32 s75, s75, s74")
    a(f"s_lshl_b32 s84, s{CB}, 1" if OPT.get('hrot', 1) else "s_mov_b32 s84, 0")
    a(f"s_mul_i32 s65, s84, {128*896}")
    a("s_add_u32 s75, s75, s65")
    a(f"s_sub_u32 s85, s75, {14*128*896}")
    a(f"s_mul_i32 s76, s{WV}, {7*16*896}")
    a("s_add_u32 s76, s76, s74")
    a(f"s_mul_i32 s77, s{RB}, {2*H_T}")
    a("s_add_u32 s77, s77, s69")
    a(f"s_add_u32 s77, s77, {WS_H}")
    a("s_lshl_b32 s65, s84, 13")
    a("s_add_u32 s77, s77, s65")
    a(f"s_sub_u32 s86, s77, {14*8192}")
    a(f"v_add_u32 v23, {H_T}, v22")
    a(f"s_mul_i32 s78, s{RB}, {2*O_T}")
    a(f"s_lshl_b32 s65, s{WV}, 13")
    a("s_add_u32 s78, s78, s65")
    a(f"s_add_u32 s78, s78, {WS_O}")
    a("v_and_b32 v6, 15, v1")
    a("v_min_u32 v4, 13, v6")
    a(f"v_lshlrev_b32 v4, {FS()}, v4")
    a(f"v_lshlrev_b32 v6, {FS()}, v6")
    a(f"s_lshr_b32 s79, s{RB}, 1")
    a(f"s_lshl_b32 s79, s79, {FS() + 4}")
    a(f"s_add_u32 s79, s79, {FLG + 0x8000}")
    a("s_add_u32 s80, s79, 0x8000")
    a("s_add_u32 s81, s79, 0x10000")
    a(f"s_mov_b32 s82, {FLG}")
    a("v_lshlrev_b32 v15, 2, v1")

    def single_dma(n):
        return [f"s_mul_i32 s65, s{KB+n}, {64*2688}", "s_add_u32 s65, s65, s64", f"s_add_u32 m0, s69, {UB[1] + n*4096}",
                "buffer_load_dwordx4 v14, s[12:15], s65 offen lds ; @u1"]
    def pair_dma(n, u):
        rs, sr, vo, sb = {2: (3584, 16, 10, 67), 0: (2688, 12, 8, 66), 3: (3584, 16, 10, 68)}[u]
        o = [f"s_mul_i32 s65, s{KB+n}, {64*rs}", f"s_add_u32 s65, s65, s{sb}", f"s_add_u32 m0, s70, {UB[u] + n*8192}"]
        for p in range(2):
            o.append(f"buffer_load_dwordx4 v{vo+p}, s[{sr}:{sr+3}], s65 offen offset:{p*1024} lds ; @u{u}")
        return o
    SL = [(72, m*2048, 19) for m in range(2)] + [(71, e*2048, 17) for e in range(3)] + [(73, l*2048, 25) for l in range(7)]
    smap, wblk = {}, {}
    def w_dma(s, sl):
        smap[s] = sl
        sg, c, _ = SL[sl]
        if s < 28:
            off = ((s % 14) * 8 + (4 if s >= 14 else 0)) * 16 * 896
            o = [f"s_cmp_ge_u32 s84, {14 - s % 14}", "s_cselect_b32 s65, s85, s75", f"s_add_u32 s65, s65, {off}"]
        else: o = [f"s_add_u32 s65, s76, {(28 * ((s - 28) >> 1) + 16 * ((s - 28) & 1)) * 896}"]
        o.append(f"s_add_u32 m0, s{sg}, {c}")
        sr = 28 if s < 28 else 32
        for p in range(2):
            o.append(f"buffer_load_dwordx4 v{12+p}, s[{sr}:{sr+3}], s65 offen offset:{p*1024} lds ; @d{s}")
        return o
    def w_read(s, b):
        wblk[s] = b
        _, c, ad = SL[smap[s]]; o = []
        for ct in range(2):
            o.append(f"ds_read_b64_tr_b16 {vr(b+4*ct, 2)}, v{ad+ct} offset:{c} ; @r{s}")
            o.append(f"ds_read_b64_tr_b16 {vr(b+4*ct+2, 2)}, v{ad+ct} offset:{c + 1024} ; @r{s}")
        return o
    pool = list(BLK)
    def regstep(s, nxt):
        a(f"WAITV d{s}")
        a.extend(w_read(s, pool.pop()))
        a("s_waitcnt lgkmcnt(0)")
        if nxt is not None: a.extend(w_dma(nxt, smap[s]))
    def kv_stage(slp):
        a(f"s_lshl_b32 s88, s{I2}, 2")
        a(f"s_mul_i32 s89, s{WV}, 3")
        a("s_add_u32 s89, s89, s88")
        a(f"s_mul_i32 s90, s{WV}, 6144")
        a("v_and_b32 v2, 31, v1")
        a("v_lshl_add_u32 v2, v2, 3, s90")
        a("v_mov_b32 v9, 0")
        for k in range(3):
            a(f"s_add_u32 s65, s89, {k}")
            a("s_cmp_lt_u32 s65, 8")
            a("s_cselect_b32 s65, 0xf149, 0")
            a("v_mov_b32 v8, s65")
            a(f"ds_write_b64 v2, v[8:9] offset:{LK + k*2048 + 1792}")
        a("v_and_b32 v2, 31, v1")
        a("v_lshl_add_u32 v2, v2, 3, s70")
        a("v_mov_b32 v8, 0x3f80")
        a(f"ds_write_b64 v2, v[8:9] offset:{LQ + 1792}")
        a("""v_and_b32 v2, 3, v1
        v_cmp_eq_u32 vcc, 0, v2
        v_mov_b32 v3, 0x3f803f80
        v_cndmask_b32 v8, 0, v3, vcc
        v_mov_b32 v9, v8
        v_mov_b32 v10, v8
        v_mov_b32 v11, v8
        v_lshrrev_b32 v3, 2, v1
        v_lshlrev_b32 v3, 9, v3
        v_lshl_add_u32 v3, v2, 4, v3
        v_add_u32 v3, s90, v3
        s_mov_b32 exec_hi, 0xffff""")
        a(f"ds_write_b128 v3, v[8:11] offset:{LV + 448}")
        a("s_mov_b64 exec, -1")
        gpoll(a, 7, 82, slp is None and OPT.get('qe', 0) > 0, slp)
        st()
        a(f"s_mul_i32 s91, s{HEAD}, 1792")
        a(f"s_add_u32 s65, s88, s{WV}")
        a(f"s_mul_i32 s65, s65, {QK_T}")
        a("s_add_u32 s65, s65, s91")
        a(f"s_add_u32 m0, s70, {LQ}")
        a("buffer_load_dwordx4 v22, s[24:27], s65 offen sc1 lds")
        a("s_mov_b32 exec_hi, 0xffff")
        a("buffer_load_dwordx4 v22, s[24:27], s65 offen offset:1024 sc1 lds")
        a("s_mov_b64 exec, -1")
        for k in range(3):
            a(f"s_add_u32 s92, s89, {k}")
            a("s_sub_u32 s93, s92, 8")
            a(f"s_mul_i32 s65, s93, {QK_T}")
            a("s_add_u32 s65, s65, s91")
            a(f"s_add_u32 s65, s65, {112*256}")
            a(f"s_mul_i32 s93, s93, {V_T}")
            a(f"s_mul_i32 s96, s{HEAD}, 448")
            a("s_add_u32 s93, s93, s96")
            a(f"s_add_u32 s93, s93, {WS_V}")
            a("s_cmp_lt_u32 s92, 8")
            a("s_cselect_b32 s65, 0x7fff0000, s65")
            a("s_cselect_b32 s93, 0x7fff0000, s93")
            a(f"s_add_u32 s92, s93, {14336 - 1024}")
            a(f"s_add_u32 m0, s90, {LK + k*2048}")
            a("buffer_load_dwordx4 v22, s[24:27], s65 offen sc1 lds")
            a("s_mov_b32 exec_hi, 0xffff")
            a("buffer_load_dwordx4 v22, s[24:27], s65 offen offset:1024 sc1 lds")
            a("s_mov_b32 exec_lo, 0x0fffffff")
            a("s_mov_b32 exec_hi, 0x0fffffff")
            a(f"s_add_u32 m0, s90, {LV + k*2048}")
            a("buffer_load_dwordx4 v28, s[24:27], s93 offen sc1 lds")
            a("buffer_load_dwordx4 v28, s[24:27], s92 offen offset:1024 sc1 lds ; @kv")
            a("s_mov_b64 exec, -1")
    if OPT.get('tlb', 0):
        a(f"s_cmp_lg_u32 s{WV}, 1")
        a("s_cbranch_scc1 B_notlb")
        sh = OPT['tlb']
        a(f"v_lshlrev_b32 v2, {sh}, v1")
        a("v_mov_b32 v3, 0")
        for k in range(max(1, (17 << 20) >> (sh + 6))):
            a(f"s_mov_b32 s65, {k << (sh + 6)}")
            a(f"buffer_load_dword v40, v2, s[24:27], s65 offen sc1 ; @nocount")
        a("v_lshlrev_b32 v2, 15, v1")
        a("buffer_load_dword v41, v2, s[40:43], 0 offen sc1 ; @nocount")
        a("buffer_load_dword v42, v2, s[28:31], 0 offen ; @nocount")
        a("buffer_load_dword v43, v2, s[32:35], 0 offen ; @nocount")
        a("buffer_load_dword v44, v3, s[36:39], 0 offen ; @nocount")
        a.label("B_notlb")
    a("s_cmp_ge_u32 s56, 28")
    a("s_cbranch_scc1 B_helper")
    a.save("bm")
    st()
    if OPT.get('xiss', 2) < 7: lds_wait(a, XISS)
    for n in range(7): a.extend(pair_dma(n, 0))
    a("buffer_load_dword v16, v15, s[20:23], s87 offen ; @bias")
    for n in range(3): a.extend(single_dma(n))
    a("WAITV bias")
    a.extend(signal(RD0))
    for n in range(3, 7): a.extend(single_dma(n))
    a("v_lshlrev_b32 v2, 16, v16")
    a("v_and_b32 v3, 0xffff0000, v16")
    a(f"v_add_u32 v5, {BIAST}, v21")
    a("ds_write_b64 v5, v[2:3]")
    a(f"v_add_u32 v16, {O_T}, v22")
    st()
    lds_wait(a, FXS)
    for n in range(3): a.extend(pair_dma(n, 2))
    a("WAITV u1")
    a.extend(signal(RD1))
    for n in range(3, 7): a.extend(pair_dma(n, 2))
    def touch():
        a(f"s_and_b32 s65, s{RB}, 3")
        a("s_lshl_b32 s65, s65, 2")
        a(f"s_add_u32 s65, s65, s{WV}")
        a(f"s_mul_i32 s88, s65, {112*896}")
        a("s_add_u32 s88, s88, s74")
        a(f"s_add_u32 s89, s88, {56*896}")
        a(f"s_mul_i32 s90, s65, {28*896}")
        a("s_add_u32 s90, s90, s74")
        a("v_mul_u32_u24 v2, 896, v1")
        a("s_mov_b32 exec_hi, 0xffffff")
        a("buffer_load_dword v32, v2, s[28:31], s88 offen")
        if OPT.get('tw', 0): a("s_waitcnt vmcnt(0)")
        a("buffer_load_dword v33, v2, s[28:31], s89 offen")
        a("s_mov_b64 exec, 0xfffffff")
        if OPT.get('tw', 0): a("s_waitcnt vmcnt(0)")
        a("buffer_load_dword v34, v2, s[32:35], s90 offen")
        a("s_mov_b64 exec, -1")
    a("v_and_b32 v2, 31, v1")
    a("v_mul_u32_u24 v14, 896, v2")
    a("v_lshl_add_u32 v14, v24, 4, v14")
    a("v_lshlrev_b32 v15, 4, v24")
    a(f"s_lshl_b32 s45, s{RB}, 1")
    a(f"s_and_b32 s46, s{WV}, 1")
    a("s_add_u32 s45, s45, s46")
    a(f"s_mul_i32 s45, s45, {32*896}")
    a(f"s_lshr_b32 s46, s{WV}, 1")
    a("s_lshl_b32 s46, s46, 6")
    a("s_add_u32 s46, s46, s74")
    a("s_add_u32 s45, s45, s46")
    T_ = BLK[:4]
    for k in range(2):
        a(f"buffer_load_dwordx4 {vr(T_[0]+4*k, 4)}, v14, s[8:11], s45 offen offset:{32*k}")
        a(f"buffer_load_dwordx4 {vr(T_[1]+4*k, 4)}, v15, s[36:39], s46 offen offset:{32*k} ; @res")
    for r in range(0, 64, 2): a(f"v_mov_b64 {vr(ACC+r, 2)}, 0")
    a("WAITV u2")
    a.extend(signal(RD2))
    if OPT.get('touch', 0) == 1: touch()
    st()
    TH = OPT.get('th', 4)
    thr = lambda t=None: a(f"s_waitcnt vmcnt({t or TH})") if TH < 63 else None
    E0, E1, E2 = OPT.get('e0', 0), OPT.get('e1', 5), OPT.get('e2', 12)
    if E0:
        a.extend(w_dma(0, 0)); a.extend(w_dma(1, 1))
        regstep(0, 2); regstep(1, 3)
    a("WAITV res")
    for k in range(2):
        o_ = T_[2] + 8*k
        for r in range(8):
            op = (lambda d, x: f"v_and_b32 v{d}, 0xffff0000, v{x}") if r & 1 else (lambda d, x: f"v_lshlrev_b32 v{d}, 16, v{x}")
            a(op(o_ + r, T_[0] + 4*k + r//2))
            a(op(2 + (r & 1), T_[1] + 4*k + r//2))
            a(f"v_add_f32 v{o_+r}, v{o_+r}, v{2 + (r & 1)}")
        for r in range(4): a(f"v_permlane32_swap_b32 v{o_+r}, v{o_+4+r}")
    for w in range(4):
        if w < 3:
            a(f"s_cmp_lg_u32 s{WV}, {w}")
            a(f"s_cbranch_scc1 B_i{w+1}")
        for r in range(0, 16, 2): a(f"v_mov_b64 {vr(ACC + 16*w + r, 2)}, {vr(T_[2] + r, 2)}")
        if w < 3:
            a("s_branch B_ij")
            a.label(f"B_i{w+1}")
    a.label("B_ij")
    lds_wait(a, FU0)
    for n in range(7):
        a.extend(pair_dma(n, 3)); thr(TH + (2 if E0 else 0))
        if E0 and n % 2 == 1 and 2 + n // 2 < E0: regstep(2 + n // 2, 4 + n // 2)
    a("WAITV u3")
    a.extend(signal(RD3))
    if OPT.get('touch', 0) == 2: touch()
    if E1:
        lds_wait(a, FU1)
        if E0:
            for k in range(3): a.extend(w_dma(E0 + 2 + k, 2 + k)); thr(OPT.get('th1', 6))
        else:
            for k in range(5): a.extend(w_dma(k, k)); thr(OPT.get('th1', 6))
        for s_ in range(E0, E1):
            if s_ == E1 - OPT.get('qe', 0):
                lds_wait(a, AG0)
                a("buffer_load_dword v5, v7, s[24:27], s82 offen sc1 ; @poll")
            regstep(s_, s_ + 5); thr(OPT.get('th1', 6))
    st()
    hb = {}
    def h_load(s):
        b = hb[s] = pool.pop(0)
        if s < 28:
            off = (s % 14) * 8192 + (4096 if s >= 14 else 0)
            return [f"s_cmp_ge_u32 s84, {14 - s % 14}", "s_cselect_b32 s65, s86, s77", f"s_add_u32 s65, s65, {off}",
                    f"buffer_load_dwordx4 {vr(b, 4)}, v22, s[24:27], s65 offen {LL()} ; @h{s}",
                    f"buffer_load_dwordx4 {vr(b+4, 4)}, v23, s[24:27], s65 offen {LL()} ; @h{s}"]
        return [f"s_add_u32 s65, s78, {(s - 28) * 1024}",
                f"buffer_load_dwordx4 {vr(b, 4)}, v22, s[24:27], s65 offen {LL()} ; @h{s}",
                f"buffer_load_dwordx4 {vr(b+4, 4)}, v16, s[24:27], s65 offen {LL()} ; @h{s}"]
    def mfmas(s, side=()):
        side = list(side); k = 0
        for ct in range(2):
            for rt in range(2):
                d = vr(ACC + 16*(2*ct+rt), 16)
                a(f"{MF} {d}, {vr(wblk[s] + 4*ct, 4)}, {vr(hb[s]+4*rt, 4)}, {d}")
                k += 1
                n = (len(side) + (4 - k)) // (5 - k)
                for g in side[:n]: a.extend(g)
                side = side[n:]
        pool.append(hb[s]); pool.append(wblk[s])
    def split(l):
        out, cur = [], []
        for x in l:
            cur.append(x)
            if x.startswith("buffer_"): out.append(cur); cur = []
        return out + ([cur] if cur else [])
    PD = OPT.get('pd', 8)
    lds_wait(a, FU2)
    kv_stage(None)
    if not E1:
        for k in range(5): a.extend(w_dma(k, k))
    T2 = OPT.get('th2', 63)
    KD = OPT.get('kd', 5)
    for s_ in range(E1, E2 + 1):
        if s_ == min(E2, E1 + KD):
            a("WAITV kv")
            a.extend(signal(RD4))
        if s_ == E2: break
        regstep(s_, s_ + 5)
        if T2 < 63: a(f"s_waitcnt vmcnt({T2})")
    st()
    lds_wait(a, FU3)
    for k in range(7):
        if E2 >= OPT.get('nreg', 14) and k == OPT.get('hk', 3):
            lds_wait(a, AG1)
            a("buffer_load_dword v5, v4, s[24:27], s79 offen sc1 ; @poll")
        a.extend(w_dma(E2 + 5 + k, 5 + k))
        if OPT.get('th3', 63) < 63: a(f"s_waitcnt vmcnt({OPT['th3']})")
    HP = OPT.get('hp', 12)
    NREG = OPT.get('nreg', 14)
    for s_ in range(E2, NREG):
        if s_ == HP:
            lds_wait(a, AG1)
            a("buffer_load_dword v5, v4, s[24:27], s79 offen sc1 ; @poll")
        regstep(s_, s_ + 12)
    st()
    gpoll(a, 4, 79, True)
    if OPT.get('pb', 0): a(f"s_setprio {OPT['pb']}")
    st()
    CK = {OPT.get('ck14', 8): (4, 80, 27), OPT.get('ck28', 25): (6, 81, NS - 1)}
    nxt, limit = 0, 13
    for s in range(NS):
        PE = OPT.get('pe', 6)
        if s + PE in CK: a(f"buffer_load_dword v5, v{CK[s+PE][0]}, s[24:27], s{CK[s+PE][1]} offen sc1 ; @poll")
        if s in CK:
            st()
            gpoll(a, CK[s][0], CK[s][1], True)
            st()
            limit = CK[s][2]
        IL = OPT.get('il', 1)
        side = []
        emit = (lambda l: side.extend(split(l))) if IL else a.extend
        first = True
        while nxt <= min(limit, s + PD) and len(pool) > (2 if s >= NREG - 2 else 0):
            far = nxt >= s + 3
            (emit if far else a.extend)(h_load(nxt)); nxt += 1
        assert nxt > s
        if NREG <= s + 1 < NS:
            a(f"WAITV d{s+1}")
            a.extend(w_read(s + 1, pool.pop(0)))
        if s == 0 or s in CK:
            for g in side: a.extend(g)
            side.clear()
        a(f"WAITV h{s}" + (f" WAITL r{s}" if s >= NREG else ""))
        if s >= NREG and s + 12 < NS: emit(w_dma(s + 12, smap[s]))
        if s == 30: a(f"ds_read_b32 v29, v27 offset:{4*AG3} ; @ag3")
        mfmas(s, side)
    st()
    FB = list(BLK)
    a("s_nop 9")
    a("v_readfirstlane_b32 s97, v29")
    a("s_cmp_ge_u32 s97, 4")
    a("s_cbranch_scc1 B_rok")
    lds_wait(a, AG3)
    a.label("B_rok")
    for w in range(4):
        if w < 3:
            a(f"s_cmp_lg_u32 s{WV}, {w}")
            a(f"s_cbranch_scc1 B_w{w+1}")
        for qd in range(4):
            if qd == w: continue
            slot = qd * 3 + (w if w < qd else w - 1)
            for q in range(4):
                a(f"ds_write_b128 v22, {vr(ACC + 16*qd + 4*q, 4)} offset:{slot*4096 + q*1024}")
        for r in range(0, 16, 2): a(f"v_mov_b64 {vr(FB[6 + r//8] + r % 8, 2)}, {vr(ACC + 16*w + r, 2)}")
        if w < 3:
            a("s_branch B_wj")
            a.label(f"B_w{w+1}")
    a.label("B_wj")
    a(f"s_mul_i32 s65, s{WV}, 12288")
    a("v_add_u32 v10, s65, v22")
    if OPT.get('co', 0):
        a("v_and_b32 v2, 31, v1")
        a(f"s_and_b32 s65, s{WV}, 1")
        a("s_lshl_b32 s65, s65, 5")
        a("v_add_u32 v2, s65, v2")
        a("v_mul_u32_u24 v8, 144, v2")
        a("v_lshl_add_u32 v8, v24, 4, v8")
        a(f"s_lshr_b32 s65, s{WV}, 1")
        a("s_lshl_b32 s65, s65, 6")
        a("v_add_u32 v8, s65, v8")
        a("v_lshrrev_b32 v2, 3, v1")
        a("v_and_b32 v3, 7, v1")
        a("v_mul_u32_u24 v11, 896, v2")
        a("v_lshl_add_u32 v11, v3, 4, v11")
        a("v_mul_u32_u24 v9, 144, v2")
        a("v_lshl_add_u32 v9, v3, 4, v9")
        a(f"s_mul_i32 s65, s{WV}, {16*144}")
        a("v_add_u32 v9, s65, v9")
        a(f"s_lshl_b32 s88, s{RB}, 2")
        a(f"s_add_u32 s88, s88, s{WV}")
        a(f"s_mul_i32 s88, s88, {16*896}")
        a("s_add_u32 s88, s88, s74")
        a(f"s_add_u32 s89, s88, {8*896}")
    a("s_waitcnt lgkmcnt(0)")
    a("s_barrier")
    for q in range(4):
        for p in range(3):
            a(f"ds_read_b128 {vr(FB[2*p + q//2] + 4*(q & 1), 4)}, v10 offset:{p*4096 + q*1024} ; @e{q}")
    for k in range(2):
        o = FB[6 + k]
        a(f"WAITL e{2*k+1}")
        for r in range(0, 8, 2): a(f"v_pk_add_f32 {vr(FB[k]+r, 2)}, {vr(FB[k]+r, 2)}, {vr(FB[2+k]+r, 2)}")
        for r in range(0, 8, 2): a(f"v_pk_add_f32 {vr(o+r, 2)}, {vr(o+r, 2)}, {vr(FB[4+k]+r, 2)}")
        for r in range(0, 8, 2): a(f"v_pk_add_f32 {vr(o+r, 2)}, {vr(o+r, 2)}, {vr(FB[k]+r, 2)}")
        for r in range(4): a(f"v_permlane32_swap_b32 v{o+r}, v{o+4+r}")
        for r in range(4): a(f"v_cvt_pk_bf16_f32 v{o+r}, v{o+2*r}, v{o+2*r+1}")
        if not OPT.get('co', 0): a(f"buffer_store_dwordx4 {vr(o, 4)}, v14, s[40:43], s45 offen offset:{32*k} {'sc1' if OPT.get('osc', 0) else ''}")
        else: a(f"ds_write_b128 v8, {vr(o, 4)} offset:{49152 + 32*k}")
    if OPT.get('co', 0):
        a("s_waitcnt lgkmcnt(0)")
        a("s_barrier")
        for k in range(2): a(f"ds_read_b128 {vr(FB[0] + 4*k, 4)}, v9 offset:{49152 + 8*144*k} ; @oc{k}")
        for k in range(2):
            a(f"WAITL oc{k}")
            a(f"buffer_store_dwordx4 {vr(FB[0] + 4*k, 4)}, v11, s[40:43], s{88+k} offen {'sc1' if OPT.get('osc', 0) else ''}")
    st()
    st.dump()
    a("s_endpgm")
    a.label("B_helper"); a.restore("bm")
    a("s_sub_u32 s64, s56, 28")
    a("s_lshl_b32 s64, s64, 3")
    a("s_and_b32 s65, s2, 7")
    a("s_add_u32 s64, s64, s65")
    a("s_lshl_b32 s64, s64, 2")
    a(f"s_add_u32 s64, s64, s{WV}")
    a("v_lshlrev_b32 v2, 7, v1")
    a("s_lshl_b32 s64, s64, 13")
    a("s_add_u32 s65, s64, 0x100000")
    HS = OPT.get('hs', 1)
    if OPT.get('et', 0) < 1:
        a("buffer_load_dword v44, v2, s[12:15], s64 offen")
        a("buffer_load_dword v45, v2, s[12:15], s65 offen")
        if HS: a("s_waitcnt vmcnt(0)")
    if OPT.get('et', 0) < 2:
        a("buffer_load_dword v42, v2, s[16:19], s64 offen")
        a("buffer_load_dword v43, v2, s[16:19], s65 offen")
        if HS: a("s_waitcnt vmcnt(0)")
    a("buffer_load_dword v46, v2, s[28:31], s64 offen")
    a("buffer_load_dword v47, v2, s[28:31], s65 offen")
    a("buffer_load_dword v48, v2, s[32:35], s64 offen")
    if OPT.get('l2p', 0):
        a("s_waitcnt vmcnt(0)")
        a("s_sub_u32 s64, s56, 28")
        a("s_lshl_b32 s64, s64, 2")
        a(f"s_add_u32 s64, s64, s{WV}")
        a("s_lshl_b32 s64, s64, 13")
        for k in range(13):
            a(f"buffer_load_dword v{50+k}, v2, s[28:31], s64 offen")
            a(f"s_add_u32 s64, s64, {16*8192}")
            if OPT['l2p'] > 1: a(f"s_waitcnt vmcnt({OPT['l2p'] - 2})")
        a(f"s_sub_u32 s64, s64, {13*16*8192}")
        for k in range(4):
            a(f"buffer_load_dword v{64+k}, v2, s[32:35], s64 offen")
            a(f"s_add_u32 s64, s64, {16*8192}")
    kv_stage(OPT.get('hsl', 32))
    a("WAITV kv")
    a.extend(signal(RD4))
    st.dump()
    a("s_cmp_lg_u32 s2, 255")
    a("s_cbranch_scc1 B_hend")
    a(f"s_cmp_lg_u32 s{WV}, 0")
    a("s_cbranch_scc1 B_hend")
    a("s_mov_b64 exec, -1")
    a(f"v_lshlrev_b32 v7, {FS()}, v1")
    for k in range(4):
        a(f"s_mov_b32 s82, {FLG + 0x18000 + (k << (FS() + 6))}")
        gpoll(a, 7, 82, False, 16)
    a(f"v_mov_b32 v2, s{NON}")
    a("v_mov_b32 v3, 0")
    a(f"s_mov_b32 s65, {WS_FL}")
    a("s_mov_b64 exec, 1")
    a("buffer_store_dword v2, v3, s[24:27], s65 offen sc1")
    a.label("B_hend")
    a("s_endpgm")

def build(path):
    a = Asm()
    a.raw(open("hdr.txt").read().rstrip() if OPT.get('hdr', 0) else "; fused kernel")
    a.raw("; @launch grid=(256,1,1) block=(512,1,1) lds=163840")
    a.raw('.amdgcn_target "amdgcn-amd-amdhsa--gfx950"')
    kernel_header(a, NAME)
    a("s_cmp_ge_u32 s2, 256")
    a("s_cbranch_scc1 K_exit")
    if STAMPS: a("s_memrealtime s[100:101]")
    a("s_load_dwordx16 s[64:79], s[0:1], 0")
    a("s_load_dwordx4 s[80:83], s[0:1], 64")
    a("s_load_dwordx2 s[84:85], s[0:1], 80")
    if OPT.get('cpf', 1):
        a("s_getpc_b64 s[46:47]")
        a.label("K_pc")
        a(f"s_sub_u32 s46, s46, K_pc-{NAME}")
        a("s_subb_u32 s47, s47, 0")
        a("s_bfe_u32 s45, s2, 0x30003")
        a("s_mul_i32 s45, s45, 5120")
        a("v_lshrrev_b32 v2, 6, v0")
        a("v_mul_u32_u24 v2, 5, v2")
        a("v_and_b32 v3, 63, v0")
        a("v_add_lshl_u32 v2, v2, v3, 7")
        a("v_add_u32 v2, s45, v2")
        a(f"v_min_u32 v2, K_end-{NAME}-4, v2")
        a("s_mov_b64 exec, 31")
        a("global_load_dword v95, v2, s[46:47] ; @nocount")
        a("s_mov_b64 exec, -1")
    a("""v_and_b32 v1, 63, v0
    v_lshrrev_b32 v2, 6, v0
    s_and_b32 s3, s2, 7
    v_readfirstlane_b32 s4, v2
    s_lshr_b32 s56, s2, 3
    s_mul_i32 s5, s56, 37
    s_lshr_b32 s5, s5, 8
    s_mul_i32 s6, s5, 7
    s_sub_u32 s6, s56, s6""")
    if OPT.get('loc', 0):
        a(f"""s_lshr_b32 s7, s5, 1
        s_lshl_b32 s{I1}, s3, 1
        s_add_u32 s{I1}, s{I1}, s7
        s_and_b32 s{JJ}, s5, 1
        s_mul_i32 s{JJ}, s{JJ}, 7
        s_add_u32 s{JJ}, s{JJ}, s6
        s_and_b32 s{HEAD}, s56, 15
        s_lshr_b32 s7, s56, 4
        s_lshl_b32 s{I2}, s3, 1
        s_add_u32 s{I2}, s{I2}, s7""")
    else:
        a(f"""s_lshr_b32 s{I1}, s3, 1
        s_lshl_b32 s{I1}, s{I1}, 2
        s_add_u32 s{I1}, s{I1}, s5
        s_and_b32 s{JJ}, s3, 1
        s_mul_i32 s{JJ}, s{JJ}, 7
        s_add_u32 s{JJ}, s{JJ}, s6
        s_and_b32 s{HEAD}, s56, 1
        s_lshl_b32 s7, s3, 1
        s_add_u32 s{HEAD}, s{HEAD}, s7
        s_lshr_b32 s{I2}, s56, 1""")
    a(f"""s_lshl_b32 s{RB}, s3, 2
    s_add_u32 s{RB}, s{RB}, s5
    s_mov_b32 s{CB}, s6
    s_and_b32 s{WV}, s4, 3""")
    a(f"""s_lshl_b32 s57, s{I1}, 1
    s_add_u32 s57, s57, s{JJ}
    s_mul_i32 s7, s57, 37
    s_lshr_b32 s7, s7, 8
    s_mul_i32 s7, s7, 7
    s_sub_u32 s57, s57, s7""")
    for n in range(1, 7):
        a(f"s_add_u32 s{57+n}, s{56+n}, 1")
        a(f"s_cmp_eq_u32 s{57+n}, 7")
        a(f"s_cselect_b32 s{57+n}, 0, s{57+n}")
    a(f"v_mov_b32 v27, {CNT}")
    a("v_mov_b32 v30, 1")
    a("s_waitcnt lgkmcnt(0)")
    srd(a, 8, 64, S * D * 2)
    srd(a, 24, 84, WS_SIZE)
    ET = OPT.get('et', 0)
    if ET:
        a("s_cmp_lt_u32 s56, 28")
        a("s_cbranch_scc1 K_net")
        srd(a, 12, 66, D * 3 * D * 2)
        srd(a, 16, 72, D * F * 2)
        a("s_sub_u32 s7, s56, 28")
        a("s_lshl_b32 s7, s7, 3")
        a("s_add_u32 s7, s7, s3")
        a("s_lshl_b32 s7, s7, 3")
        a("s_add_u32 s7, s7, s4")
        a("s_lshl_b32 s7, s7, 13")
        a("v_lshlrev_b32 v2, 7, v1")
        a("buffer_load_dword v94, v2, s[12:15], s7 offen ; @nocount")
        if ET == 2: a("s_waitcnt vmcnt(0)")
        if ET >= 2: a("buffer_load_dword v93, v2, s[16:19], s7 offen ; @nocount")
        a("s_waitcnt vmcnt(0)")
        a.label("K_net")
    a(f"s_add_u32 s86, s84, {WS_FL}")
    a("s_addc_u32 s87, s85, 0")
    a("s_load_dword s44, s[86:87], 0")
    a("s_cmp_lt_u32 s4, 4")
    a("s_cbranch_scc1 A_start")
    a("v_mov_b32 v2, 0")
    a("v_lshl_add_u32 v3, v1, 2, v27")
    a("ds_write_b32 v3, v2")
    nonce(a)
    a("s_branch B_start")
    a.label("A_start")
    a.save("role")
    gen_A(a, [])
    a.label("B_start"); a.restore("role")
    srd(a, 12, 66, D * 3 * D * 2)
    srd(a, 16, 72, D * F * 2)
    srd(a, 20, 74, F * 2)
    srd(a, 28, 76, F * D * 2)
    srd(a, 32, 68, D * D * 2)
    srd(a, 36, 78, D * 2)
    srd(a, 40, 80, S * D * 2)
    a("s_barrier")
    gen_B(a)
    a.label("K_exit")
    a("s_endpgm")
    a.label("K_end")
    kernel_desc(a, NAME, 256, 102, 256)
    open(path, "w").write(a.text())
    print("padded nops:", a.padded)

if __name__ == "__main__":
    if len(sys.argv) > 2 and sys.argv[2] == "st": STAMPS = True
    for kv in sys.argv[3:]:
        k, v = kv.split("="); OPT[k] = int(v)
    build(sys.argv[1])
```
